```python
import torch

def _softmax(x, axis=-1):
    return torch.softmax(x, dim=axis)
def _gelu(x):
    return torch.nn.functional.gelu(x, approximate="tanh")
def _silu(x):
    return torch.nn.functional.silu(x)
def _sigmoid(x):
    return torch.sigmoid(x)
def _layernorm(x, axis=-1, eps=1e-5):
    m = x.mean(dim=axis, keepdim=True)
    v = x.var(dim=axis, keepdim=True, unbiased=False)
    return (x - m) / torch.sqrt(v + eps)
def _scatter_add(tgt, idx, src, axis=0):
    return tgt.clone().index_add_(axis, idx, src)
def _segment_sum(src, seg, n):
    out = torch.zeros((n,) + src.shape[1:], dtype=src.dtype)
    return out.index_add_(0, seg, src)
def _pad(x, pw):
    flat = tuple(v for pair in reversed(pw) for v in pair)
    return torch.nn.functional.pad(x, flat)

kernel_name = 'standalone__mha_block_cached__near_ridge'

def setup_inputs():

    _w = (lambda a: (lambda t: t.to(torch.bfloat16) if t.is_floating_point() else t)(torch.as_tensor(a)))
    B, Sq, D = 16, 48, 640
    H, Sk, Dh = 32, 48, 192
    return {
        "x": _w((lambda *s: torch.randn(*s, dtype=torch.bfloat16) * 0.8)(B, Sq, D)),
        "k_cache": _w((lambda *s: torch.randn(*s, dtype=torch.bfloat16) * 0.8)(B, H, Sk, Dh)),
        "v_cache": _w((lambda *s: torch.randn(*s, dtype=torch.bfloat16) * 0.05)(B, H, Sk, Dh)),
        "wq": _w((lambda *s: torch.randn(*s, dtype=torch.bfloat16) * 0.8)(D, H * Dh) * (D ** -0.5)),
        "wo": _w((lambda *s: torch.randn(*s, dtype=torch.bfloat16) * 0.05)(H * Dh, D) * ((H * Dh) ** -0.5)),
    }

def reference(x, k_cache, v_cache, wq, wo):
    B, Sq, D = x.shape
    H, Dh = 32, 192
    q = (lambda x, *d: x.permute(*d))((x @ wq).reshape(B, Sq, H, Dh), 0, 2, 1, 3)
    scores = torch.einsum("bhqd,bhkd->bhqk", q, k_cache) * (Dh ** -0.5)
    p = _softmax(scores, axis=-1)
    o = torch.einsum("bhqk,bhkd->bhqd", p, v_cache)
    return (lambda x, *d: x.permute(*d))(o, 0, 2, 1, 3).reshape(B, Sq, H * Dh) @ wo
```

```python
import sys, math, argparse
ap = argparse.ArgumentParser()
ap.add_argument("--stamps", action="store_true")
ap.add_argument("--empty", type=int, default=0, help="append N empty kernels launches")
args = ap.parse_args()
STAMPS = args.stamps

WS_O = 0
WS_P = 16 << 20
WS_ST = 0x8000000
NST = 16

class A:
    def __init__(s): s.L = []
    def __call__(s, t): s.L.append("    " + t)
    def lab(s, t): s.L.append(t + ":")
    def c(s, t): s.L.append("    ; " + t)
    def raw(s, t): s.L.append(t)
e = A()

def vr(b, n): return f"v[{b}:{b+n-1}]" if n > 1 else f"v{b}"
def ar(b, n): return f"a[{b}:{b+n-1}]" if n > 1 else f"a{b}"
def sr(b, n): return f"s[{b}:{b+n-1}]"

def kernel_head(name):
    e.raw(f".globl {name}\n.p2align 8\n.type {name},@function\n{name}:")
def kernel_desc(name, nvgpr, accum, nsgpr=102):
    return f""".amdhsa_kernel {name}
  .amdhsa_next_free_vgpr {nvgpr}
  .amdhsa_next_free_sgpr {nsgpr}
  .amdhsa_accum_offset {accum}
  .amdhsa_group_segment_fixed_size 0
  .amdhsa_kernarg_size 64
  .amdhsa_user_sgpr_count 2
  .amdhsa_user_sgpr_kernarg_segment_ptr 1
  .amdhsa_system_sgpr_workgroup_id_x 1
.end_amdhsa_kernel"""

S_X, S_K, S_V, S_WQ, S_WO, S_OUT, S_DBG, S_WS = 4, 6, 8, 10, 12, 14, 16, 18
R_X, R_WQ, R_K, R_V, R_WO, R_OUT, R_WS = 20, 24, 28, 32, 36, 40, 44
S_J, S_I, S_BP, S_H, S_W = 48, 49, 50, 51, 52
S_T0, S_T1, S_T2, S_T3 = 53, 54, 55, 56
S_ST = 70

def srd(r, p, nbytes):
    e(f"s_mov_b32 s{r}, s{p}")
    e(f"s_mov_b32 s{r+1}, s{p+1}")
    e(f"s_mov_b32 s{r+2}, {nbytes}")
    e(f"s_mov_b32 s{r+3}, 0x00020000")

stamp_n = [0]
def stamp(wait=True):
    if not STAMPS: return
    i = stamp_n[0]; stamp_n[0] += 1
    e(f"s_memrealtime s[{S_ST+2*i}:{S_ST+2*i+1}]")
    if wait: e("s_waitcnt lgkmcnt(0)")
def stamp_store(first_slot):
    if not STAMPS: return
    n = stamp_n[0]
    e("s_waitcnt lgkmcnt(0)")
    e(f"s_lshl_b32 s{S_T0}, s2, 2")
    e(f"s_add_u32 s{S_T0}, s{S_T0}, s{S_W}")
    e(f"s_mul_i32 s{S_T0}, s{S_T0}, {NST*8}")
    e(f"s_add_u32 s{S_T0}, s{S_T0}, {WS_ST + first_slot*8}")
    e("v_mov_b32 v4, 0")
    for i in range(n):
        e(f"v_mov_b32 v2, s{S_ST+2*i}")
        e(f"v_mov_b32 v3, s{S_ST+2*i+1}")
        e(f"buffer_store_dwordx2 v[2:3], v4, s[{R_WS}:{R_WS+3}], s{S_T0} offen offset:{8*i}")
        e("s_nop 1")
    stamp_n[0] = 0

def common_prologue(endlabel, code_prefetch_bytes, dummy=255):
    stamp(wait=False)
    e("s_load_dwordx16 s[4:19], s[0:1], 0")
    e("s_cmp_ge_u32 s2, 256")
    e(f"s_cbranch_scc1 {endlabel}")
    if code_prefetch_bytes:
        e("s_getpc_b64 s[58:59]")
        e("v_lshlrev_b32 v2, 7, v0")
        e(f"global_load_dword v{dummy}, v2, s[58:59]")
    e("v_and_b32 v1, 63, v0")
    e("v_lshrrev_b32 v2, 6, v0")
    e(f"s_and_b32 s{S_J}, s2, 7")
    e(f"v_readfirstlane_b32 s{S_W}, v2")
    e(f"s_lshr_b32 s{S_T0}, s2, 3")
    e(f"s_and_b32 s{S_I}, s{S_T0}, 3")
    e(f"s_lshr_b32 s{S_BP}, s{S_T0}, 2")
    e(f"s_lshl_b32 s{S_H}, s{S_J}, 2")
    e(f"s_add_u32 s{S_H}, s{S_H}, s{S_I}")

XB = 12288
STG = 36864
def gen_k1(name):
    kernel_head(name)
    common_prologue("L_k1_end", 32768)
    V_OW, V_OX0, V_OX1, V_OV, V_OK = 10, 11, 12, 13, 14
    V_AW = 16
    V_AX = 22
    FR = [32, 68]
    ACC = 104
    KF = 176
    QF = 212
    V_AV = 248
    e("v_lshrrev_b32 v2, 3, v1")
    e("v_and_b32 v3, 7, v1")
    e("v_lshrrev_b32 v4, 1, v2")
    e("v_lshlrev_b32 v5, 1, v4")
    e("v_xor_b32 v5, v5, v3")
    e("v_lshlrev_b32 v5, 4, v5")
    e("v_lshrrev_b32 v6, 2, v2")
    e("v_lshlrev_b32 v6, 3, v6")
    e("v_and_b32 v7, 3, v2")
    e("v_add_u32 v6, v6, v7")
    e("v_mul_u32_u24 v6, 12288, v6")
    e(f"v_add_u32 v{V_OW}, v6, v5")
    e("v_mul_u32_u24 v6, 384, v2")
    e(f"v_add_u32 v{V_OV}, v6, v5")
    e("v_mul_u32_u24 v6, 1280, v2")
    e("v_xor_b32 v7, v3, v4")
    e("v_lshlrev_b32 v8, 4, v7")
    e(f"v_add_u32 v{V_OX0}, v6, v8")
    e("v_xor_b32 v8, 64, v8")
    e("v_add_u32 v6, 10240, v6")
    e(f"v_add_u32 v{V_OX1}, v6, v8")
    e("v_lshrrev_b32 v2, 4, v1")
    e("v_and_b32 v3, 15, v1")
    e("v_mul_u32_u24 v4, 384, v3")
    e(f"v_lshl_add_u32 v{V_OK}, v2, 3, v4")
    e("v_lshrrev_b32 v4, 1, v3")
    e("v_xor_b32 v4, v4, v2")
    e("v_lshlrev_b32 v4, 4, v4")
    e("v_lshl_add_u32 v4, v3, 7, v4")
    e(f"s_lshr_b32 s{S_T0}, s{S_W}, 1")
    e(f"s_and_b32 s{S_T1}, s{S_W}, 1")
    e(f"s_mul_i32 s{S_T2}, s{S_T0}, 6144")
    e(f"v_add_u32 v{V_AX}, s{S_T2}, v4")
    e(f"v_xor_b32 v{V_AX+1}, 64, v{V_AX}")
    e(f"v_add_u32 v{V_AX+8}, {2*STG}, v{V_AX}")
    e(f"v_add_u32 v{V_AX+9}, {2*STG}, v{V_AX+1}")
    e("v_lshrrev_b32 v4, 2, v1")
    e("v_and_b32 v4, 7, v4")
    e("v_lshrrev_b32 v5, 5, v1")
    e("v_lshlrev_b32 v5, 11, v5")
    e("v_lshl_add_u32 v5, v4, 7, v5")
    e("v_and_b32 v6, 3, v1")
    e("v_lshl_add_u32 v5, v6, 3, v5")
    e("v_lshrrev_b32 v4, 1, v4")
    e(f"s_mul_i32 s{S_T2}, s{S_T1}, 6")
    for t in range(6):
        e(f"s_add_u32 s{S_T3}, s{S_T2}, {t}")
        e(f"s_and_b32 s57, s{S_T3}, 3")
        e(f"s_lshr_b32 s{S_T3}, s{S_T3}, 2")
        e(f"s_lshl_b32 s{S_T3}, s{S_T3}, 12")
        e(f"v_xor_b32 v6, s57, v4")
        e(f"v_lshl_add_u32 v6, v6, 5, v5")
        e(f"v_add_u32 v{V_AW+t}, s{S_T3}, v6")
        e(f"v_add_u32 v{V_AW+8+t}, {2*STG}, v{V_AW+t}")
    e(f"s_lshl_b32 s{S_T3}, s{S_T0}, 10")
    for t in range(6):
        e(f"v_add_u32 v{V_AV+t}, s{S_T3}, v{V_AW+8+t}")
    e("s_waitcnt lgkmcnt(0)")
    srd(R_X, S_X, 16*48*640*2)
    srd(R_WQ, S_WQ, 640*6144*2)
    srd(R_K, S_K, 16*32*48*192*2)
    srd(R_V, S_V, 16*32*48*192*2)
    srd(R_WS, S_WS, 268435456)
    S_XB, S_WB, S_KX, S_KW, S_KB, S_VB, S_OB = 60, 61, 62, 63, 64, 65, 66
    e(f"s_mul_i32 s{S_XB}, s{S_BP}, {96*1280}")
    e(f"s_mul_i32 s{S_T2}, s{S_W}, {32*1280}")
    e(f"s_add_u32 s{S_XB}, s{S_XB}, s{S_T2}")
    e(f"s_mul_i32 s{S_WB}, s{S_H}, 384")
    e(f"s_lshl_b32 s{S_T2}, s{S_W}, 7")
    e(f"s_add_u32 s{S_WB}, s{S_WB}, s{S_T2}")
    e(f"s_mul_i32 s{S_KX}, s{S_BP}, 10")
    e(f"s_lshr_b32 s{S_KX}, s{S_KX}, 3")
    e(f"s_lshl_b32 s{S_KX}, s{S_KX}, 7")
    e(f"s_lshl_b32 s{S_T2}, s{S_BP}, 1")
    e(f"s_add_u32 s{S_T2}, s{S_T2}, s{S_T0}")
    e(f"s_lshl_b32 s{S_T2}, s{S_T2}, 5")
    e(f"s_add_u32 s{S_T2}, s{S_T2}, s{S_H}")
    e(f"s_mul_i32 s{S_KB}, s{S_T2}, 18432")
    e(f"s_mul_i32 s{S_T3}, s{S_T1}, 9216")
    e(f"s_add_u32 s{S_OB}, s{S_KB}, s{S_T3}")
    e(f"s_mul_i32 s{S_T3}, s{S_T1}, 192")
    e(f"s_add_u32 s{S_KB}, s{S_KB}, s{S_T3}")
    e(f"s_lshl_b32 s{S_T2}, s{S_BP}, 6")
    e(f"s_add_u32 s{S_T2}, s{S_T2}, s{S_H}")
    e(f"s_mul_i32 s{S_VB}, s{S_T2}, 18432")
    e(f"s_lshl_b32 s{S_T2}, s{S_W}, 7")
    e(f"s_add_u32 s{S_VB}, s{S_VB}, s{S_T2}")
    S_LX = 67
    e(f"s_lshl_b32 s{S_LX}, s{S_W}, 12")

    def dma_ops(buf):
        ops = []
        pre = [f"s_mul_i32 s{S_KW}, s{S_KX}, 6144", f"s_add_u32 s{S_KW}, s{S_KW}, s{S_WB}", f"s_add_u32 s68, s{S_KX}, s{S_XB}"]
        order = []
        for ks in range(2):
            for hi in range(2):
                for m in range(2):
                    order.append(("w", ks, hi, m))
        xs = [("x", a, p) for a in range(2) for p in range(2)]
        seq = xs[:2] + order[:4] + xs[2:] + order[4:]
        for o in seq:
            if o[0] == "w":
                _, ks, hi, m = o
                lds = buf*STG + XB + ks*12288 + (2*hi+m)*1024
                goff = (32*ks + 16*hi + 4*m)*12288
                g = [f"s_add_u32 m0, s{S_LX}, {lds}", f"s_add_u32 s69, s{S_KW}, {goff}",
                     f"buffer_load_dwordx4 v{V_OW}, s[{R_WQ}:{R_WQ+3}], s69 offen lds"]
            else:
                _, a, p = o
                lds = buf*STG + (2*a+p)*1024
                goff = 16*a*1280
                g = [f"s_add_u32 m0, s{S_LX}, {lds}", f"s_add_u32 s69, s68, {goff}",
                     f"buffer_load_dwordx4 v{V_OX0+p}, s[{R_X}:{R_X+3}], s69 offen lds"]
            ops.append(g)
        ops[0] = pre + ops[0]
        ops[-1] = ops[-1] + [f"s_add_u32 s{S_KX}, s{S_KX}, 128", f"s_cmp_eq_u32 s{S_KX}, 1280", f"s_cselect_b32 s{S_KX}, 0, s{S_KX}"]
        return ops
    def vdma_ops():
        ops = []
        for b in range(2):
            for kt in range(3):
                for hi in range(2):
                    lds = 2*STG + kt*12288 + hi*2048 + b*1024
                    goff = b*32*18432 + (16*kt + 8*hi)*384
                    ops.append([f"s_add_u32 m0, s{S_LX}, {lds}", f"s_add_u32 s69, s{S_VB}, {goff}",
                                f"buffer_load_dwordx4 v{V_OV}, s[{R_V}:{R_V+3}], s69 offen lds"])
        return ops
    def kload_ops():
        ops = []
        for kt in range(3):
            for u in range(3):
                r = KF + (kt*3+u)*4
                g = []
                if u == 0: g.append(f"s_add_u32 s69, s{S_KB}, {kt*6144}")
                g.append(f"buffer_load_dwordx2 {vr(r,2)}, v{V_OK}, s[{R_K}:{R_K+3}], s69 offen offset:{u*64}")
                g.append(f"buffer_load_dwordx2 {vr(r+2,2)}, v{V_OK}, s[{R_K}:{R_K+3}], s69 offen offset:{u*64+32}")
                ops.append(g)
        return ops
    def read_ops(s, ks, fs):
        buf = s % 4
        aset = 8*(buf//2); boff = (buf % 2)*STG
        F = FR[fs]
        ops = []
        def xr(qt): return f"ds_read_b128 {vr(F+24+4*qt,4)}, v{V_AX+aset+ks} offset:{boff+qt*2048}"
        def wr(t, m): return f"ds_read_b64_tr_b16 {vr(F+4*t+2*m,2)}, v{V_AW+aset+t} offset:{boff+XB+ks*12288+m*1024}"
        ops += [xr(0), wr(0,0), wr(0,1), xr(1), xr(2)]
        for t in range(1, 6): ops += [wr(t,0), wr(t,1)]
        return ops
    def mfma_ops(fs, first):
        F = FR[fs]; ops = []
        for t in range(6):
            for qt in range(3):
                d = ACC + (t*3+qt)*4
                c = "0" if first else vr(d,4)
                ops.append(f"v_mfma_f32_16x16x32_bf16 {vr(d,4)}, {vr(F+4*t,4)}, {vr(F+24+4*qt,4)}, {c}")
        return ops
    def interleave(mf, reads, dmas):
        n = len(mf)
        rq = list(reads); dq = list(dmas)
        for k, m in enumerate(mf):
            e(m)
            nr = 2 if k < 4 else 1
            for _ in range(nr):
                if rq: e(rq.pop(0))
            if dq and k >= 1:
                per = max(1, math.ceil(len(dq) / max(1, n - 1 - k)))
                for _ in range(per):
                    if dq:
                        for x in dq.pop(0): e(x)
        assert not rq and not dq

    def prefetch_ops():
        ops = []
        for (R, base) in ((R_K, None), (R_V, None)):
            for b in range(2):
                for part in range(3):
                    lines = min(64, 144 - part*64)
                    ops.append((R, b, part, lines))
        return ops

    def mainloop(role):
        if role == 0:
            for s in range(4):
                for g in dma_ops(s):
                    for x in g: e(x)
            e("s_waitcnt vmcnt(36)")
        else:
            for g in kload_ops():
                for x in g: e(x)
            e("v_lshlrev_b32 v2, 7, v1")
            e("v_min_u32 v5, 0x780, v2")
            e(f"s_lshl_b32 s{S_T2}, s{S_W}, 7")
            e(f"s_sub_u32 s{S_T2}, s{S_VB}, s{S_T2}")
            for (R, b, part, lines) in prefetch_ops():
                e(f"s_add_u32 s69, s{S_T2}, {b*32*18432 + part*8192}")
                e(f"buffer_load_dword v{6 if part else 7}, v{2 if lines==64 else 5}, s[{R}:{R+3}], s69 offen")
        e("s_barrier")
        stamp()
        for x in read_ops(0, 0, 0): e(x)
        for s in range(10):
            e.c(f"--- stage {s} kstep 0")
            e("s_waitcnt lgkmcnt(0)")
            interleave(mfma_ops(0, s == 0), read_ops(s, 1, 1), [])
            e("s_waitcnt lgkmcnt(0)")
            if s < 9:
                if role == 0:
                    n = {6: 24, 7: 42, 8: 30}.get(s, 24)
                    e(f"s_waitcnt vmcnt({n})")
                e("s_barrier")
            e.c(f"--- stage {s} kstep 1")
            dm = []
            if role == 0:
                if s + 4 <= 9: dm = dma_ops((s+4) % 4)
                elif s == 6: dm = vdma_ops() + kload_ops()
            interleave(mfma_ops(1, False), read_ops(s+1, 0, 0) if s < 9 else [], dm)
    e(f"s_cmp_eq_u32 s{S_W}, 3")
    e("s_cbranch_scc1 L_k1_w3")
    sn = stamp_n[0]
    mainloop(0)
    e("s_branch L_k1_attn")
    e.lab("L_k1_w3")
    stamp_n[0] = sn
    mainloop(1)
    e.lab("L_k1_attn")
    stamp()
    e("s_nop 7")
    for u in range(3):
        for qt in range(3):
            q = QF + (u*3+qt)*4
            for hh in range(2):
                a = ACC + ((2*u+hh)*3+qt)*4
                e(f"v_cvt_pk_bf16_f32 v{q+2*hh}, v{a}, v{a+1}")
                e(f"v_cvt_pk_bf16_f32 v{q+2*hh+1}, v{a+2}, v{a+3}")
    e("s_waitcnt vmcnt(0)")
    stamp()
    SA = 32
    SB = 68
    for u in range(3):
        for kt in range(3):
            for qt in range(3):
                d = SA + (kt*3+qt)*4
                c = "0" if u == 0 else vr(d,4)
                e(f"v_mfma_f32_16x16x32_bf16 {vr(d,4)}, {vr(KF+(kt*3+u)*4,4)}, {vr(QF+(u*3+qt)*4,4)}, {c}")
    e(f"s_mul_i32 s{S_T2}, s{S_W}, 9216")
    e(f"s_xor_b32 s{S_T3}, s{S_W}, 1")
    e(f"s_mul_i32 s{S_T3}, s{S_T3}, 9216")
    e("v_lshlrev_b32 v2, 4, v1")
    e(f"v_add_u32 v3, s{S_T2}, v2")
    e(f"v_add_u32 v4, s{S_T3}, v2")
    e("s_nop 3")
    for k in range(9):
        e(f"ds_write_b128 v3, {vr(SA+4*k,4)} offset:{k*1024}")
    e("s_waitcnt lgkmcnt(0)")
    e("s_barrier")
    for k in range(9):
        e(f"ds_read_b128 {vr(SB+4*k,4)}, v4 offset:{k*1024}")
    VF = KF
    e("s_waitcnt lgkmcnt(0)")
    for t in range(6):
        for kt in range(3):
            e(f"ds_read_b64_tr_b16 {vr(VF+6*t+2*kt,2)}, v{V_AV+t} offset:{kt*12288}")
            if t*3+kt == 14: pass
    cs = (192 ** -0.5) * math.log2(math.e)
    import struct
    cbits = struct.unpack("<I", struct.pack("<f", cs))[0]
    e(f"s_mov_b32 s{S_T2}, {cbits:#x}")
    for k in range(18):
        e(f"v_pk_add_f32 {vr(SA+2*k,2)}, {vr(SA+2*k,2)}, {vr(SB+2*k,2)}")
    PF = QF
    def sreg(kt, qt, r): return SA + (kt*3+qt)*4 + r
    M = [2, 3, 4]; T = [5, 6, 7]
    for qt in range(3):
        vals = [sreg(kt, qt, r) for kt in range(3) for r in range(4)]
        e(f"v_max3_f32 v{M[qt]}, v{vals[0]}, v{vals[1]}, v{vals[2]}")
        for k in range(3, 11, 2):
            e(f"v_max3_f32 v{M[qt]}, v{M[qt]}, v{vals[k]}, v{vals[k+1]}")
        e(f"v_max_f32 v{M[qt]}, v{M[qt]}, v{vals[11]}")
    def xlane(op):
        for sw in ("v_permlane32_swap_b32", "v_permlane16_swap_b32"):
            for qt in range(3): e(f"v_mov_b32 v{T[qt]}, v{M[qt]}")
            e("s_nop 1")
            for qt in range(3): e(f"{sw} v{M[qt]}, v{T[qt]}")
            e("s_nop 1")
            for qt in range(3): e(f"{op} v{M[qt]}, v{M[qt]}, v{T[qt]}")
    xlane("v_max_f32")
    for qt in range(3): e(f"v_mul_f32 v{M[qt]}, s{S_T2}, v{M[qt]}")
    for qt in range(3):
        for kt in range(3):
            for r in range(4):
                x = sreg(kt, qt, r)
                e(f"v_fma_f32 v{x}, v{x}, s{S_T2}, -v{M[qt]}")
    for qt in range(3):
        for kt in range(3):
            for r in range(4):
                x = sreg(kt, qt, r)
                e(f"v_exp_f32 v{x}, v{x}")
    e("s_nop 0")
    for qt in range(3):
        vals = [sreg(kt, qt, r) for kt in range(3) for r in range(4)]
        e(f"v_add_f32 v{M[qt]}, v{vals[0]}, v{vals[1]}")
        for k in range(2, 12): e(f"v_add_f32 v{M[qt]}, v{M[qt]}, v{vals[k]}")
    xlane("v_add_f32")
    for qt in range(3): e(f"v_rcp_f32 v{M[qt]}, v{M[qt]}")
    e("s_nop 0")
    for qt in range(3):
        for kt in range(3):
            for r in range(4):
                x = sreg(kt, qt, r)
                e(f"v_mul_f32 v{x}, v{x}, v{M[qt]}")
            x = sreg(kt, qt, 0)
            e(f"v_cvt_pk_bf16_f32 v{PF+6*qt+2*kt}, v{x}, v{x+1}")
            e(f"v_cvt_pk_bf16_f32 v{PF+6*qt+2*kt+1}, v{x+2}, v{x+3}")
    e("s_waitcnt lgkmcnt(0)")
    e("s_nop 1")
    stamp()
    for t in range(6):
        for qt in range(3):
            d = ACC + (t*3+qt)*4
            e(f"v_mfma_f32_16x16x32_bf16 {vr(d,4)}, {vr(VF+6*t,4)}, {vr(PF+6*qt,4)}, 0")
    for t in range(6):
        for qt in range(3):
            d = ACC + (t*3+qt)*4
            e(f"v_mfma_f32_16x16x16_bf16 {vr(d,4)}, {vr(VF+6*t+4,2)}, {vr(PF+6*qt+4,2)}, {vr(d,4)}")
    e("v_lshlrev_b32 v2, 4, v1")
    e("s_nop 6")
    OF = 32
    for u in range(3):
        e(f"s_add_u32 s69, s{S_OB}, {WS_O + u*3072}")
        for qt in range(3):
            q = OF + (u*3+qt)*4
            for hh in range(2):
                a = ACC + ((2*u+hh)*3+qt)*4
                e(f"v_cvt_pk_bf16_f32 v{q+2*hh}, v{a}, v{a+1}")
                e(f"v_cvt_pk_bf16_f32 v{q+2*hh+1}, v{a+2}, v{a+3}")
            e(f"buffer_store_dwordx4 {vr(q,4)}, v2, s[{R_WS}:{R_WS+3}], s69 offen offset:{qt*1024}")
    stamp()
    if STAMPS:
        e("s_waitcnt vmcnt(0)")
        stamp()
    stamp_store(0)
    e.lab("L_k1_end")
    e("s_endpgm")
    return kernel_desc(name, 256, 256)

def gen_k2(name):
    kernel_head(name)
    common_prologue("L_k2_end", 16384)
    S_RG, S_CG = 60, 61
    e(f"s_lshr_b32 s{S_RG}, s{S_BP}, 1")
    e(f"s_and_b32 s{S_CG}, s{S_BP}, 1")
    e(f"s_lshl_b32 s{S_CG}, s{S_CG}, 2")
    e(f"s_add_u32 s{S_CG}, s{S_CG}, s{S_I}")
    V_OWO = 10
    V_A0, V_A1 = 16, 17
    AF = [20, 40]
    ACC = 64
    OFV = 128
    e("s_mov_b32 s57, 0x1999999a")
    for n in range(5):
        e(f"v_add_u32 v2, {64*n}, v1")
        e("v_mul_hi_u32 v3, v2, s57")
        e("v_mul_u32_u24 v4, 10, v3")
        e("v_sub_u32 v4, v2, v4")
        e("v_mul_u32_u24 v3, 1280, v3")
        e(f"v_lshl_add_u32 v{V_OWO+n}, v4, 4, v3")
    e("v_lshrrev_b32 v2, 2, v1")
    e("v_mul_u32_u24 v2, 160, v2")
    e("v_and_b32 v3, 3, v1")
    e(f"v_lshl_add_u32 v{V_A0}, v3, 3, v2")
    e(f"v_add_u32 v{V_A1}, 61440, v{V_A0}")
    e("v_lshlrev_b32 v18, 4, v1")
    e("s_waitcnt lgkmcnt(0)")
    srd(R_WO, S_WO, 6144*640*2)
    srd(R_WS, S_WS, 268435456)
    S_WOB, S_OB, S_PB, S_LW = 62, 63, 64, 65
    e(f"s_mul_i32 s{S_WOB}, s{S_J}, {768*1280}")
    e(f"s_mul_i32 s{S_T0}, s{S_W}, {32*1280}")
    e(f"s_add_u32 s{S_WOB}, s{S_WOB}, s{S_T0}")
    e(f"s_mul_i32 s{S_T0}, s{S_CG}, 160")
    e(f"s_add_u32 s{S_WOB}, s{S_WOB}, s{S_T0}")
    e(f"s_mul_i32 s{S_LW}, s{S_W}, 5120")
    e(f"s_lshl_b32 s{S_T0}, s{S_RG}, 2")
    e(f"s_add_u32 s{S_T0}, s{S_T0}, s{S_W}")
    e(f"s_lshl_b32 s{S_T0}, s{S_T0}, 3")
    e(f"s_add_u32 s{S_T0}, s{S_T0}, s{S_J}")
    e(f"s_mul_i32 s{S_OB}, s{S_T0}, {4*18432}")
    e(f"s_lshl_b32 s{S_T0}, s{S_RG}, 3")
    e(f"s_add_u32 s{S_T0}, s{S_T0}, s{S_CG}")
    e(f"s_lshl_b32 s{S_T0}, s{S_T0}, 2")
    e(f"s_add_u32 s{S_T0}, s{S_T0}, s{S_W}")
    e(f"s_lshl_b32 s{S_T0}, s{S_T0}, 3")
    e(f"s_add_u32 s{S_T0}, s{S_T0}, s{S_J}")
    e(f"s_mul_i32 s{S_PB}, s{S_T0}, 15360")
    e(f"s_add_u32 s{S_PB}, s{S_PB}, {WS_P}")
    for gq in range(6):
        e(f"s_add_u32 s69, s{S_WOB}, {gq*128*1280}")
        for n in range(5):
            e(f"s_add_u32 m0, s{S_LW}, {gq*20480 + n*1024}")
            e("s_nop 0")
            e(f"buffer_load_dwordx4 v{V_OWO+n}, s[{R_WO}:{R_WO+3}], s69 offen lds")
    def ofr(f): return ar(4*f, 4) if f < 64 else vr(OFV + 4*(f-64), 4)
    for f in range(72):
        if f % 4 == 0: e(f"s_add_u32 s69, s{S_OB}, {WS_O + f*1024}")
        e(f"buffer_load_dwordx4 {ofr(f)}, v18, s[{R_WS}:{R_WS+3}], s69 offen offset:{(f%4)*1024}")
    e("s_waitcnt vmcnt(63)")
    e("s_barrier")
    stamp()
    def rd(u, fs):
        ops = []
        for tt in range(5):
            for m in range(2):
                off = u*5120 + m*2560 + tt*32
                a = V_A0
                if off >= 61440: off -= 61440; a = V_A1
                ops.append(f"ds_read_b64_tr_b16 {vr(AF[fs]+4*tt+2*m,2)}, v{a} offset:{off}")
        return ops
    for x in rd(0, 0): e(x)
    for u in range(24):
        fs = u % 2
        e(f"s_waitcnt vmcnt({min(63, 72-3*(u+1))}) lgkmcnt(0)")
        rq = rd(u+1, 1-fs) if u < 23 else []
        k = 0
        for tt in range(5):
            for qt in range(3):
                d = ACC + (tt*3+qt)*4
                c = "0" if u == 0 else vr(d, 4)
                e(f"v_mfma_f32_16x16x32_bf16 {vr(d,4)}, {vr(AF[fs]+4*tt,4)}, {ofr(u*3+qt)}, {c}")
                for _ in range(2 if k < 2 else 1):
                    if rq: e(rq.pop(0))
                k += 1
    stamp()
    e("s_nop 7")
    for k in range(15):
        if k % 4 == 0: e(f"s_add_u32 s69, s{S_PB}, {k*1024}")
        e(f"buffer_store_dwordx4 {vr(ACC+4*k,4)}, v18, s[{R_WS}:{R_WS+3}], s69 offen offset:{(k%4)*1024}")
    if STAMPS:
        e("s_waitcnt vmcnt(0)")
        stamp()
    stamp_store(8)
    e.lab("L_k2_end")
    e("s_endpgm")
    return kernel_desc(name, 512, 256)

def gen_k3(name):
    kernel_head(name)
    common_prologue("L_k3_end", 0)
    S_RG, S_CG = 60, 61
    e(f"s_lshr_b32 s{S_RG}, s{S_BP}, 1")
    e(f"s_and_b32 s{S_CG}, s{S_BP}, 1")
    e(f"s_lshl_b32 s{S_CG}, s{S_CG}, 2")
    e(f"s_add_u32 s{S_CG}, s{S_CG}, s{S_I}")
    e("v_lshlrev_b32 v18, 4, v1")
    e("v_and_b32 v2, 15, v1")
    e("v_mul_u32_u24 v2, 1280, v2")
    e("v_lshrrev_b32 v3, 4, v1")
    e("v_lshl_add_u32 v19, v3, 3, v2")
    S_PB, S_OUTB = 64, 65
    e(f"s_lshl_b32 s{S_T0}, s{S_RG}, 3")
    e(f"s_add_u32 s{S_T0}, s{S_T0}, s{S_CG}")
    e(f"s_lshl_b32 s{S_T0}, s{S_T0}, 2")
    e(f"s_add_u32 s{S_T0}, s{S_T0}, s{S_W}")
    e(f"s_mul_i32 s{S_PB}, s{S_T0}, {8*15360}")
    e(f"s_lshl_b32 s{S_T1}, s{S_J}, 11")
    e(f"s_add_u32 s{S_PB}, s{S_PB}, s{S_T1}")
    e(f"s_add_u32 s{S_PB}, s{S_PB}, {WS_P}")
    e(f"s_lshl_b32 s{S_T0}, s{S_RG}, 2")
    e(f"s_add_u32 s{S_T0}, s{S_T0}, s{S_W}")
    e(f"s_mul_i32 s{S_OUTB}, s{S_T0}, {48*1280}")
    e(f"s_mul_i32 s{S_T0}, s{S_CG}, 160")
    e(f"s_add_u32 s{S_OUTB}, s{S_OUTB}, s{S_T0}")
    e("s_waitcnt lgkmcnt(0)")
    srd(R_OUT, S_OUT, 16*48*640*2)
    srd(R_WS, S_WS, 268435456)
    for jj in range(8):
        e(f"s_add_u32 s69, s{S_PB}, {jj*15360}")
        for z in range(2):
            e(f"buffer_load_dwordx4 {vr(32+(z*8+jj)*4,4)}, v18, s[{R_WS}:{R_WS+3}], s69 offen offset:{z*1024}")
    e("s_waitcnt vmcnt(0)")
    for z in range(2):
        b = 32 + z*32
        for st in (4, 2, 1):
            for k in range(st):
                for h2 in range(2):
                    e(f"v_pk_add_f32 {vr(b+4*k+2*h2,2)}, {vr(b+4*k+2*h2,2)}, {vr(b+4*(k+st)+2*h2,2)}")
        e(f"v_cvt_pk_bf16_f32 v{20+2*z}, v{b}, v{b+1}")
        e(f"v_cvt_pk_bf16_f32 v{21+2*z}, v{b+2}, v{b+3}")
        e(f"s_lshl_b32 s{S_T0}, s{S_J}, 1")
        e(f"s_add_u32 s{S_T0}, s{S_T0}, {z}")
        if z == 1:
            e(f"s_cmp_eq_u32 s{S_T0}, 15")
            e("s_cbranch_scc1 L_k3_fin")
        e(f"s_mul_i32 s{S_T1}, s{S_T0}, 11")
        e(f"s_lshr_b32 s{S_T1}, s{S_T1}, 5")
        e(f"s_mul_i32 s{S_T2}, s{S_T1}, 3")
        e(f"s_sub_u32 s{S_T2}, s{S_T0}, s{S_T2}")
        e(f"s_lshl_b32 s{S_T1}, s{S_T1}, 5")
        e(f"s_mul_i32 s{S_T2}, s{S_T2}, {16*1280}")
        e(f"s_add_u32 s69, s{S_OUTB}, s{S_T1}")
        e(f"s_add_u32 s69, s69, s{S_T2}")
        e(f"buffer_store_dwordx2 {vr(20+2*z,2)}, v19, s[{R_OUT}:{R_OUT+3}], s69 offen")
    e.lab("L_k3_fin")
    if STAMPS:
        e("s_waitcnt vmcnt(0)")
        stamp()
    stamp_store(12)
    e.lab("L_k3_end")
    e("s_endpgm")
    return kernel_desc(name, 96, 96)

hdr = ["; generated by dev/gen1.py",
       "; @launch kernel=qattn_kernel grid=(256,1,1) block=(256,1,1) lds=147456",
       "; @launch kernel=oproj_kernel grid=(256,1,1) block=(256,1,1) lds=122880",
       "; @launch kernel=reduce_kernel grid=(256,1,1) block=(256,1,1) lds=0"]
for _ in range(args.empty):
    hdr.append("; @launch kernel=empty_kernel grid=(256,1,1) block=(256,1,1) lds=0")
hdr += ['.amdgcn_target "amdgcn-amd-amdhsa--gfx950"', ".text"]
d1 = gen_k1("qattn_kernel")
d2 = gen_k2("oproj_kernel")
d3 = gen_k3("reduce_kernel")
ds = [d1, d2, d3]
if args.empty:
    kernel_head("empty_kernel"); e("s_endpgm"); ds.append(kernel_desc("empty_kernel", 8, 8, 16))
e.raw(".p2align 8")
e.raw(".fill 8192, 4, 0xBF810000")
out = "\n".join(hdr + e.L) + '\n.section .rodata,"a"\n' + "\n".join(".p2align 6\n" + d for d in ds) + "\n"
sys.stdout.write(out)
```

```python
import sys, math, argparse, struct
ap = argparse.ArgumentParser()
ap.add_argument("--stamps", action="store_true")
ap.add_argument("--clk", action="store_true")
ap.add_argument("--oflag", default="sc1")
ap.add_argument("--oload", default="sc1")
ap.add_argument("--kvflag", default="nt")
ap.add_argument("--woflag", default="")
ap.add_argument("--outflag", default="")
ap.add_argument("--pbf16", type=int, default=1)
ap.add_argument("--norot2", action="store_true")
ap.add_argument("--sleep", type=int, default=1)
args = ap.parse_args()
STAMPS = args.stamps
NAME = "standalone__mha_block_cached__near_ridge_kernel"

WS_O = 0
WS_P = 16 << 20
WS_F1 = 48 << 20
WS_F2 = WS_F1 + 0x10000
WS_E = WS_F1 + 0x20000
WS_ST = 0x8000000
NST = 16

class A:
    def __init__(s): s.L = []; s.vm = []
    def __call__(s, t): s.L.append("    " + t)
    def lab(s, t): s.L.append(t + ":")
    def c(s, t): s.L.append("    ; " + t)
    def raw(s, t): s.L.append(t)
    def vmem(s, t, tag):
        s.L.append("    " + t); s.vm.append(tag)
    def vmwait(s, *tags, extra=""):
        last = max(i for i, t in enumerate(s.vm) if t in tags)
        n = len(s.vm) - 1 - last
        assert n <= 63, n
        s.L.append(f"    s_waitcnt vmcnt({n}){extra}   ; {tags}")
        s.vm = s.vm[last+1:]
    def emit(s, x):
        if isinstance(x, tuple): s.vmem(x[0], x[1])
        else: s(x)
e = A()
def vr(b, n): return f"v[{b}:{b+n-1}]" if n > 1 else f"v{b}"
def ar(b, n): return f"a[{b}:{b+n-1}]" if n > 1 else f"a{b}"

S_X, S_K, S_V, S_WQ, S_WO, S_OUT, S_DBG, S_WS = 4, 6, 8, 10, 12, 14, 16, 18
R_X, R_WQ, R_K, R_V, R_WO, R_OUT, R_WS = 20, 24, 28, 32, 36, 40, 44
S_J, S_I, S_BP, S_H, S_W = 48, 49, 50, 51, 52
S_T0, S_T1, S_T2, S_T3, S_T4 = 53, 54, 55, 56, 57
S_XB, S_WB, S_KX, S_KW, S_KB, S_VB, S_OB, S_LX, S_XK, S_SO = 60, 61, 62, 63, 64, 65, 66, 67, 68, 69
S_RG, S_CG, S_NONCE, S_B, S_JH, S_LW, S_WOB, S_CNT = 3, 58, 59, 4, 5, 6, 7, 8
S_ST = 70
def srd(r, p, nbytes):
    e(f"s_mov_b32 s{r}, s{p}"); e(f"s_mov_b32 s{r+1}, s{p+1}"); e(f"s_mov_b32 s{r+2}, {nbytes}"); e(f"s_mov_b32 s{r+3}, 0x00020000")
def R(r): return f"s[{r}:{r+3}]"
stamp_n = [0]
def stamp(wait=True):
    if not STAMPS: return
    i = stamp_n[0]; stamp_n[0] += 1
    assert i < NST
    e(f"s_mem{'time' if args.clk else 'realtime'} s[{S_ST+2*i}:{S_ST+2*i+1}]")
    if wait: e("s_waitcnt lgkmcnt(0)")

XB = 12288
PITCH = 40960
def bufof(s): return (s + 1) % 4

V_OW, V_OXA, V_OXB, V_OV, V_OK, V_L16 = 10, 11, 12, 13, 14, 15
V_AW, V_AX = 16, 22
FR = [32, 68]
ACC = 104
V_OWO = 176
V_AV = 182
V_A0, V_A1 = 188, 189
V_FL = 190
V_OUT = 191
QF = 212
DUMMY = 255
KF = 0
VF = 40

e.raw(f".globl {NAME}\n.p2align 8\n.type {NAME},@function\n{NAME}:")
stamp(wait=False)
e("s_load_dwordx16 s[4:19], s[0:1], 0")
e("s_cmp_ge_u32 s2, 256")
e("s_cbranch_scc1 L_end")
e("s_getpc_b64 s[58:59]")
e("v_lshlrev_b32 v2, 7, v0")
e.vmem(f"global_load_dword v{DUMMY}, v2, s[58:59]", "code")
e("v_and_b32 v1, 63, v0")
e("v_lshrrev_b32 v2, 6, v0")
e(f"s_and_b32 s{S_J}, s2, 7")
e(f"v_readfirstlane_b32 s{S_W}, v2")
e(f"s_lshr_b32 s{S_T0}, s2, 3")
e(f"s_and_b32 s{S_I}, s{S_T0}, 3")
e(f"s_lshr_b32 s{S_BP}, s{S_T0}, 2")
e(f"s_lshl_b32 s{S_H}, s{S_J}, 2")
e(f"s_add_u32 s{S_H}, s{S_H}, s{S_I}")
e(f"s_lshr_b32 s{S_RG}, s{S_BP}, 1")
e("v_lshrrev_b32 v2, 3, v1")
e("v_and_b32 v3, 7, v1")
e("v_lshrrev_b32 v4, 1, v2")
e("v_lshlrev_b32 v5, 1, v4")
e("v_xor_b32 v5, v5, v3")
e("v_lshlrev_b32 v5, 4, v5")
e("v_lshrrev_b32 v6, 2, v2")
e("v_lshlrev_b32 v6, 3, v6")
e("v_and_b32 v7, 3, v2")
e("v_add_u32 v6, v6, v7")
e("v_mul_u32_u24 v6, 12288, v6")
e(f"v_add_u32 v{V_OW}, v6, v5")
e("v_mul_u32_u24 v6, 384, v2")
e(f"v_add_u32 v{V_OV}, v6, v5")
e("v_mul_u32_u24 v6, 1280, v2")
e("v_xor_b32 v7, v3, v4")
e("v_lshlrev_b32 v8, 4, v7")
e(f"s_and_b32 s{S_T1}, s{S_W}, 1")
e(f"s_lshl_b32 s{S_T2}, s{S_T1}, 6")
e(f"v_xor_b32 v8, s{S_T2}, v8")
e(f"v_add_u32 v{V_OXA}, v6, v8")
e("v_xor_b32 v8, 64, v8")
e(f"v_add_u32 v{V_OXB}, v6, v8")
e(f"s_mul_i32 s{S_XB}, s{S_BP}, {96*1280}")
e(f"s_mul_i32 s{S_T2}, s{S_W}, {24*1280}")
e(f"s_add_u32 s{S_XB}, s{S_XB}, s{S_T2}")
e(f"s_mul_i32 s{S_WB}, s{S_H}, 384")
e(f"s_lshr_b32 s{S_T0}, s{S_W}, 1")
e(f"s_mul_i32 s{S_T2}, s{S_T0}, {16*12288}")
e(f"s_add_u32 s{S_WB}, s{S_WB}, s{S_T2}")
e(f"s_mul_i32 s{S_T2}, s{S_T1}, {4*12288}")
e(f"s_add_u32 s{S_WB}, s{S_WB}, s{S_T2}")
e(f"s_mul_i32 s{S_KX}, s{S_BP}, 5")
e(f"s_lshr_b32 s{S_KX}, s{S_KX}, 2")
if not args.norot2:
    e(f"s_mul_i32 s{S_T2}, s{S_I}, 5")
    e(f"s_lshr_b32 s{S_T2}, s{S_T2}, 1")
    e(f"s_add_u32 s{S_KX}, s{S_KX}, s{S_T2}")
    e(f"s_sub_u32 s{S_T2}, s{S_KX}, 10")
    e(f"s_cmp_ge_u32 s{S_KX}, 10")
    e(f"s_cselect_b32 s{S_KX}, s{S_T2}, s{S_KX}")
e(f"s_lshl_b32 s{S_KX}, s{S_KX}, 7")
e(f"s_mul_i32 s{S_LX}, s{S_W}, 3072")
e(f"s_lshl_b32 s{S_T4}, s{S_W}, 10")
e("s_waitcnt lgkmcnt(0)")
srd(R_X, S_X, 16*48*640*2)
srd(R_WQ, S_WQ, 640*6144*2)

def dma_ops(s):
    buf = bufof(s)
    tag = f"st{s}"
    ops = []
    pre = [f"s_mul_i32 s{S_KW}, s{S_KX}, 6144", f"s_add_u32 s{S_KW}, s{S_KW}, s{S_WB}", f"s_add_u32 s{S_XK}, s{S_KX}, s{S_XB}"]
    ws = [("w", ks, cg) for ks in range(2) for cg in range(3)]
    xs = [("x", a) for a in range(3)]
    seq = [xs[0], ws[0], ws[1], xs[1], ws[2], xs[2], ws[3], ws[4], ws[5]]
    for o in seq:
        if o[0] == "w":
            _, ks, cg = o
            ops.append([f"s_add_u32 m0, s{S_T4}, {buf*PITCH + XB + ks*12288 + cg*4096}",
                        f"s_add_u32 s{S_SO}, s{S_KW}, {32*ks*12288 + cg*128}",
                        (f"buffer_load_dwordx4 v{V_OW}, {R(R_WQ)}, s{S_SO} offen lds", tag)])
        else:
            a = o[1]
            ops.append([f"s_add_u32 m0, s{S_LX}, {buf*PITCH + a*1024}",
                        f"s_add_u32 s{S_SO}, s{S_XK}, {8*a*1280}",
                        (f"buffer_load_dwordx4 v{V_OXB if a == 1 else V_OXA}, {R(R_X)}, s{S_SO} offen lds", tag)])
    ops[0] = pre + ops[0]
    ops[-1] = ops[-1] + [f"s_add_u32 s{S_KX}, s{S_KX}, 128", f"s_cmp_eq_u32 s{S_KX}, 1280", f"s_cselect_b32 s{S_KX}, 0, s{S_KX}"]
    return ops
for s in range(2):
    for g in dma_ops(s):
        for x in g: e.emit(x)
e(f"s_lshl_b32 s{S_T2}, s{S_RG}, 7")
e(f"s_add_u32 s{S_T2}, s{S_T2}, {WS_E}")
e(f"s_load_dword s{S_NONCE}, s[{S_WS}:{S_WS+1}], s{S_T2}")
srd(R_K, S_K, 16*32*48*192*2)
srd(R_V, S_V, 16*32*48*192*2)
srd(R_WO, S_WO, 6144*640*2)
srd(R_OUT, S_OUT, 16*48*640*2)
srd(R_WS, S_WS, 268435456)
e(f"s_lshr_b32 s{S_B}, s{S_W}, 1")
e(f"s_and_b32 s{S_JH}, s{S_W}, 1")
e(f"s_and_b32 s{S_CG}, s{S_BP}, 1")
e(f"s_lshl_b32 s{S_CG}, s{S_CG}, 2")
e(f"s_add_u32 s{S_CG}, s{S_CG}, s{S_I}")
e("v_lshrrev_b32 v2, 4, v1")
e("v_and_b32 v3, 15, v1")
e("v_mul_u32_u24 v4, 384, v3")
e(f"v_lshl_add_u32 v{V_OK}, v2, 3, v4")
e("v_mul_u32_u24 v4, 1280, v3")
e(f"v_lshl_add_u32 v{V_OUT}, v2, 3, v4")
e(f"v_lshlrev_b32 v{V_L16}, 4, v1")
e("v_and_b32 v4, 7, v1")
e(f"v_lshlrev_b32 v{V_FL}, 2, v4")
e("v_lshrrev_b32 v4, 1, v3")
e("v_xor_b32 v4, v4, v2")
e("v_lshlrev_b32 v4, 4, v4")
e("v_lshl_add_u32 v4, v3, 7, v4")
e(f"s_mul_i32 s{S_T2}, s{S_B}, 6144")
e(f"v_add_u32 v{V_AX}, s{S_T2}, v4")
e(f"v_xor_b32 v{V_AX+1}, 64, v{V_AX}")
e(f"v_add_u32 v{V_AX+8}, {2*PITCH}, v{V_AX}")
e(f"v_add_u32 v{V_AX+9}, {2*PITCH}, v{V_AX+1}")
e("v_lshrrev_b32 v4, 2, v1")
e("v_and_b32 v4, 7, v4")
e("v_lshrrev_b32 v5, 5, v1")
e("v_lshlrev_b32 v5, 11, v5")
e("v_lshl_add_u32 v5, v4, 7, v5")
e("v_and_b32 v6, 3, v1")
e("v_lshl_add_u32 v5, v6, 3, v5")
e("v_lshrrev_b32 v4, 1, v4")
e(f"s_mul_i32 s{S_T2}, s{S_JH}, 6")
e(f"s_lshl_b32 s{S_T1}, s{S_B}, 10")
e(f"s_add_u32 s{S_T1}, s{S_T1}, {3*PITCH - XB}")
for t in range(6):
    e(f"s_add_u32 s{S_T3}, s{S_T2}, {t}")
    e(f"s_and_b32 s{S_T0}, s{S_T3}, 3")
    e(f"s_lshr_b32 s{S_T3}, s{S_T3}, 2")
    e(f"s_lshl_b32 s{S_T3}, s{S_T3}, 12")
    e(f"s_add_u32 s{S_T3}, s{S_T3}, {XB}")
    e(f"v_xor_b32 v6, s{S_T0}, v4")
    e(f"v_lshl_add_u32 v6, v6, 5, v5")
    e(f"v_add_u32 v{V_AW+t}, s{S_T3}, v6")
    e(f"v_add_u32 v{V_AW+8+t}, {2*PITCH}, v{V_AW+t}")
    e(f"v_add_u32 v{V_AV+t}, s{S_T1}, v{V_AW+t}")
for s in range(2, 4):
    for g in dma_ops(s):
        for x in g: e.emit(x)
e(f"s_lshl_b32 s{S_T2}, s{S_BP}, 1")
e(f"s_add_u32 s{S_T2}, s{S_T2}, s{S_B}")
e(f"s_lshl_b32 s{S_T2}, s{S_T2}, 5")
e(f"s_add_u32 s{S_T2}, s{S_T2}, s{S_H}")
e(f"s_mul_i32 s{S_KB}, s{S_T2}, 18432")
e(f"s_mul_i32 s{S_T3}, s{S_JH}, 9216")
e(f"s_add_u32 s{S_OB}, s{S_KB}, s{S_T3}")
e(f"s_mul_i32 s{S_T3}, s{S_JH}, {8*384}")
e(f"s_add_u32 s{S_VB}, s{S_KB}, s{S_T3}")
e(f"s_mul_i32 s{S_T3}, s{S_JH}, 192")
e(f"s_add_u32 s{S_KB}, s{S_KB}, s{S_T3}")
e(f"s_mov_b32 s{S_T0}, 0x1999999a")
for n in range(5):
    e(f"v_add_u32 v2, {64*n}, v1")
    e(f"v_mul_hi_u32 v3, v2, s{S_T0}")
    e("v_mul_u32_u24 v4, 10, v3")
    e("v_sub_u32 v4, v2, v4")
    e("v_mul_u32_u24 v3, 1280, v3")
    e(f"v_lshl_add_u32 v{V_OWO+n}, v4, 4, v3")
e("v_lshrrev_b32 v2, 2, v1")
e("v_mul_u32_u24 v2, 160, v2")
e("v_and_b32 v3, 3, v1")
e(f"v_lshl_add_u32 v{V_A0}, v3, 3, v2")
e(f"v_add_u32 v{V_A1}, 61440, v{V_A0}")
e(f"s_mul_i32 s{S_WOB}, s{S_J}, {768*1280}")
e(f"s_mul_i32 s{S_T0}, s{S_CG}, 160")
e(f"s_add_u32 s{S_WOB}, s{S_WOB}, s{S_T0}")
e(f"s_mul_i32 s{S_LW}, s{S_W}, 5120")
e("s_waitcnt lgkmcnt(0)")
e(f"s_mul_i32 s{S_NONCE}, s{S_NONCE}, 1664525")
e(f"s_add_u32 s{S_NONCE}, s{S_NONCE}, 1013904223")

def vdma_ops():
    ops = []
    pre = [f"s_lshl_b32 s{S_T3}, s{S_JH}, 11", f"s_lshl_b32 s{S_T2}, s{S_B}, 10", f"s_add_u32 s{S_T3}, s{S_T3}, s{S_T2}"]
    for kt in range(3):
        for cg in range(3):
            ops.append([f"s_add_u32 m0, s{S_T3}, {3*PITCH + kt*12288 + cg*4096}",
                        f"s_add_u32 s{S_SO}, s{S_VB}, {16*kt*384 + cg*128}",
                        (f"buffer_load_dwordx4 v{V_OV}, {R(R_V)}, s{S_SO} offen {args.kvflag} lds", "v")])
    ops[0] = pre + ops[0]
    return ops
def kload_ops():
    ops = []
    for kt in range(3):
        for u in range(3):
            r = KF + (kt*3+u)*4
            g = []
            if u == 0: g.append(f"s_add_u32 s{S_XK}, s{S_KB}, {kt*6144}")
            g.append((f"buffer_load_dwordx2 {ar(r,2)}, v{V_OK}, {R(R_K)}, s{S_XK} offen offset:{u*64}", "k"))
            g.append((f"buffer_load_dwordx2 {ar(r+2,2)}, v{V_OK}, {R(R_K)}, s{S_XK} offen offset:{u*64+32}", "k"))
            ops.append(g)
    return ops
def wodma_ops(grp):
    ops = []
    for hf in range(2):
        pre = [f"s_mul_i32 s{S_T0}, s{S_CG}, 3", f"s_add_u32 s{S_T0}, s{S_T0}, s{S_W}", f"s_add_u32 s{S_T0}, s{S_T0}, {8*grp+4*hf}",
               f"s_sub_u32 s{S_T1}, s{S_T0}, 24", f"s_cmp_ge_u32 s{S_T0}, 24", f"s_cselect_b32 s{S_T0}, s{S_T1}, s{S_T0}",
               f"s_mul_i32 s{S_T0}, s{S_T0}, 40960", f"s_add_u32 s{S_T0}, s{S_T0}, s{S_WOB}"]
        for n in range(5):
            g = [f"s_add_u32 m0, s{S_LW}, {(8*grp+4*hf)*5120 + n*1024}", "s_nop 0",
                 (f"buffer_load_dwordx4 v{V_OWO+n}, {R(R_WO)}, s{S_T0} offen {args.woflag} lds", f"wo{grp}")]
            if n == 0: g = pre + g
            ops.append(g)
    return ops
def read_ops(s, ks, fs):
    buf = bufof(s)
    aset = 8*(buf//2); boff = (buf % 2)*PITCH
    F = FR[fs]
    def xr(qt): return f"ds_read_b128 {vr(F+24+4*qt,4)}, v{V_AX+aset+ks} offset:{boff+qt*2048}"
    def wr(t, m): return f"ds_read_b64_tr_b16 {vr(F+4*t+2*m,2)}, v{V_AW+aset+t} offset:{boff+ks*12288+m*1024}"
    ops = [xr(0), wr(0,0), wr(0,1), xr(1), xr(2)]
    for t in range(1, 6): ops += [wr(t,0), wr(t,1)]
    return ops
def mfma_ops(fs, first):
    F = FR[fs]; ops = []
    for t in range(6):
        for qt in range(3):
            d = ACC + (t*3+qt)*4
            c = "0" if first else vr(d,4)
            ops.append(f"v_mfma_f32_16x16x32_bf16 {vr(d,4)}, {vr(F+4*t,4)}, {vr(F+24+4*qt,4)}, {c}")
    return ops
def interleave(mf, reads, dmas, first2=4):
    n = len(mf); rq = list(reads); dq = list(dmas)
    for k, m in enumerate(mf):
        e(m)
        for _ in range(2 if k < first2 else 1):
            if rq: e(rq.pop(0))
        if dq and k >= 1:
            per = max(1, math.ceil(len(dq) / max(1, n - 1 - k)))
            for _ in range(per):
                if dq:
                    for x in dq.pop(0): e.emit(x)
    assert not rq and not dq

e.vmwait("st0")
e("s_barrier")
stamp()
for x in read_ops(0, 0, 0): e(x)
for s in range(10):
    e.c(f"--- stage {s} kstep 0")
    e("s_waitcnt lgkmcnt(0)")
    interleave(mfma_ops(0, s == 0), read_ops(s, 1, 1), [])
    if s < 9:
        e.vmwait(f"st{s+1}", extra=" lgkmcnt(0)")
        e("s_barrier")
        if s in (2, 5): stamp()
    else:
        e("s_waitcnt lgkmcnt(0)")
    e.c(f"--- stage {s} kstep 1")
    dm = []
    if s + 4 <= 9: dm = dma_ops(s+4)
    if s == 5: dm = dm + kload_ops()
    if s == 6: dm = vdma_ops()
    if s == 7: dm = wodma_ops(0)
    interleave(mfma_ops(1, False), read_ops(s+1, 0, 0) if s < 9 else [], dm)
stamp()
e("s_nop 7")
for u in range(3):
    for qt in range(3):
        q = QF + (u*3+qt)*4
        for hh in range(2):
            a = ACC + ((2*u+hh)*3+qt)*4
            e(f"v_cvt_pk_bf16_f32 v{q+2*hh}, v{a}, v{a+1}")
            e(f"v_cvt_pk_bf16_f32 v{q+2*hh+1}, v{a+2}, v{a+3}")
e.vmwait("k")
stamp()
SA, SB = 32, 68
for u in range(3):
    for kt in range(3):
        for qt in range(3):
            d = SA + (kt*3+qt)*4
            c = "0" if u == 0 else vr(d,4)
            e(f"v_mfma_f32_16x16x32_bf16 {vr(d,4)}, {ar(KF+(kt*3+u)*4,4)}, {vr(QF+(u*3+qt)*4,4)}, {c}")
e(f"s_mul_i32 s{S_T2}, s{S_W}, 9216")
e(f"s_xor_b32 s{S_T3}, s{S_W}, 1")
e(f"s_mul_i32 s{S_T3}, s{S_T3}, 9216")
e(f"v_add_u32 v3, s{S_T2}, v{V_L16}")
e(f"v_add_u32 v4, s{S_T3}, v{V_L16}")
e("s_nop 4")
for k in range(9):
    e(f"ds_write_b128 v3, {vr(SA+4*k,4)} offset:{PITCH + k*1024}")
e("s_waitcnt lgkmcnt(0)")
e("s_barrier")
for k in range(9):
    e(f"ds_read_b128 {vr(SB+4*k,4)}, v4 offset:{PITCH + k*1024}")
for g in wodma_ops(2):
    for x in g: e.emit(x)
cs = (192 ** -0.5) * math.log2(math.e)
cbits = struct.unpack("<I", struct.pack("<f", cs))[0]
e(f"s_mov_b32 s{S_T2}, {cbits:#x}")
e("s_waitcnt lgkmcnt(0)")
for k in range(18):
    e(f"v_pk_add_f32 {vr(SA+2*k,2)}, {vr(SA+2*k,2)}, {vr(SB+2*k,2)}")
PF = QF
def sreg(kt, qt, r): return SA + (kt*3+qt)*4 + r
M = [2, 3, 4]; T = [5, 6, 7]
for qt in range(3):
    vals = [sreg(kt, qt, r) for kt in range(3) for r in range(4)]
    e(f"v_max3_f32 v{M[qt]}, v{vals[0]}, v{vals[1]}, v{vals[2]}")
    for k in range(3, 11, 2):
        e(f"v_max3_f32 v{M[qt]}, v{M[qt]}, v{vals[k]}, v{vals[k+1]}")
    e(f"v_max_f32 v{M[qt]}, v{M[qt]}, v{vals[11]}")
def xlane(op):
    for sw in ("v_permlane32_swap_b32", "v_permlane16_swap_b32"):
        for qt in range(3): e(f"v_mov_b32 v{T[qt]}, v{M[qt]}")
        e("s_nop 1")
        for qt in range(3): e(f"{sw} v{M[qt]}, v{T[qt]}")
        e("s_nop 1")
        for qt in range(3): e(f"{op} v{M[qt]}, v{M[qt]}, v{T[qt]}")
xlane("v_max_f32")
for qt in range(3): e(f"v_mul_f32 v{M[qt]}, s{S_T2}, v{M[qt]}")
for qt in range(3):
    for kt in range(3):
        for r in range(4):
            x = sreg(kt, qt, r)
            e(f"v_fma_f32 v{x}, v{x}, s{S_T2}, -v{M[qt]}")
for qt in range(3):
    for kt in range(3):
        for r in range(4):
            x = sreg(kt, qt, r)
            e(f"v_exp_f32 v{x}, v{x}")
e.vmwait("v")
e("s_barrier")
for t in range(6):
    for kt in range(3):
        e(f"ds_read_b64_tr_b16 {ar(VF+6*t+2*kt,2)}, v{V_AV+t} offset:{kt*12288}")
for qt in range(3):
    vals = [sreg(kt, qt, r) for kt in range(3) for r in range(4)]
    e(f"v_add_f32 v{M[qt]}, v{vals[0]}, v{vals[1]}")
    for k in range(2, 12): e(f"v_add_f32 v{M[qt]}, v{M[qt]}, v{vals[k]}")
xlane("v_add_f32")
for qt in range(3): e(f"v_rcp_f32 v{M[qt]}, v{M[qt]}")
e("s_nop 0")
for qt in range(3):
    for kt in range(3):
        for r in range(4):
            x = sreg(kt, qt, r)
            e(f"v_mul_f32 v{x}, v{x}, v{M[qt]}")
        x = sreg(kt, qt, 0)
        e(f"v_cvt_pk_bf16_f32 v{PF+6*qt+2*kt}, v{x}, v{x+1}")
        e(f"v_cvt_pk_bf16_f32 v{PF+6*qt+2*kt+1}, v{x+2}, v{x+3}")
e("s_waitcnt lgkmcnt(0)")
e("s_nop 1")
stamp()
for t in range(6):
    for qt in range(3):
        d = ACC + (t*3+qt)*4
        e(f"v_mfma_f32_16x16x32_bf16 {vr(d,4)}, {ar(VF+6*t,4)}, {vr(PF+6*qt,4)}, 0")
for t in range(6):
    for qt in range(3):
        d = ACC + (t*3+qt)*4
        e(f"v_mfma_f32_16x16x16_bf16 {vr(d,4)}, {ar(VF+6*t+4,2)}, {vr(PF+6*qt+4,2)}, {vr(d,4)}")
e("s_nop 7")
OF = 32
for u in range(3):
    e(f"s_add_u32 s{S_SO}, s{S_OB}, {WS_O + u*3072}")
    for qt in range(3):
        q = OF + (u*3+qt)*4
        for hh in range(2):
            a = ACC + ((2*u+hh)*3+qt)*4
            e(f"v_cvt_pk_bf16_f32 v{q+2*hh}, v{a}, v{a+1}")
            e(f"v_cvt_pk_bf16_f32 v{q+2*hh+1}, v{a+2}, v{a+3}")
        e.vmem(f"buffer_store_dwordx4 {vr(q,4)}, v{V_L16}, {R(R_WS)}, s{S_SO} offen offset:{qt*1024} {args.oflag}", "ost")
stamp()
for g in wodma_ops(1):
    for x in g: e.emit(x)
e(f"s_lshl_b32 s{S_T0}, s{S_BP}, 1")
e(f"s_add_u32 s{S_T0}, s{S_T0}, s{S_B}")
e(f"s_lshl_b32 s{S_T0}, s{S_T0}, 3")
e(f"s_add_u32 s{S_T0}, s{S_T0}, s{S_J}")
e(f"s_lshl_b32 s{S_T0}, s{S_T0}, 7")
e(f"s_lshl_b32 s{S_T1}, s{S_I}, 3")
e(f"s_add_u32 s{S_T0}, s{S_T0}, s{S_T1}")
e(f"s_lshl_b32 s{S_T1}, s{S_JH}, 2")
e(f"s_add_u32 s{S_T0}, s{S_T0}, s{S_T1}")
e(f"s_add_u32 s{S_T0}, s{S_T0}, {WS_F1}")
e(f"v_mov_b32 v2, s{S_NONCE}")
e("v_mov_b32 v3, 0")
e("s_mov_b64 exec, 1")
e.vmwait("ost")
e.vmem(f"buffer_store_dword v2, v3, {R(R_WS)}, s{S_T0} offen sc1", "f1")
e("s_mov_b64 exec, -1")
stamp()
S_BG2, S_OB2, S_PB, S_F2 = 9, 10, 11, 12
e(f"s_lshl_b32 s{S_BG2}, s{S_RG}, 2")
e(f"s_add_u32 s{S_BG2}, s{S_BG2}, s{S_W}")
e(f"s_lshl_b32 s{S_T0}, s{S_BG2}, 3")
e(f"s_add_u32 s{S_T0}, s{S_T0}, s{S_J}")
e(f"s_mul_i32 s{S_OB2}, s{S_T0}, {4*18432}")
e(f"s_lshl_b32 s{S_T0}, s{S_T0}, 7")
e(f"s_add_u32 s{S_T0}, s{S_T0}, {WS_F1}")
def poll(lab, soff):
    e(f"s_mov_b32 s{S_CNT}, 0")
    e.lab(lab)
    e(f"buffer_load_dword v4, v{V_FL}, {R(R_WS)}, s{soff} offen sc1")
    e(f"s_add_u32 s{S_CNT}, s{S_CNT}, 1")
    e(f"s_cmp_ge_u32 s{S_CNT}, 100000")
    e(f"s_cbranch_scc1 {lab}_done")
    e("s_waitcnt vmcnt(0)")
    e(f"v_cmp_ne_u32 vcc, s{S_NONCE}, v4")
    e("s_nop 4")
    e(f"s_cbranch_vccz {lab}_done")
    if args.sleep: e(f"s_sleep {args.sleep}")
    e(f"s_branch {lab}")
    e.lab(lab + "_done")
    e("s_waitcnt vmcnt(0)")
    e.vm = []
poll("L_poll1", S_T0)
stamp()
AF = [20, 40]; ACC2 = 64; OFV = 128
def ofr(f): return ar(4*f, 4) if f < 64 else vr(OFV + 4*(f-64), 4)
e(f"s_mul_i32 s{S_T1}, s{S_CG}, {3*3072}")
def oload(u):
    ops = [f"s_add_u32 s{S_SO}, s{S_OB2}, s{S_T1}"]
    for qt in range(3):
        ops.append((f"buffer_load_dwordx4 {ofr(u*3+qt)}, v{V_L16}, {R(R_WS)}, s{S_SO} offen offset:{qt*1024} {args.oload}", f"o{u}"))
    ops += [f"s_add_u32 s{S_T1}, s{S_T1}, 3072", f"s_cmp_eq_u32 s{S_T1}, {24*3072}", f"s_cselect_b32 s{S_T1}, 0, s{S_T1}"]
    return ops
NPRE = 6
for u in range(NPRE):
    for x in oload(u): e.emit(x)
e("s_barrier")
def rd(u, fs):
    ops = []
    for tt in range(5):
        for m in range(2):
            off = u*5120 + m*2560 + tt*32
            a = V_A0
            if off >= 61440: off -= 61440; a = V_A1
            ops.append(f"ds_read_b64_tr_b16 {vr(AF[fs]+4*tt+2*m,2)}, v{a} offset:{off}")
    return ops
for x in rd(0, 0): e(x)
for u in range(24):
    fs = u % 2
    e.vmwait(f"o{u}", extra=" lgkmcnt(0)")
    if u == 0: stamp()
    mf = []
    for tt in range(5):
        for qt in range(3):
            d = ACC2 + (tt*3+qt)*4
            c = "0" if u == 0 else vr(d, 4)
            mf.append(f"v_mfma_f32_16x16x32_bf16 {vr(d,4)}, {vr(AF[fs]+4*tt,4)}, {ofr(u*3+qt)}, {c}")
    dm = []
    if u + NPRE < 24:
        o = oload(u + NPRE)
        dm = [o[0:2], o[2:3], o[3:]]
    interleave(mf, rd(u+1, 1-fs) if u < 23 else [], dm, first2=2)
stamp()
e(f"s_lshl_b32 s{S_T0}, s{S_RG}, 3")
e(f"s_add_u32 s{S_T0}, s{S_T0}, s{S_CG}")
e(f"s_lshl_b32 s{S_T0}, s{S_T0}, 2")
e(f"s_add_u32 s{S_T0}, s{S_T0}, s{S_W}")
e(f"s_lshl_b32 s{S_F2}, s{S_T0}, 7")
e(f"s_add_u32 s{S_F2}, s{S_F2}, {WS_F2}")
if args.pbf16:
    e(f"s_lshl_b32 s{S_PB}, s{S_T0}, 16")
    e(f"s_add_u32 s{S_PB}, s{S_PB}, {WS_P}")
    e(f"s_lshl_b32 s{S_T1}, s{S_J}, 10")
    e(f"s_add_u32 s{S_T1}, s{S_T1}, s{S_PB}")
    for p in range(8):
        q = 20 + 4*p
        for z in range(2):
            a = ACC2 + min(2*p+z, 14)*4
            e(f"v_cvt_pk_bf16_f32 v{q+2*z}, v{a}, v{a+1}")
            e(f"v_cvt_pk_bf16_f32 v{q+2*z+1}, v{a+2}, v{a+3}")
        e(f"s_add_u32 s{S_SO}, s{S_T1}, {p*8192}")
        e.vmem(f"buffer_store_dwordx4 {vr(q,4)}, v{V_L16}, {R(R_WS)}, s{S_SO} offen sc1", "pst")
else:
    e(f"s_lshl_b32 s{S_PB}, s{S_T0}, 17")
    e(f"s_add_u32 s{S_PB}, s{S_PB}, {WS_P}")
    e(f"s_lshl_b32 s{S_T1}, s{S_J}, 11")
    e(f"s_add_u32 s{S_T1}, s{S_T1}, s{S_PB}")
    e("s_nop 3")
    for k in range(15):
        if k % 2 == 0: e(f"s_add_u32 s{S_SO}, s{S_T1}, {(k//2)*16384}")
        e.vmem(f"buffer_store_dwordx4 {vr(ACC2+4*k,4)}, v{V_L16}, {R(R_WS)}, s{S_SO} offen offset:{(k%2)*1024} sc1", "pst")
e(f"s_lshl_b32 s{S_T1}, s{S_J}, 2")
e(f"s_add_u32 s{S_T1}, s{S_T1}, s{S_F2}")
e("s_mov_b64 exec, 1")
e.vmwait("pst")
e.vmem(f"buffer_store_dword v2, v3, {R(R_WS)}, s{S_T1} offen sc1", "f2")
e("s_mov_b64 exec, -1")
stamp()
poll("L_poll2", S_F2)
stamp()
S_OUTB = 13
e(f"s_mul_i32 s{S_OUTB}, s{S_BG2}, {48*1280}")
e(f"s_mul_i32 s{S_T0}, s{S_CG}, 160")
e(f"s_add_u32 s{S_OUTB}, s{S_OUTB}, s{S_T0}")
if args.pbf16:
    e(f"s_lshl_b32 s{S_T1}, s{S_J}, 13")
    e(f"s_add_u32 s{S_T1}, s{S_T1}, s{S_PB}")
    e(f"s_add_u32 s{S_T2}, s{S_T1}, 4096")
    for jj in range(8):
        e.vmem(f"buffer_load_dwordx4 {vr(64+4*jj,4)}, v{V_L16}, {R(R_WS)}, s{S_T1 if jj < 4 else S_T2} offen offset:{(jj%4)*1024} sc1", f"pl{jj}")
    e("s_mov_b32 s14, 0xffff0000")
    for jj in range(8):
        e.vmwait(f"pl{jj}")
        dst = 100 if jj == 0 else 108
        for d in range(4):
            e(f"v_lshlrev_b32 v{dst+2*d}, 16, v{64+4*jj+d}")
            e(f"v_and_b32 v{dst+2*d+1}, s14, v{64+4*jj+d}")
        if jj:
            for d in range(4):
                e(f"v_pk_add_f32 {vr(100+2*d,2)}, {vr(100+2*d,2)}, {vr(108+2*d,2)}")
    res = [100, 104]
else:
    e(f"s_lshl_b32 s{S_T1}, s{S_J}, 14")
    e(f"s_add_u32 s{S_T1}, s{S_T1}, s{S_PB}")
    for jj in range(8):
        if jj % 2 == 0: e(f"s_add_u32 s{S_SO}, s{S_T1}, {jj*2048}")
        for z in range(2):
            e.vmem(f"buffer_load_dwordx4 {vr(128+(z*8+jj)*4,4)}, v{V_L16}, {R(R_WS)}, s{S_SO} offen offset:{(jj%2)*2048+z*1024} sc1", "pl")
    e.vmwait("pl")
    for z in range(2):
        b = 128 + z*32
        for st in (4, 2, 1):
            for k in range(st):
                for h2 in range(2):
                    e(f"v_pk_add_f32 {vr(b+4*k+2*h2,2)}, {vr(b+4*k+2*h2,2)}, {vr(b+4*(k+st)+2*h2,2)}")
    res = [128, 160]
for z in range(2):
    b = res[z]
    e(f"v_cvt_pk_bf16_f32 v{20+2*z}, v{b}, v{b+1}")
    e(f"v_cvt_pk_bf16_f32 v{21+2*z}, v{b+2}, v{b+3}")
    e(f"s_lshl_b32 s{S_T0}, s{S_J}, 1")
    e(f"s_add_u32 s{S_T0}, s{S_T0}, {z}")
    if z == 1:
        e(f"s_cmp_eq_u32 s{S_T0}, 15")
        e("s_cbranch_scc1 L_fin")
    e(f"s_mul_i32 s{S_T1}, s{S_T0}, 11")
    e(f"s_lshr_b32 s{S_T1}, s{S_T1}, 5")
    e(f"s_mul_i32 s{S_T2}, s{S_T1}, 3")
    e(f"s_sub_u32 s{S_T2}, s{S_T0}, s{S_T2}")
    e(f"s_lshl_b32 s{S_T1}, s{S_T1}, 5")
    e(f"s_mul_i32 s{S_T2}, s{S_T2}, {16*1280}")
    e(f"s_add_u32 s{S_SO}, s{S_OUTB}, s{S_T1}")
    e(f"s_add_u32 s{S_SO}, s{S_SO}, s{S_T2}")
    e(f"buffer_store_dwordx2 {vr(20+2*z,2)}, v{V_OUT}, {R(R_OUT)}, s{S_SO} offen {args.outflag}")
e.lab("L_fin")
e(f"s_or_b32 s{S_T0}, s{S_J}, s{S_CG}")
e(f"s_cmp_lg_u32 s{S_T0}, 0")
e("s_cbranch_scc1 L_noep")
e("s_barrier")
e(f"s_cmp_lg_u32 s{S_W}, 0")
e("s_cbranch_scc1 L_noep")
e(f"s_lshl_b32 s{S_T2}, s{S_RG}, 7")
e(f"s_add_u32 s{S_T2}, s{S_T2}, {WS_E}")
e("s_mov_b64 exec, 1")
e(f"buffer_store_dword v2, v3, {R(R_WS)}, s{S_T2} offen sc1")
e("s_mov_b64 exec, -1")
e.lab("L_noep")
if STAMPS:
    e("s_waitcnt vmcnt(0)")
    stamp()
    n = stamp_n[0]
    e(f"s_lshl_b32 s{S_T0}, s2, 2")
    e(f"s_add_u32 s{S_T0}, s{S_T0}, s{S_W}")
    e(f"s_mul_i32 s{S_T0}, s{S_T0}, {NST*8}")
    e(f"s_add_u32 s{S_T0}, s{S_T0}, {WS_ST}")
    e("v_mov_b32 v4, 0")
    for i in range(n):
        e(f"v_mov_b32 v6, s{S_ST+2*i}")
        e(f"v_mov_b32 v7, s{S_ST+2*i+1}")
        e(f"buffer_store_dwordx2 v[6:7], v4, {R(R_WS)}, s{S_T0} offen offset:{8*i}")
        e("s_nop 1")
    sys.stderr.write(f"stamps: {n}\n")
e.lab("L_end")
e("s_endpgm")
e.raw(".p2align 8")
e.raw(".fill 4096, 4, 0xBF810000")
hdr = ["; generated by dev/gen2.py (fused single kernel)",
       "; @launch grid=(256,1,1) block=(256,1,1) lds=163840",
       '.amdgcn_target "amdgcn-amd-amdhsa--gfx950"', ".text"]
desc = f""".amdhsa_kernel {NAME}
  .amdhsa_next_free_vgpr 512
  .amdhsa_next_free_sgpr 102
  .amdhsa_accum_offset 256
  .amdhsa_group_segment_fixed_size 0
  .amdhsa_kernarg_size 64
  .amdhsa_user_sgpr_count 2
  .amdhsa_user_sgpr_kernarg_segment_ptr 1
  .amdhsa_system_sgpr_workgroup_id_x 1
.end_amdhsa_kernel"""
sys.stdout.write("\n".join(hdr + e.L) + '\n.section .rodata,"a"\n.p2align 6\n' + desc + "\n")
```

```python
import re

class A:
    def __init__(s): s.L = []; s.vm = []
    def __call__(s, t): s.L.append("    " + t)
    def lab(s, t): s.L.append(t + ":")
    def c(s, t): s.L.append("    ; " + t)
    def raw(s, t): s.L.append(t)
    def vmem(s, t, tag):
        s.L.append("    " + t); s.vm.append(tag)
    def vmcount(s, *tags):
        last = max(i for i, t in enumerate(s.vm) if t in tags)
        n = len(s.vm) - 1 - last
        assert n <= 63, n
        s.vm = s.vm[last+1:]
        return n
    def vmwait(s, *tags, extra=""):
        n = s.vmcount(*tags)
        s.L.append(f"    s_waitcnt vmcnt({n}){extra}   ; {tags}")
    def emit(s, x):
        if isinstance(x, tuple): s.vmem(x[0], x[1])
        elif isinstance(x, list):
            for y in x: s.emit(y)
        else: s(x)

def vr(b, n): return f"v[{b}:{b+n-1}]" if n > 1 else f"v{b}"
def ar(b, n): return f"a[{b}:{b+n-1}]" if n > 1 else f"a{b}"

_reg = re.compile(r"^-?(?:abs\()?\|?([vas])(?:\[(\d+):(\d+)\]|(\d+))\)?\|?$")
def regs(op):
    op = op.strip()
    if op in ("vcc",): return {("s", 106), ("s", 107)}
    if op == "exec": return {("s", 126), ("s", 127)}
    if op == "m0": return {("s", 124)}
    m = _reg.match(op)
    if not m: return set()
    k = m.group(1)
    if m.group(2) is not None: return {(k, i) for i in range(int(m.group(2)), int(m.group(3))+1)}
    return {(k, int(m.group(4)))}

TRANS = ("v_exp_f32", "v_log_f32", "v_rcp_f32", "v_rsq_f32", "v_sqrt_f32", "v_sin_f32", "v_cos_f32")
class I:
    pass
def parse(line):
    t = line.split(";")[0].strip()
    if not t or t.endswith(":") or t.startswith("."): return None
    parts = t.split(None, 1)
    op = parts[0]
    rest = parts[1] if len(parts) > 1 else ""
    ops = [x.strip() for x in rest.split(",")]
    ops = [(x.split()[0] if x else "") for x in ops]
    i = I(); i.op = op; i.rd = set(); i.wr = set(); i.kind = "other"; i.A = i.B = i.C = set(); i.data = set()
    i.states = 1
    if op == "s_nop": i.states = int(ops[0], 0) + 1
    if op.startswith("v_mfma"):
        i.kind = "mfma"; i.wr = regs(ops[0]); i.A = regs(ops[1]); i.B = regs(ops[2]); i.C = regs(ops[3]); i.rd = i.A | i.B | i.C
        i.passes = 8 if "32x32" in op else 4
    elif op.startswith("ds_read"):
        i.kind = "mem"; i.wr = regs(ops[0]); i.rd = regs(ops[1])
    elif op.startswith("ds_write"):
        i.kind = "mem"; i.rd = regs(ops[0]) | regs(ops[1])
    elif op.startswith("buffer_load") or op.startswith("global_load"):
        i.kind = "mem"; i.vmem = True
        if " lds" in t: i.rd = set().union(*[regs(x) for x in ops]) | {("s", 124)}; i.ldsdma = True
        else: i.wr = regs(ops[0]); i.rd = set().union(*[regs(x) for x in ops[1:]])
    elif op.startswith("buffer_store") or op.startswith("global_store"):
        i.kind = "mem"; i.vmem = True; i.rd = set().union(*[regs(x) for x in ops])
        if "x4" in op or "x3" in op: i.data = regs(ops[0]) if op.startswith("buffer") else regs(ops[1])
    elif op.startswith("v_"):
        i.kind = "valu"
        if op.startswith("v_permlane"):
            i.wr = regs(ops[0]) | regs(ops[1]); i.rd = set(i.wr); i.perm = True
        else:
            i.wr = regs(ops[0]); i.rd = set().union(*[regs(x) for x in ops[1:]]) if len(ops) > 1 else set()
            if op.startswith("v_fmac") : i.rd |= i.wr
    elif op.startswith("s_"):
        i.kind = "salu"
        if not (op.startswith("s_cmp") or op.startswith("s_cbranch") or op in ("s_branch", "s_waitcnt", "s_barrier", "s_nop", "s_sleep", "s_setprio", "s_endpgm")):
            i.wr = regs(ops[0]); i.rd = set().union(*[regs(x) for x in ops[1:]]) if len(ops) > 1 else set()
        else:
            i.rd = set().union(*[regs(x) for x in ops]) if ops else set()
    return i

def need(p, c):
    n = 0
    if p.kind == "mfma":
        big = {4: 8, 8: 12}[p.passes]
        if c.kind == "mfma":
            if p.wr & (c.A | c.B): n = max(n, big)
            if p.wr & c.C and not (p.wr == c.C and p.op == c.op): n = max(n, big)
            if p.wr & c.wr and not (p.wr & c.C): n = max(n, big)
        elif c.kind == "valu":
            if p.wr & (c.rd | c.wr): n = max(n, big)
            if p.C & c.wr: n = max(n, {4: 3, 8: 7}[p.passes])
        elif c.kind == "mem":
            if p.wr & (c.rd | c.wr): n = max(n, big)
    elif p.kind == "valu":
        vw = {r for r in p.wr if r[0] != "s"}; sw = {r for r in p.wr if r[0] == "s"}
        if c.kind == "mfma" and vw & c.rd: n = max(n, 2)
        if getattr(c, "perm", False) and vw & c.rd: n = max(n, 2)
        if c.op in ("v_readfirstlane_b32", "v_readlane_b32") and vw & c.rd: n = max(n, 1)
        if p.op in TRANS and c.kind in ("valu", "mfma") and c.op not in TRANS and vw & c.rd: n = max(n, 1)
        if p.op in TRANS and c.kind == "mem" and vw & c.rd: n = max(n, 1)
        if getattr(p, "perm", False) and c.kind == "valu" and vw & c.rd: n = max(n, 1)
        if sw:
            if c.kind == "valu" and sw & c.rd: n = max(n, 2)
            if c.op.startswith("v_cndmask") and ("s", 106) in sw: n = max(n, 2)
            if getattr(c, "vmem", False) and sw & c.rd: n = max(n, 5)
            if c.kind == "salu" and sw & c.rd: n = max(n, 1)
    elif p.kind == "mem":
        if p.data and (p.data & c.wr): n = max(n, 2)
    elif p.kind == "salu":
        if ("s", 124) in p.wr and getattr(c, "ldsdma", False): n = max(n, 1)
    return n

def hazard_pad(lines, verbose=False):
    out = []; hist = []
    pos = 0; added = 0
    for ln in lines:
        for sub in ln.split("\n"):
            i = parse(sub)
            if i is None:
                out.append(sub); continue
            req = 0
            for (p, ppos) in hist[-24:]:
                n = need(p, i)
                if n:
                    have = pos - ppos
                    req = max(req, n - have)
            if req > 0:
                out.append(f"    s_nop {req-1}")
                pos += req; added += 1
            out.append(sub)
            pos += i.states
            hist.append((i, pos))
    if verbose:
        import sys; sys.stderr.write(f"hazard pads added: {added}\n")
    return out
```

```python
import sys, math, argparse, struct
from asmlib import *
ap = argparse.ArgumentParser()
ap.add_argument("--stamps", action="store_true")
ap.add_argument("--clk", action="store_true")
ap.add_argument("--oflag", default="sc1")
ap.add_argument("--oload", default="sc1")
ap.add_argument("--kvflag", default="nt")
ap.add_argument("--woflag", default="")
ap.add_argument("--outflag", default="")
ap.add_argument("--sleep", type=int, default=1)
ap.add_argument("--npre", type=int, default=6)
ap.add_argument("--prio", type=int, default=0)
ap.add_argument("--lprio", type=int, default=0)
ap.add_argument("--st", default="2,5")
ap.add_argument("--noopf", action="store_true")
ap.add_argument("--wopf", type=int, default=1)
ap.add_argument("--wdep", type=int, default=4)
ap.add_argument("--rotrg", type=int, default=0)
args = ap.parse_args()
STAMPS = args.stamps
NAME = "standalone__mha_block_cached__near_ridge_kernel"
WS_O = 0
WS_P = 16 << 20
WS_F1 = 48 << 20
WS_F2 = WS_F1 + 0x10000
WS_E = WS_F1 + 0x20000
WS_ST = 0x8000000
NST = 16
e = A()

S_X, S_K, S_V, S_WQ, S_WO, S_OUT, S_DBG, S_WS = 4, 6, 8, 10, 12, 14, 16, 18
R_X, R_WQ, R_K, R_V, R_WO, R_OUT, R_WS = 20, 24, 28, 32, 36, 40, 44
S_J, S_I, S_BP, S_H, S_W = 48, 49, 50, 51, 52
S_T0, S_T1, S_T2, S_T3, S_T4 = 53, 54, 55, 56, 57
S_RG, S_CG, S_NONCE = 3, 58, 59
S_A = list(range(60, 70))
S_ST = 70
S_BUD = 17
S_ROT = 16
BUD = 2000000
def srd(r, p, nbytes):
    e(f"s_mov_b32 s{r}, s{p}"); e(f"s_mov_b32 s{r+1}, s{p+1}"); e(f"s_mov_b32 s{r+2}, {nbytes}"); e(f"s_mov_b32 s{r+3}, 0x00020000")
def R(r): return f"s[{r}:{r+3}]"
stamp_n = [0]
def stamp(wait=True):
    if not STAMPS: return
    i = stamp_n[0]
    if i >= NST: return
    stamp_n[0] += 1
    e(f"s_mem{'time' if args.clk else 'realtime'} s[{S_ST+2*i}:{S_ST+2*i+1}]")
    if wait: e("s_waitcnt lgkmcnt(0)")
def stamp_store():
    if not STAMPS: return
    n = stamp_n[0]
    e(f"s_lshl_b32 s{S_T0}, s2, 3")
    e(f"s_add_u32 s{S_T0}, s{S_T0}, s{S_W}")
    e(f"s_mul_i32 s{S_T0}, s{S_T0}, {NST*8}")
    e(f"s_add_u32 s{S_T0}, s{S_T0}, {WS_ST}")
    e("v_mov_b32 v4, 0")
    for i in range(NST):
        k = min(i, n-1)
        e(f"v_mov_b32 v6, s{S_ST+2*k}")
        e(f"v_mov_b32 v7, s{S_ST+2*k+1}")
        e(f"buffer_store_dwordx2 v[6:7], v4, {R(R_WS)}, s{S_T0} offen offset:{8*i}")
        e("s_nop 1")
    sys.stderr.write(f"stamps: {n}\n")
def budget(done):
    e(f"s_add_u32 s{S_BUD}, s{S_BUD}, 1")
    e(f"s_cmp_gt_u32 s{S_BUD}, {BUD}")
    e(f"s_cbranch_scc1 {done}")
def emit_rot2():
    e(f"s_mul_i32 s{S_ROT}, s{S_CG}, 3")
    if args.rotrg:
        e(f"s_mul_i32 s{S_T2}, s{S_RG}, {args.rotrg}")
        e(f"s_add_u32 s{S_ROT}, s{S_ROT}, s{S_T2}")
        e(f"s_sub_u32 s{S_T2}, s{S_ROT}, 24")
        e(f"s_cmp_ge_u32 s{S_ROT}, 24")
        e(f"s_cselect_b32 s{S_ROT}, s{S_T2}, s{S_ROT}")

XB = 12288
PITCH = 40960
SY_FLG = 36864
def bufof(s): return (s + 1) % 4
def wo_lds(u): return (2*PITCH + u*5120) if u < 16 else (PITCH + (u-16)*5120)

e.raw(f".globl {NAME}\n.p2align 8\n.type {NAME},@function\n{NAME}:")
stamp(wait=False)
e("s_load_dwordx16 s[4:19], s[0:1], 0")
e("s_cmp_ge_u32 s2, 256")
e("s_cbranch_scc1 L_end")
e("v_lshrrev_b32 v2, 6, v0")
e("v_and_b32 v1, 63, v0")
e(f"v_readfirstlane_b32 s{S_W}, v2")
e(f"s_and_b32 s{S_J}, s2, 7")
e(f"s_lshr_b32 s{S_T0}, s2, 3")
e(f"s_and_b32 s{S_I}, s{S_T0}, 3")
e(f"s_lshr_b32 s{S_BP}, s{S_T0}, 2")
e(f"s_lshl_b32 s{S_H}, s{S_J}, 2")
e(f"s_add_u32 s{S_H}, s{S_H}, s{S_I}")
e(f"s_lshr_b32 s{S_RG}, s{S_BP}, 1")
e(f"s_and_b32 s{S_CG}, s{S_BP}, 1")
e(f"s_lshl_b32 s{S_CG}, s{S_CG}, 2")
e(f"s_add_u32 s{S_CG}, s{S_CG}, s{S_I}")
e(f"s_cmp_lt_u32 s{S_W}, 4")
e("s_cbranch_scc1 L_compute")

S_L, S_KX, S_KW, S_XK, S_SO, S_LX, S_LW, S_XB, S_WB, S_KVB = S_A
V_OW, V_OXA, V_OXB, V_OV, V_OKA, V_OKB, V_OOB, V_PF, LDUMMY = 10, 11, 12, 13, 14, 15, 16, 17, 18
V_OWO = 20
S_KB2, S_VB2, S_FLB, S_KD, S_VD = 4, 5, 6, 7, 8
if args.lprio: e(f"s_setprio {args.lprio}")
e(f"s_sub_u32 s{S_L}, s{S_W}, 4")
e("v_lshrrev_b32 v2, 3, v1")
e("v_and_b32 v3, 7, v1")
e("v_lshrrev_b32 v4, 1, v2")
e("v_lshlrev_b32 v5, 1, v4")
e("v_xor_b32 v5, v5, v3")
e("v_lshlrev_b32 v5, 4, v5")
e("v_lshrrev_b32 v6, 2, v2")
e("v_lshlrev_b32 v6, 3, v6")
e("v_and_b32 v7, 3, v2")
e("v_add_u32 v6, v6, v7")
e("v_mul_u32_u24 v6, 12288, v6")
e(f"v_add_u32 v{V_OW}, v6, v5")
e("v_mul_u32_u24 v6, 1280, v2")
e("v_xor_b32 v7, v3, v4")
e("v_lshlrev_b32 v8, 4, v7")
e(f"s_and_b32 s{S_T1}, s{S_L}, 1")
e(f"s_lshl_b32 s{S_T2}, s{S_T1}, 6")
e(f"v_xor_b32 v8, s{S_T2}, v8")
e(f"v_add_u32 v{V_OXA}, v6, v8")
e("v_xor_b32 v9, 64, v8")
e(f"v_add_u32 v{V_OXB}, v6, v9")
e(f"s_mul_i32 s{S_XB}, s{S_BP}, {96*1280}")
e(f"s_mul_i32 s{S_T2}, s{S_L}, {24*1280}")
e(f"s_add_u32 s{S_XB}, s{S_XB}, s{S_T2}")
e(f"s_mul_i32 s{S_WB}, s{S_H}, 384")
e(f"s_lshr_b32 s{S_T0}, s{S_L}, 1")
e(f"s_mul_i32 s{S_T2}, s{S_T0}, {16*12288}")
e(f"s_add_u32 s{S_WB}, s{S_WB}, s{S_T2}")
e(f"s_mul_i32 s{S_T2}, s{S_T1}, {4*12288}")
e(f"s_add_u32 s{S_WB}, s{S_WB}, s{S_T2}")
e(f"s_mul_i32 s{S_KX}, s{S_BP}, 5")
e(f"s_lshr_b32 s{S_KX}, s{S_KX}, 2")
e(f"s_mul_i32 s{S_T2}, s{S_I}, 5")
e(f"s_lshr_b32 s{S_T2}, s{S_T2}, 1")
e(f"s_add_u32 s{S_KX}, s{S_KX}, s{S_T2}")
e(f"s_sub_u32 s{S_T2}, s{S_KX}, 10")
e(f"s_cmp_ge_u32 s{S_KX}, 10")
e(f"s_cselect_b32 s{S_KX}, s{S_T2}, s{S_KX}")
e(f"s_lshl_b32 s{S_KX}, s{S_KX}, 7")
e(f"s_mul_i32 s{S_LX}, s{S_L}, 3072")
e(f"s_lshl_b32 s{S_LW}, s{S_L}, 10")
e("s_waitcnt lgkmcnt(0)")
srd(R_X, S_X, 16*48*640*2)
srd(R_WQ, S_WQ, 640*6144*2)
def issue(s):
    buf = bufof(s)
    e(f"s_mul_i32 s{S_KW}, s{S_KX}, 6144"); e(f"s_add_u32 s{S_KW}, s{S_KW}, s{S_WB}"); e(f"s_add_u32 s{S_XK}, s{S_KX}, s{S_XB}")
    ws = [("w", ks, cg) for ks in range(2) for cg in range(3)]
    xs = [("x", a) for a in range(3)]
    for o in [xs[0], ws[0], ws[1], xs[1], ws[2], xs[2], ws[3], ws[4], ws[5]]:
        if o[0] == "w":
            _, ks, cg = o
            e(f"s_add_u32 m0, s{S_LW}, {buf*PITCH + XB + ks*12288 + cg*4096}")
            e(f"s_add_u32 s{S_SO}, s{S_KW}, {32*ks*12288 + cg*128}")
            e(f"buffer_load_dwordx4 v{V_OW}, {R(R_WQ)}, s{S_SO} offen lds")
        else:
            a = o[1]
            e(f"s_add_u32 m0, s{S_LX}, {buf*PITCH + a*1024}")
            e(f"s_add_u32 s{S_SO}, s{S_XK}, {8*a*1280}")
            e(f"buffer_load_dwordx4 v{V_OXB if a == 1 else V_OXA}, {R(R_X)}, s{S_SO} offen lds")
    e(f"s_add_u32 s{S_KX}, s{S_KX}, 128"); e(f"s_cmp_eq_u32 s{S_KX}, 1280"); e(f"s_cselect_b32 s{S_KX}, 0, s{S_KX}")
def flag(n):
    e(f"s_add_u32 m0, s{S_FLB}, {16*n}")
    e("s_mov_b64 exec, 1")
    e(f"buffer_load_dword v{V_OOB}, {R(R_X)}, 0 offen lds")
    e("s_mov_b64 exec, -1")
issue(0)
srd(R_K, S_K, 16*32*48*192*2)
srd(R_V, S_V, 16*32*48*192*2)
e(f"v_mov_b32 v{V_OOB}, 0x7ffffff0")
e(f"s_lshl_b32 s{S_FLB}, s{S_L}, 2")
e(f"s_add_u32 s{S_FLB}, s{S_FLB}, {SY_FLG}")
e("s_barrier")
flag(0)
issue(1); flag(1)
srd(R_WO, S_WO, 6144*640*2)
srd(R_WS, S_WS, 268435456)
e("v_mul_u32_u24 v6, 384, v2")
e(f"v_add_u32 v{V_OV}, v6, v5")
e(f"v_add_u32 v{V_OKA}, v6, v8")
e(f"v_add_u32 v{V_OKB}, v6, v9")
e(f"s_lshl_b32 s{S_T2}, s{S_BP}, 1")
e(f"s_add_u32 s{S_T2}, s{S_T2}, s{S_T0}")
e(f"s_lshl_b32 s{S_T2}, s{S_T2}, 5")
e(f"s_add_u32 s{S_T2}, s{S_T2}, s{S_H}")
e(f"s_mul_i32 s{S_KVB}, s{S_T2}, 18432")
e(f"s_mul_i32 s{S_KD}, s{S_T0}, 18432")
e(f"s_mul_i32 s{S_T3}, s{S_T1}, 3072")
e(f"s_add_u32 s{S_KD}, s{S_KD}, s{S_T3}")
e(f"s_lshl_b32 s{S_VD}, s{S_T1}, 11")
e(f"s_lshl_b32 s{S_T3}, s{S_T0}, 10")
e(f"s_add_u32 s{S_VD}, s{S_VD}, s{S_T3}")
e(f"s_mul_i32 s{S_KB2}, s{S_T1}, {24*384}")
e(f"s_add_u32 s{S_KB2}, s{S_KB2}, s{S_KVB}")
e(f"s_mul_i32 s{S_VB2}, s{S_T1}, {8*384}")
e(f"s_add_u32 s{S_VB2}, s{S_VB2}, s{S_KVB}")
e(f"s_mov_b32 s{S_T0}, 0x1999999a")
for n in range(5):
    e(f"v_add_u32 v2, {64*n}, v1")
    e(f"v_mul_hi_u32 v3, v2, s{S_T0}")
    e("v_mul_u32_u24 v4, 10, v3")
    e("v_sub_u32 v4, v2, v4")
    e("v_mul_u32_u24 v3, 1280, v3")
    e(f"v_lshl_add_u32 v{V_OWO+n}, v4, 4, v3")
e("v_min_u32 v2, 59, v1")
e(f"v_lshlrev_b32 v{V_PF}, 7, v2")
emit_rot2()
issue(2); flag(2)
issue(3); flag(3)
for s in range(4, 10):
    e("s_barrier")
    if s in (4, 9): stamp()
    issue(s); flag(s)
e("s_barrier")
for a in range(3):
    for cg in range(3):
        e(f"s_add_u32 m0, s{S_KD}, {3*PITCH + cg*6144 + a*1024}")
        e(f"s_add_u32 s{S_SO}, s{S_KB2}, {8*a*384 + cg*128}")
        e(f"buffer_load_dwordx4 v{V_OKB if a == 1 else V_OKA}, {R(R_K)}, s{S_SO} offen {args.kvflag} lds")
flag(10)
stamp()
e("s_barrier")
for kt in range(3):
    for cg in range(3):
        e(f"s_add_u32 m0, s{S_VD}, {kt*12288 + cg*4096}")
        e(f"s_add_u32 s{S_SO}, s{S_VB2}, {16*kt*384 + cg*128}")
        e(f"buffer_load_dwordx4 v{V_OV}, {R(R_V)}, s{S_SO} offen {args.kvflag} lds")
flag(11)
stamp()
e(f"s_mul_i32 s{S_WB}, s{S_J}, {768*1280}")
if args.wopf:
    e(f"s_lshr_b32 s{S_T2}, s2, 3"); e(f"s_lshl_b32 s{S_T2}, s{S_T2}, 2"); e(f"s_add_u32 s{S_T2}, s{S_T2}, s{S_L}")
    e(f"s_mul_i32 s{S_T2}, s{S_T2}, 7680"); e(f"s_add_u32 s{S_T2}, s{S_T2}, s{S_WB}")
    e(f"buffer_load_dword v{LDUMMY}, v{V_PF}, {R(R_WO)}, s{S_T2} offen")
e(f"s_mul_i32 s{S_T0}, s{S_CG}, 160")
e(f"s_add_u32 s{S_WB}, s{S_WB}, s{S_T0}")
e(f"s_mul_i32 s{S_LW}, s{S_L}, 5120")
e(f"s_add_u32 s{S_T3}, s{S_ROT}, s{S_L}")
stamp()
e("s_barrier")
for g in range(3):
    if g in (0, 2):
        e("s_barrier")
        stamp()
    for hf in range(2):
        e(f"s_add_u32 s{S_T0}, s{S_T3}, {8*g+4*hf}")
        e(f"s_sub_u32 s{S_T2}, s{S_T0}, 24")
        e(f"s_cmp_ge_u32 s{S_T0}, 24")
        e(f"s_cselect_b32 s{S_T0}, s{S_T2}, s{S_T0}")
        e(f"s_mul_i32 s{S_T0}, s{S_T0}, 40960")
        e(f"s_add_u32 s{S_T0}, s{S_T0}, s{S_WB}")
        for n in range(5):
            e(f"s_add_u32 m0, s{S_LW}, {wo_lds(8*g+4*hf) + n*1024}")
            if args.wdep < 63: e(f"s_waitcnt vmcnt({args.wdep})")
            e(f"buffer_load_dwordx4 v{V_OWO+n}, {R(R_WO)}, s{S_T0} offen {args.woflag} lds")
    flag(12+g)
    stamp()
e("s_waitcnt vmcnt(0)")
stamp()
stamp_store()
e("s_endpgm")

stamp_n[0] = 1 if STAMPS else 0
e.lab("L_compute")
S_B, S_JH, S_OB, S_SO, S_CNT, S_BG2, S_OB2, S_PB, S_F2, S_OUTB = S_A
V_L16, V_FL, V_OUT, V_SR, V_RDY = 10, 11, 12, 14, 15
V_AW, V_AX = 16, 22
FR = [32, 68]
ACC = 104
V_AV, V_AK, V_A0, V_A1, DUMMY = 176, 182, 188, 189, 191
QF = 192
SUMA, ONES, RINV = 228, 240, 244
V_SXW, V_SXR = 250, 251
if args.prio: e(f"s_setprio {args.prio}")
e(f"v_lshlrev_b32 v{V_L16}, 4, v1")
e("v_lshlrev_b32 v2, 2, v1")
e(f"v_add_u32 v2, {SY_FLG}, v2")
e("v_mov_b32 v4, 1")
e("ds_write_b32 v2, v4")
e("s_getpc_b64 s[60:61]")
e.lab("L_pc")
e(f"s_sub_u32 s60, s60, L_pc-{NAME}")
e("s_subb_u32 s61, s61, 0")
e(f"s_lshr_b32 s{S_T0}, s2, 3")
e(f"s_lshl_b32 s{S_T0}, s{S_T0}, 10")
e("v_and_b32 v2, 7, v1")
e("v_lshlrev_b32 v2, 7, v2")
e(f"v_add_u32 v2, s{S_T0}, v2")
e(f"global_load_dword v{DUMMY}, v2, s[60:61]")
e("s_waitcnt lgkmcnt(0)")
e("s_barrier")
e(f"s_lshl_b32 s{S_T2}, s{S_RG}, 7")
e(f"s_add_u32 s{S_T2}, s{S_T2}, {WS_E}")
e(f"s_load_dword s{S_NONCE}, s[{S_WS}:{S_WS+1}], s{S_T2}")
srd(R_OUT, S_OUT, 16*48*640*2)
srd(R_WS, S_WS, 268435456)
e(f"s_mov_b32 s{S_BUD}, 0")
emit_rot2()
e(f"s_lshr_b32 s{S_B}, s{S_W}, 1")
e(f"s_and_b32 s{S_JH}, s{S_W}, 1")
e("v_lshrrev_b32 v2, 4, v1")
e("v_and_b32 v3, 15, v1")
e("v_mul_u32_u24 v4, 1280, v3")
e(f"v_lshl_add_u32 v{V_OUT}, v2, 3, v4")
e("v_and_b32 v4, 7, v1")
e(f"v_lshlrev_b32 v{V_FL}, 2, v4")
e("v_and_b32 v4, 3, v1")
e("v_lshlrev_b32 v5, 2, v4")
e(f"v_add_u32 v{V_SR}, {SY_FLG}, v5")
e(f"s_xor_b32 s{S_T3}, s{S_W}, 1")
e(f"s_mul_i32 s{S_T2}, s{S_W}, 9216")
e(f"s_mul_i32 s{S_T1}, s{S_T3}, 9216")
e(f"v_add_u32 v{V_SXW}, s{S_T2}, v{V_L16}")
e(f"v_add_u32 v{V_SXR}, s{S_T1}, v{V_L16}")
for r in range(4): e(f"v_mov_b32 v{ONES+r}, 0x3f803f80")
e("v_lshrrev_b32 v8, 1, v3")
e("v_xor_b32 v4, v8, v2")
e("v_lshlrev_b32 v4, 4, v4")
e("v_lshl_add_u32 v4, v3, 7, v4")
e(f"s_mul_i32 s{S_T2}, s{S_B}, 6144")
e(f"v_add_u32 v{V_AX}, s{S_T2}, v4")
e(f"v_xor_b32 v{V_AX+1}, 64, v{V_AX}")
e(f"v_add_u32 v{V_AX+8}, {2*PITCH}, v{V_AX}")
e(f"v_add_u32 v{V_AX+9}, {2*PITCH}, v{V_AX+1}")
e("v_lshrrev_b32 v9, 1, v2")
e("v_xor_b32 v9, v9, v8")
e("v_and_b32 v4, 1, v2")
e("v_lshlrev_b32 v4, 3, v4")
e("v_lshl_add_u32 v4, v3, 7, v4")
e(f"s_mul_i32 s{S_T2}, s{S_JH}, 12")
e(f"s_mul_i32 s{S_T1}, s{S_B}, 18432")
e(f"s_add_u32 s{S_T1}, s{S_T1}, {3*PITCH}")
for k in range(6):
    e(f"s_add_u32 s{S_T3}, s{S_T2}, {2*k}")
    e(f"s_and_b32 s{S_T0}, s{S_T3}, 7")
    e(f"s_lshr_b32 s{S_T3}, s{S_T3}, 3")
    e(f"s_mul_i32 s{S_T3}, s{S_T3}, 6144")
    e(f"s_add_u32 s{S_T3}, s{S_T3}, s{S_T1}")
    e(f"v_xor_b32 v6, s{S_T0}, v9")
    e(f"v_lshl_add_u32 v6, v6, 4, v4")
    e(f"v_add_u32 v{V_AK+k}, s{S_T3}, v6")
e("v_lshrrev_b32 v4, 2, v1")
e("v_and_b32 v4, 7, v4")
e("v_lshrrev_b32 v5, 5, v1")
e("v_lshlrev_b32 v5, 11, v5")
e("v_lshl_add_u32 v5, v4, 7, v5")
e("v_and_b32 v6, 3, v1")
e("v_lshl_add_u32 v5, v6, 3, v5")
e("v_lshrrev_b32 v4, 1, v4")
e(f"s_mul_i32 s{S_T2}, s{S_JH}, 6")
e(f"s_lshl_b32 s{S_T1}, s{S_B}, 10")
e(f"s_sub_u32 s{S_T1}, s{S_T1}, {XB}")
for t in range(6):
    e(f"s_add_u32 s{S_T3}, s{S_T2}, {t}")
    e(f"s_and_b32 s{S_T0}, s{S_T3}, 3")
    e(f"s_lshr_b32 s{S_T3}, s{S_T3}, 2")
    e(f"s_lshl_b32 s{S_T3}, s{S_T3}, 12")
    e(f"s_add_u32 s{S_T3}, s{S_T3}, {XB}")
    e(f"v_xor_b32 v6, s{S_T0}, v4")
    e(f"v_lshl_add_u32 v6, v6, 5, v5")
    e(f"v_add_u32 v{V_AW+t}, s{S_T3}, v6")
    e(f"v_add_u32 v{V_AW+8+t}, {2*PITCH}, v{V_AW+t}")
    e(f"v_add_u32 v{V_AV+t}, s{S_T1}, v{V_AW+t}")
e(f"s_lshl_b32 s{S_T2}, s{S_BP}, 1")
e(f"s_add_u32 s{S_T2}, s{S_T2}, s{S_B}")
e(f"s_lshl_b32 s{S_T2}, s{S_T2}, 5")
e(f"s_add_u32 s{S_T2}, s{S_T2}, s{S_H}")
e(f"s_mul_i32 s{S_OB}, s{S_T2}, 18432")
e(f"s_mul_i32 s{S_T3}, s{S_JH}, 9216")
e(f"s_add_u32 s{S_OB}, s{S_OB}, s{S_T3}")
e("v_lshrrev_b32 v2, 2, v1")
e("v_mul_u32_u24 v2, 160, v2")
e("v_and_b32 v3, 3, v1")
e(f"v_lshl_add_u32 v{V_A0}, v3, 3, v2")
e(f"v_add_u32 v{V_A0}, {PITCH}, v{V_A0}")
e(f"v_add_u32 v{V_A1}, 61440, v{V_A0}")
cs = (192 ** -0.5) * math.log2(math.e)
cbits = struct.unpack("<I", struct.pack("<f", cs))[0]
S_SC = S_T4
e(f"s_mov_b32 s{S_SC}, {cbits:#x}")
e("s_waitcnt lgkmcnt(0)")
e(f"s_mul_i32 s{S_NONCE}, s{S_NONCE}, 1664525")
e(f"s_add_u32 s{S_NONCE}, s{S_NONCE}, 1013904223")

slow = []
def fread(n): return f"ds_read_b32 v{V_RDY}, v{V_SR} offset:{16*n}"
def fcmp(): e(f"v_cmp_ne_u32 vcc, 0, v{V_RDY}")
def check(n):
    e(f"s_cbranch_vccnz L_slow{n}")
    e.lab(f"L_cont{n}")
    slow.append(n)
def fwait(n):
    e(f"s_branch L_slow{n}")
    e.lab(f"L_cont{n}")
    slow.append(n)
def read_ops(s, ks, fs):
    buf = bufof(s)
    aset = 8*(buf//2); boff = (buf % 2)*PITCH
    F = FR[fs]
    def xr(qt): return f"ds_read_b128 {vr(F+24+4*qt,4)}, v{V_AX+aset+ks} offset:{boff+qt*2048}"
    def wr(t, m): return f"ds_read_b64_tr_b16 {vr(F+4*t+2*m,2)}, v{V_AW+aset+t} offset:{boff+ks*12288+m*1024}"
    ops = [xr(0), wr(0,0), wr(0,1), xr(1), xr(2)]
    for t in range(1, 6): ops += [wr(t,0), wr(t,1)]
    return ops
def mfma_ops(fs, first):
    F = FR[fs]; ops = []
    for t in range(6):
        for qt in range(3):
            d = ACC + (t*3+qt)*4
            c = "0" if first else vr(d,4)
            ops.append(f"v_mfma_f32_16x16x32_bf16 {vr(d,4)}, {vr(F+4*t,4)}, {vr(F+24+4*qt,4)}, {c}")
    return ops
def interleave(mf, reads, dmas, first2=4):
    n = len(mf); rq = list(reads); dq = list(dmas)
    for k, m in enumerate(mf):
        e(m)
        for _ in range(2 if k < first2 else 1):
            if rq: e(rq.pop(0))
        if dq and k >= 1:
            per = max(1, math.ceil(len(dq) / max(1, n - 1 - k)))
            for _ in range(per):
                if dq: e.emit(dq.pop(0))
    assert not rq and not dq
def merge(mf, fill, per, start=0):
    fq = list(fill)
    for k, m in enumerate(mf):
        e(m)
        if k >= start:
            for _ in range(per):
                if fq: e.emit(fq.pop(0))
    return fq

fwait(0)
stamp()
KF, SA, SB, VF = 32, 68, 104, 32
for x in read_ops(0, 0, 0): e(x)
STS = [int(x) for x in args.st.split(",")]
for s in range(10):
    e.c(f"--- stage {s} kstep 0")
    e("s_waitcnt lgkmcnt(0)")
    interleave(mfma_ops(0, s == 0), read_ops(s, 1, 1) + ([fread(s+1)] if s < 9 else []), [])
    e("s_waitcnt lgkmcnt(0)")
    e.c(f"--- stage {s} kstep 1")
    mf = mfma_ops(1, False)
    if s < 9: fcmp()
    e(mf[0])
    if s <= 8: e("s_barrier") if s != 8 else None
    if s < 9: check(s+1)
    if s in STS: stamp()
    if s < 9:
        interleave(mf[1:], read_ops(s+1, 0, 0), [])
kreads = [f"ds_read_b64 {vr(KF+(kt*3+u)*4+2*ee,2)}, v{V_AK+2*u+ee} offset:{kt*2048}" for u in range(3) for kt in range(3) for ee in range(2)]
def qcvt(u):
    ops = []
    for hh in range(2):
        for qt in range(3):
            q = QF + (u*3+qt)*4
            a = ACC + ((2*u+hh)*3+qt)*4
            ops += [f"v_cvt_pk_bf16_f32 v{q+2*hh}, v{a}, v{a+1}", f"v_cvt_pk_bf16_f32 v{q+2*hh+1}, v{a+2}, v{a+3}"]
    return ops
fill = qcvt(0) + qcvt(1) + qcvt(2)
fill = merge(mf[1:], fill, 2, start=8)
for x in fill[:6]: e(x)
fill = fill[6:]
stamp()
fwait(10)
stamp()
for x in kreads: e(x)
for x in fill: e(x)
e("s_barrier")
def smf(u, kt, qt):
    d = SA + (kt*3+qt)*4
    c = "0" if u == 0 else vr(d,4)
    return f"v_mfma_f32_16x16x32_bf16 {vr(d,4)}, {vr(KF+(kt*3+u)*4,4)}, {vr(QF+(u*3+qt)*4,4)}, {c}"
for u in range(2):
    e(f"s_waitcnt lgkmcnt({12-6*u})")
    for kt in range(3):
        for qt in range(3): e(smf(u, kt, qt))
e("s_waitcnt lgkmcnt(0)")
def swr(kt, qt):
    k = kt*3+qt
    return f"ds_write_b128 v{V_SXW}, {vr(SA+4*k,4)} offset:{PITCH + k*1024}"
for qt in range(3):
    for kt in range(3): e(smf(2, kt, qt))
e("s_nop 1")
for qt in range(3):
    for kt in range(3): e(swr(kt, qt))
e("s_waitcnt lgkmcnt(0)")
e("s_barrier")
stamp()
vreads = [f"ds_read_b64_tr_b16 {vr(VF+6*t+2*kt,2)}, v{V_AV+t} offset:{kt*12288}" for t in range(6) for kt in range(3)]
for qt in range(3):
    for kt in range(3):
        k = kt*3+qt
        e(f"ds_read_b128 {vr(SB+4*k,4)}, v{V_SXR} offset:{PITCH + k*1024}")
def sreg(kt, qt, r): return SA + (kt*3+qt)*4 + r
M = [2, 3, 4]; T = [5, 6, 7]
for qt in range(3):
    e(f"s_waitcnt lgkmcnt({6-3*qt})")
    for kt in range(3):
        k = kt*3+qt
        for h2 in range(2):
            e(f"v_pk_add_f32 {vr(SA+4*k+2*h2,2)}, {vr(SA+4*k+2*h2,2)}, {vr(SB+4*k+2*h2,2)}")
    vals = [sreg(kt, qt, r) for kt in range(3) for r in range(4)]
    e(f"v_max3_f32 v{M[qt]}, v{vals[0]}, v{vals[1]}, v{vals[2]}")
    for k in range(3, 11, 2):
        e(f"v_max3_f32 v{M[qt]}, v{M[qt]}, v{vals[k]}, v{vals[k+1]}")
    e(f"v_max_f32 v{M[qt]}, v{M[qt]}, v{vals[11]}")
for sw in ("v_permlane32_swap_b32", "v_permlane16_swap_b32"):
    for qt in range(3): e(f"v_mov_b32 v{T[qt]}, v{M[qt]}")
    for qt in range(3): e(f"{sw} v{M[qt]}, v{T[qt]}")
    for qt in range(3): e(f"v_max_f32 v{M[qt]}, v{M[qt]}, v{T[qt]}")
for qt in range(3): e(f"v_mul_f32 v{M[qt]}, s{S_SC}, v{M[qt]}")
PF = QF
def Bops(qt):
    ops = []
    for kt in range(3):
        for r in range(4):
            x = sreg(kt, qt, r); ops.append(f"v_fma_f32 v{x}, v{x}, s{S_SC}, -v{M[qt]}")
    for kt in range(3):
        for r in range(4):
            x = sreg(kt, qt, r); ops.append(f"v_exp_f32 v{x}, v{x}")
    for kt in range(3):
        x = sreg(kt, qt, 0)
        ops += [f"v_cvt_pk_bf16_f32 v{PF+6*qt+2*kt}, v{x}, v{x+1}", f"v_cvt_pk_bf16_f32 v{PF+6*qt+2*kt+1}, v{x+2}, v{x+3}"]
    return ops
def SUMops(qt):
    d = SUMA + 4*qt
    return [f"v_mfma_f32_16x16x32_bf16 {vr(d,4)}, {vr(ONES,4)}, {vr(PF+6*qt,4)}, 0",
            f"v_mfma_f32_16x16x16_bf16 {vr(d,4)}, {vr(ONES,2)}, {vr(PF+6*qt+4,2)}, {vr(d,4)}"]
def PVops(qt):
    a = []; b = []
    for t in range(6):
        d = ACC + (t*3+qt)*4
        a.append(f"v_mfma_f32_16x16x32_bf16 {vr(d,4)}, {vr(VF+6*t,4)}, {vr(PF+6*qt,4)}, 0")
        b.append(f"v_mfma_f32_16x16x16_bf16 {vr(d,4)}, {vr(VF+6*t+4,2)}, {vr(PF+6*qt+4,2)}, {vr(d,4)}")
    return a + b
def Eops(qt):
    ops = []
    for u in range(3):
        q = SA + (u*3+qt)*4
        for hh in range(2):
            a = ACC + ((2*u+hh)*3+qt)*4
            for h2 in range(2):
                ops.append(f"v_pk_mul_f32 {vr(a+2*h2,2)}, {vr(a+2*h2,2)}, {vr(RINV+2*qt,2)} op_sel_hi:[1,0]")
        for hh in range(2):
            a = ACC + ((2*u+hh)*3+qt)*4
            ops += [f"v_cvt_pk_bf16_f32 v{q+2*hh}, v{a}, v{a+1}", f"v_cvt_pk_bf16_f32 v{q+2*hh+1}, v{a+2}, v{a+3}"]
        ops.append([f"s_add_u32 s{S_SO}, s{S_OB}, {WS_O + u*3072}",
                    (f"buffer_store_dwordx4 {vr(q,4)}, v{V_L16}, {R(R_WS)}, s{S_SO} offen offset:{qt*1024} {args.oflag}", "ost")])
    return ops
for qt in range(3):
    b = Bops(qt)
    if qt == 0:
        for x in b: e(x)
    else:
        sm = SUMops(qt-1)
        e(sm[0])
        for x in b[:12]: e(x)
        e(sm[1])
        for x in b[12:]: e(x)
sm = SUMops(2)
e(f"v_rcp_f32 v{RINV}, v{SUMA}")
e(f"v_rcp_f32 v{RINV+2}, v{SUMA+4}")
e(sm[0])
stamp()
fwait(11)
for x in vreads: e(x)
e(sm[1])
stamp(wait=False)
e("s_waitcnt lgkmcnt(0)")
pv0 = PVops(0)
for x in pv0[:6]: e(x)
e(f"v_rcp_f32 v{RINV+4}, v{SUMA+8}")
pv1 = PVops(1)
for x in pv1[:3]: e(x)
for x in pv0[6:]: e(x)
for x in pv1[3:6]: e(x)
pv2 = PVops(2)
rest = pv2[:3] + pv1[6:] + pv2[3:6]
f = merge(rest, Eops(0), 2, start=2)
f = merge(pv2[6:], f + Eops(1), 2)
for x in f: e.emit(x)
for x in Eops(2): e.emit(x)
stamp()
e(f"s_lshl_b32 s{S_T0}, s{S_BP}, 1")
e(f"s_add_u32 s{S_T0}, s{S_T0}, s{S_B}")
e(f"s_lshl_b32 s{S_T0}, s{S_T0}, 3")
e(f"s_add_u32 s{S_T0}, s{S_T0}, s{S_J}")
e(f"s_lshl_b32 s{S_T0}, s{S_T0}, 7")
e(f"s_lshl_b32 s{S_T1}, s{S_I}, 3")
e(f"s_add_u32 s{S_T0}, s{S_T0}, s{S_T1}")
e(f"s_lshl_b32 s{S_T1}, s{S_JH}, 2")
e(f"s_add_u32 s{S_T0}, s{S_T0}, s{S_T1}")
e(f"s_add_u32 s{S_T0}, s{S_T0}, {WS_F1}")
e(f"v_mov_b32 v2, s{S_NONCE}")
e("v_mov_b32 v3, 0")
e("v_lshlrev_b32 v5, 7, v1")
e(f"v_lshlrev_b32 v6, 5, v{V_FL}")
e(f"s_add_u32 s{S_T2}, s{S_OB}, {WS_O + 8192}")
e("s_mov_b64 exec, 1")
e.vmwait("ost")
e.vmem(f"buffer_store_dword v2, v3, {R(R_WS)}, s{S_T0} offen {args.oflag}", "f1")
e("s_mov_b64 exec, -1")
if not args.noopf:
    e(f"buffer_load_dword v{DUMMY}, v5, {R(R_WS)}, s{S_OB} offen sc1")
    e(f"buffer_load_dword v{DUMMY}, v6, {R(R_WS)}, s{S_T2} offen sc1")
stamp()
e("s_barrier")
e(f"s_lshl_b32 s{S_BG2}, s{S_RG}, 2")
e(f"s_add_u32 s{S_BG2}, s{S_BG2}, s{S_W}")
e(f"s_lshl_b32 s{S_T0}, s{S_BG2}, 3")
e(f"s_add_u32 s{S_T0}, s{S_T0}, s{S_J}")
e(f"s_mul_i32 s{S_OB2}, s{S_T0}, {4*18432}")
e(f"s_lshl_b32 s{S_T0}, s{S_T0}, 7")
e(f"s_add_u32 s{S_T0}, s{S_T0}, {WS_F1}")
def poll(lab, soff):
    e(f"s_mov_b32 s{S_CNT}, 0")
    e.lab(lab)
    e(f"buffer_load_dword v4, v{V_FL}, {R(R_WS)}, s{soff} offen sc1")
    e(f"s_add_u32 s{S_CNT}, s{S_CNT}, 1")
    e(f"s_cmp_ge_u32 s{S_CNT}, 100000")
    e(f"s_cbranch_scc1 {lab}_done")
    e("s_waitcnt vmcnt(0)")
    e(f"v_cmp_ne_u32 vcc, s{S_NONCE}, v4")
    e(f"s_cbranch_vccz {lab}_done")
    if args.sleep: e(f"s_sleep {args.sleep}")
    e(f"s_branch {lab}")
    e.lab(lab + "_done")
    e("s_waitcnt vmcnt(0)")
    e.vm = []
AF = [16, 36]; ACC2 = 56
def rd(u, fs):
    ops = []
    for tt in range(5):
        for m in range(2):
            off = wo_lds(u) - PITCH + m*2560 + tt*32
            a = V_A0
            if off >= 61440: off -= 61440; a = V_A1
            ops.append(f"ds_read_b64_tr_b16 {vr(AF[fs]+4*tt+2*m,2)}, v{a} offset:{off}")
    return ops
fwait(12)
for x in rd(0, 0): e(x)
poll("L_poll1", S_T0)
stamp()
def ofr(u, qt):
    k = u % 10
    b = 116 + 12*k if k < 5 else 192 + 12*(k-5)
    return vr(b + 4*qt, 4)
e(f"s_mul_i32 s{S_T1}, s{S_ROT}, 3072")
def oload(u):
    ops = [f"s_add_u32 s{S_SO}, s{S_OB2}, s{S_T1}"]
    for qt in range(3):
        ops.append((f"buffer_load_dwordx4 {ofr(u,qt)}, v{V_L16}, {R(R_WS)}, s{S_SO} offen offset:{qt*1024} {args.oload}", f"o{u}"))
    ops += [f"s_add_u32 s{S_T1}, s{S_T1}, 3072", f"s_cmp_eq_u32 s{S_T1}, {24*3072}", f"s_cselect_b32 s{S_T1}, 0, s{S_T1}"]
    return ops
NPRE = args.npre
assert NPRE <= 9
for u in range(NPRE): e.emit(oload(u))
for u in range(24):
    fs = u % 2
    e.vmwait(f"o{u}", extra=" lgkmcnt(0)")
    if u == 0: stamp()
    mf = []
    for tt in range(5):
        for qt in range(3):
            d = ACC2 + (tt*3+qt)*4
            c = "0" if u == 0 else vr(d, 4)
            mf.append(f"v_mfma_f32_16x16x32_bf16 {vr(d,4)}, {vr(AF[fs]+4*tt,4)}, {ofr(u,qt)}, {c}")
    dm = []
    if u + NPRE < 24:
        o = oload(u + NPRE)
        dm = [o[0:2], o[2:3], o[3:]]
    rq = rd(u+1, 1-fs) if u < 23 else []
    if u in (6, 14): rq = rq + [fread(13 if u == 6 else 14)]
    if u in (7, 15):
        fcmp(); e(mf[0]); check(13 if u == 7 else 14); mf = mf[1:]
    interleave(mf, rq, dm, first2=2)
stamp()
e(f"s_lshl_b32 s{S_T0}, s{S_RG}, 3")
e(f"s_add_u32 s{S_T0}, s{S_T0}, s{S_CG}")
e(f"s_lshl_b32 s{S_T0}, s{S_T0}, 2")
e(f"s_add_u32 s{S_T0}, s{S_T0}, s{S_W}")
e(f"s_lshl_b32 s{S_F2}, s{S_T0}, 7")
e(f"s_add_u32 s{S_F2}, s{S_F2}, {WS_F2}")
e(f"s_lshl_b32 s{S_PB}, s{S_T0}, 16")
e(f"s_add_u32 s{S_PB}, s{S_PB}, {WS_P}")
e(f"s_lshl_b32 s{S_T1}, s{S_J}, 10")
e(f"s_add_u32 s{S_T1}, s{S_T1}, s{S_PB}")
for p in range(8):
    q = 16 + 4*p
    for z in range(2):
        a = ACC2 + min(2*p+z, 14)*4
        e(f"v_cvt_pk_bf16_f32 v{q+2*z}, v{a}, v{a+1}")
        e(f"v_cvt_pk_bf16_f32 v{q+2*z+1}, v{a+2}, v{a+3}")
    e(f"s_add_u32 s{S_SO}, s{S_T1}, {p*8192}")
    e.vmem(f"buffer_store_dwordx4 {vr(q,4)}, v{V_L16}, {R(R_WS)}, s{S_SO} offen sc1", "pst")
e(f"s_lshl_b32 s{S_T1}, s{S_J}, 2")
e(f"s_add_u32 s{S_T1}, s{S_T1}, s{S_F2}")
e("s_mov_b64 exec, 1")
e.vmwait("pst")
e.vmem(f"buffer_store_dword v2, v3, {R(R_WS)}, s{S_T1} offen sc1", "f2")
e("s_mov_b64 exec, -1")
poll("L_poll2", S_F2)
stamp()
e(f"s_lshl_b32 s{S_T1}, s{S_J}, 13")
e(f"s_add_u32 s{S_T1}, s{S_T1}, s{S_PB}")
e(f"s_add_u32 s{S_T2}, s{S_T1}, 4096")
for jj in range(8):
    e.vmem(f"buffer_load_dwordx4 {vr(64+4*jj,4)}, v{V_L16}, {R(R_WS)}, s{S_T1 if jj < 4 else S_T2} offen offset:{(jj%4)*1024} sc1", f"pl{jj}")
e(f"s_mul_i32 s{S_OUTB}, s{S_BG2}, {48*1280}")
e(f"s_mul_i32 s{S_T0}, s{S_CG}, 160")
e(f"s_add_u32 s{S_OUTB}, s{S_OUTB}, s{S_T0}")
e(f"s_mov_b32 s{S_T4}, 0xffff0000")
for jj in range(8):
    e.vmwait(f"pl{jj}")
    dst = 100 if jj == 0 else 108
    for d in range(4):
        e(f"v_lshlrev_b32 v{dst+2*d}, 16, v{64+4*jj+d}")
        e(f"v_and_b32 v{dst+2*d+1}, s{S_T4}, v{64+4*jj+d}")
    if jj:
        for d in range(4):
            e(f"v_pk_add_f32 {vr(100+2*d,2)}, {vr(100+2*d,2)}, {vr(108+2*d,2)}")
res = [100, 104]
for z in range(2):
    b = res[z]
    e(f"v_cvt_pk_bf16_f32 v{20+2*z}, v{b}, v{b+1}")
    e(f"v_cvt_pk_bf16_f32 v{21+2*z}, v{b+2}, v{b+3}")
    e(f"s_lshl_b32 s{S_T0}, s{S_J}, 1")
    e(f"s_add_u32 s{S_T0}, s{S_T0}, {z}")
    if z == 1:
        e(f"s_cmp_eq_u32 s{S_T0}, 15")
        e("s_cbranch_scc1 L_fin")
    e(f"s_mul_i32 s{S_T1}, s{S_T0}, 11")
    e(f"s_lshr_b32 s{S_T1}, s{S_T1}, 5")
    e(f"s_mul_i32 s{S_T2}, s{S_T1}, 3")
    e(f"s_sub_u32 s{S_T2}, s{S_T0}, s{S_T2}")
    e(f"s_lshl_b32 s{S_T1}, s{S_T1}, 5")
    e(f"s_mul_i32 s{S_T2}, s{S_T2}, {16*1280}")
    e(f"s_add_u32 s{S_SO}, s{S_OUTB}, s{S_T1}")
    e(f"s_add_u32 s{S_SO}, s{S_SO}, s{S_T2}")
    e(f"buffer_store_dwordx2 {vr(20+2*z,2)}, v{V_OUT}, {R(R_OUT)}, s{S_SO} offen {args.outflag}")
e.lab("L_fin")
e(f"s_or_b32 s{S_T0}, s{S_J}, s{S_CG}")
e(f"s_cmp_lg_u32 s{S_T0}, 0")
e("s_cbranch_scc1 L_noep")
e("s_barrier")
e(f"s_cmp_lg_u32 s{S_W}, 0")
e("s_cbranch_scc1 L_noep")
e(f"s_lshl_b32 s{S_T2}, s{S_RG}, 7")
e(f"s_add_u32 s{S_T2}, s{S_T2}, {WS_E}")
e("s_mov_b64 exec, 1")
e(f"buffer_store_dword v2, v3, {R(R_WS)}, s{S_T2} offen sc1")
e("s_mov_b64 exec, -1")
e.lab("L_noep")
if STAMPS:
    e("s_waitcnt vmcnt(0)")
    stamp()
stamp_store()
e.lab("L_end")
e("s_endpgm")
for n in slow:
    e.lab(f"L_slow{n}")
    e(fread(n))
    budget(f"L_cont{n}")
    e("s_waitcnt lgkmcnt(0)")
    fcmp()
    e(f"s_cbranch_vccnz L_slow{n}")
    e(f"s_branch L_cont{n}")
e.raw(".p2align 8")
e.raw(".fill 4096, 4, 0xBF810000")
hdr = ["; generated by dev/gen6.py (fused single kernel, 4 compute + 4 loader waves)",
       "; @launch grid=(256,1,1) block=(512,1,1) lds=163840",
       '.amdgcn_target "amdgcn-amd-amdhsa--gfx950"', ".text"]
desc = f""".amdhsa_kernel {NAME}
  .amdhsa_next_free_vgpr 256
  .amdhsa_next_free_sgpr 102
  .amdhsa_accum_offset 256
  .amdhsa_group_segment_fixed_size 0
  .amdhsa_kernarg_size 64
  .amdhsa_user_sgpr_count 2
  .amdhsa_user_sgpr_kernarg_segment_ptr 1
  .amdhsa_system_sgpr_workgroup_id_x 1
.end_amdhsa_kernel"""
body = hazard_pad(e.L, verbose=True)
sys.stdout.write("\n".join(hdr + body) + '\n.section .rodata,"a"\n.p2align 6\n' + desc + "\n")
```

```python
import sys, math, argparse, struct
from asmlib import *
ap = argparse.ArgumentParser()
ap.add_argument("--stamps", action="store_true")
ap.add_argument("--clk", action="store_true")
ap.add_argument("--oflag", default="sc1")
ap.add_argument("--oload", default="sc1")
ap.add_argument("--kvflag", default="nt")
ap.add_argument("--woflag", default="")
ap.add_argument("--outflag", default="")
ap.add_argument("--sleep", type=int, default=1)
ap.add_argument("--npre", type=int, default=6)
ap.add_argument("--prio", type=int, default=0)
ap.add_argument("--lprio", type=int, default=0)
ap.add_argument("--st", default="2,5")
ap.add_argument("--noopf", action="store_true")
ap.add_argument("--wopf", type=int, default=1)
ap.add_argument("--wdep", type=int, default=4)
ap.add_argument("--rotrg", type=int, default=0)
ap.add_argument("--dbg", action="store_true")
args = ap.parse_args()
STAMPS = args.stamps
NAME = "standalone__mha_block_cached__near_ridge_kernel"
WS_O = 0
WS_P = 16 << 20
WS_F1 = 48 << 20
WS_F2 = WS_F1 + 0x10000
WS_E = WS_F1 + 0x20000
WS_ST = 0x8000000
NST = 16
e = A()

S_X, S_K, S_V, S_WQ, S_WO, S_OUT, S_DBG, S_WS = 4, 6, 8, 10, 12, 14, 16, 18
R_X, R_WQ, R_K, R_V, R_WO, R_OUT, R_WS = 20, 24, 28, 32, 36, 40, 44
S_J, S_I, S_BP, S_H, S_W = 48, 49, 50, 51, 52
S_T0, S_T1, S_T2, S_T3, S_T4 = 53, 54, 55, 56, 57
S_RG, S_CG, S_NONCE = 3, 58, 59
S_A = list(range(60, 70))
S_ST = 70
S_BUD = 17
S_ROT = 16
BUD = 2000000
def srd(r, p, nbytes):
    e(f"s_mov_b32 s{r}, s{p}"); e(f"s_mov_b32 s{r+1}, s{p+1}"); e(f"s_mov_b32 s{r+2}, {nbytes}"); e(f"s_mov_b32 s{r+3}, 0x00020000")
def R(r): return f"s[{r}:{r+3}]"
stamp_n = [0]
def stamp(wait=True):
    if not STAMPS: return
    i = stamp_n[0]
    if i >= NST: return
    stamp_n[0] += 1
    e(f"s_mem{'time' if args.clk else 'realtime'} s[{S_ST+2*i}:{S_ST+2*i+1}]")
    if wait: e("s_waitcnt lgkmcnt(0)")
def stamp_store():
    if not STAMPS: return
    n = stamp_n[0]
    e(f"s_lshl_b32 s{S_T0}, s2, 3")
    e(f"s_add_u32 s{S_T0}, s{S_T0}, s{S_W}")
    e(f"s_mul_i32 s{S_T0}, s{S_T0}, {NST*8}")
    e(f"s_add_u32 s{S_T0}, s{S_T0}, {WS_ST}")
    e("v_mov_b32 v4, 0")
    for i in range(NST):
        k = min(i, n-1)
        e(f"v_mov_b32 v6, s{S_ST+2*k}")
        e(f"v_mov_b32 v7, s{S_ST+2*k+1}")
        e(f"buffer_store_dwordx2 v[6:7], v4, {R(R_WS)}, s{S_T0} offen offset:{8*i}")
        e("s_nop 1")
    sys.stderr.write(f"stamps: {n}\n")
def budget(done):
    e(f"s_add_u32 s{S_BUD}, s{S_BUD}, 1")
    e(f"s_cmp_gt_u32 s{S_BUD}, {BUD}")
    e(f"s_cbranch_scc1 {done}")
def emit_rot2():
    e(f"s_mul_i32 s{S_ROT}, s{S_CG}, 3")
    if args.rotrg:
        e(f"s_mul_i32 s{S_T2}, s{S_RG}, {args.rotrg}")
        e(f"s_add_u32 s{S_ROT}, s{S_ROT}, s{S_T2}")
        e(f"s_sub_u32 s{S_T2}, s{S_ROT}, 24")
        e(f"s_cmp_ge_u32 s{S_ROT}, 24")
        e(f"s_cselect_b32 s{S_ROT}, s{S_T2}, s{S_ROT}")

XB = 12288
PITCH = 40960
SY_FLG = 36864
def bufof(s): return (s + 1) % 4
def wo_lds(u): return (2*PITCH + u*5120) if u < 16 else (PITCH + (u-16)*5120)

e.raw(f".globl {NAME}\n.p2align 8\n.type {NAME},@function\n{NAME}:")
stamp(wait=False)
e("s_load_dwordx16 s[4:19], s[0:1], 0")
e("s_cmp_ge_u32 s2, 256")
e("s_cbranch_scc1 L_end")
e("v_lshrrev_b32 v2, 6, v0")
e("v_and_b32 v1, 63, v0")
e(f"v_readfirstlane_b32 s{S_W}, v2")
e(f"s_and_b32 s{S_J}, s2, 7")
e(f"s_lshr_b32 s{S_T0}, s2, 3")
e(f"s_and_b32 s{S_I}, s{S_T0}, 3")
e(f"s_lshr_b32 s{S_BP}, s{S_T0}, 2")
e(f"s_lshl_b32 s{S_H}, s{S_J}, 2")
e(f"s_add_u32 s{S_H}, s{S_H}, s{S_I}")
e(f"s_lshr_b32 s{S_RG}, s{S_BP}, 1")
e(f"s_and_b32 s{S_CG}, s{S_BP}, 1")
e(f"s_lshl_b32 s{S_CG}, s{S_CG}, 2")
e(f"s_add_u32 s{S_CG}, s{S_CG}, s{S_I}")
e(f"s_cmp_lt_u32 s{S_W}, 4")
e("s_cbranch_scc1 L_compute")

S_L, S_KX, S_KW, S_XK, S_SO, S_LX, S_LW, S_XB, S_WB, S_KVB = S_A
V_OW, V_OXA, V_OXB, V_OV, V_OKA, V_OKB, V_OOB, V_PF, LDUMMY = 10, 11, 12, 13, 14, 15, 16, 17, 18
V_OWO = 20
S_KB2, S_VB2, S_FLB, S_KD, S_VD = 4, 5, 6, 7, 8
if args.lprio: e(f"s_setprio {args.lprio}")
e(f"s_sub_u32 s{S_L}, s{S_W}, 4")
e("v_lshrrev_b32 v2, 3, v1")
e("v_and_b32 v3, 7, v1")
e("v_lshrrev_b32 v4, 1, v2")
e("v_lshlrev_b32 v5, 1, v4")
e("v_xor_b32 v5, v5, v3")
e("v_lshlrev_b32 v5, 4, v5")
e("v_lshrrev_b32 v6, 2, v2")
e("v_lshlrev_b32 v6, 3, v6")
e("v_and_b32 v7, 3, v2")
e("v_add_u32 v6, v6, v7")
e("v_mul_u32_u24 v6, 12288, v6")
e(f"v_add_u32 v{V_OW}, v6, v5")
e("v_mul_u32_u24 v6, 1280, v2")
e("v_xor_b32 v7, v3, v4")
e("v_lshlrev_b32 v8, 4, v7")
e(f"s_and_b32 s{S_T1}, s{S_L}, 1")
e(f"s_lshl_b32 s{S_T2}, s{S_T1}, 6")
e(f"v_xor_b32 v8, s{S_T2}, v8")
e(f"v_add_u32 v{V_OXA}, v6, v8")
e("v_xor_b32 v9, 64, v8")
e(f"v_add_u32 v{V_OXB}, v6, v9")
e(f"s_mul_i32 s{S_XB}, s{S_BP}, {96*1280}")
e(f"s_mul_i32 s{S_T2}, s{S_L}, {24*1280}")
e(f"s_add_u32 s{S_XB}, s{S_XB}, s{S_T2}")
e(f"s_mul_i32 s{S_WB}, s{S_H}, 384")
e(f"s_lshr_b32 s{S_T0}, s{S_L}, 1")
e(f"s_mul_i32 s{S_T2}, s{S_T0}, {16*12288}")
e(f"s_add_u32 s{S_WB}, s{S_WB}, s{S_T2}")
e(f"s_mul_i32 s{S_T2}, s{S_T1}, {4*12288}")
e(f"s_add_u32 s{S_WB}, s{S_WB}, s{S_T2}")
e(f"s_mul_i32 s{S_KX}, s{S_BP}, 5")
e(f"s_lshr_b32 s{S_KX}, s{S_KX}, 2")
e(f"s_mul_i32 s{S_T2}, s{S_I}, 5")
e(f"s_lshr_b32 s{S_T2}, s{S_T2}, 1")
e(f"s_add_u32 s{S_KX}, s{S_KX}, s{S_T2}")
e(f"s_sub_u32 s{S_T2}, s{S_KX}, 10")
e(f"s_cmp_ge_u32 s{S_KX}, 10")
e(f"s_cselect_b32 s{S_KX}, s{S_T2}, s{S_KX}")
e(f"s_lshl_b32 s{S_KX}, s{S_KX}, 7")
e(f"s_mul_i32 s{S_LX}, s{S_L}, 3072")
e(f"s_lshl_b32 s{S_LW}, s{S_L}, 10")
e("s_waitcnt lgkmcnt(0)")
srd(R_X, S_X, 16*48*640*2)
srd(R_WQ, S_WQ, 640*6144*2)
def issue(s):
    buf = bufof(s)
    e(f"s_mul_i32 s{S_KW}, s{S_KX}, 6144"); e(f"s_add_u32 s{S_KW}, s{S_KW}, s{S_WB}"); e(f"s_add_u32 s{S_XK}, s{S_KX}, s{S_XB}")
    ws = [("w", ks, cg) for ks in range(2) for cg in range(3)]
    xs = [("x", a) for a in range(3)]
    for o in [xs[0], ws[0], ws[1], xs[1], ws[2], xs[2], ws[3], ws[4], ws[5]]:
        if o[0] == "w":
            _, ks, cg = o
            e(f"s_add_u32 m0, s{S_LW}, {buf*PITCH + XB + ks*12288 + cg*4096}")
            e(f"s_add_u32 s{S_SO}, s{S_KW}, {32*ks*12288 + cg*128}")
            e(f"buffer_load_dwordx4 v{V_OW}, {R(R_WQ)}, s{S_SO} offen lds")
        else:
            a = o[1]
            e(f"s_add_u32 m0, s{S_LX}, {buf*PITCH + a*1024}")
            e(f"s_add_u32 s{S_SO}, s{S_XK}, {8*a*1280}")
            e(f"buffer_load_dwordx4 v{V_OXB if a == 1 else V_OXA}, {R(R_X)}, s{S_SO} offen lds")
    e(f"s_add_u32 s{S_KX}, s{S_KX}, 128"); e(f"s_cmp_eq_u32 s{S_KX}, 1280"); e(f"s_cselect_b32 s{S_KX}, 0, s{S_KX}")
def flag(n):
    e(f"s_add_u32 m0, s{S_FLB}, {16*n}")
    e("s_mov_b64 exec, 1")
    e(f"buffer_load_dword v{V_OOB}, {R(R_X)}, 0 offen lds")
    e("s_mov_b64 exec, -1")
issue(0)
srd(R_K, S_K, 16*32*48*192*2)
srd(R_V, S_V, 16*32*48*192*2)
e(f"v_mov_b32 v{V_OOB}, 0x7ffffff0")
e(f"s_lshl_b32 s{S_FLB}, s{S_L}, 2")
e(f"s_add_u32 s{S_FLB}, s{S_FLB}, {SY_FLG}")
e("s_barrier")
flag(0)
issue(1); flag(1)
srd(R_WO, S_WO, 6144*640*2)
srd(R_WS, S_WS, 268435456)
e("v_mul_u32_u24 v6, 384, v2")
e(f"v_add_u32 v{V_OV}, v6, v5")
e(f"v_add_u32 v{V_OKA}, v6, v8")
e(f"v_add_u32 v{V_OKB}, v6, v9")
e(f"s_lshl_b32 s{S_T2}, s{S_BP}, 1")
e(f"s_add_u32 s{S_T2}, s{S_T2}, s{S_T0}")
e(f"s_lshl_b32 s{S_T2}, s{S_T2}, 5")
e(f"s_add_u32 s{S_T2}, s{S_T2}, s{S_H}")
e(f"s_mul_i32 s{S_KVB}, s{S_T2}, 18432")
e(f"s_mul_i32 s{S_KD}, s{S_T0}, 18432")
e(f"s_mul_i32 s{S_T3}, s{S_T1}, 3072")
e(f"s_add_u32 s{S_KD}, s{S_KD}, s{S_T3}")
e(f"s_lshl_b32 s{S_VD}, s{S_T1}, 11")
e(f"s_lshl_b32 s{S_T3}, s{S_T0}, 10")
e(f"s_add_u32 s{S_VD}, s{S_VD}, s{S_T3}")
e(f"s_mul_i32 s{S_KB2}, s{S_T1}, {24*384}")
e(f"s_add_u32 s{S_KB2}, s{S_KB2}, s{S_KVB}")
e(f"s_mul_i32 s{S_VB2}, s{S_T1}, {8*384}")
e(f"s_add_u32 s{S_VB2}, s{S_VB2}, s{S_KVB}")
e(f"s_mov_b32 s{S_T0}, 0x1999999a")
for n in range(5):
    e(f"v_add_u32 v2, {64*n}, v1")
    e(f"v_mul_hi_u32 v3, v2, s{S_T0}")
    e("v_mul_u32_u24 v4, 10, v3")
    e("v_sub_u32 v4, v2, v4")
    e("v_mul_u32_u24 v3, 1280, v3")
    e(f"v_lshl_add_u32 v{V_OWO+n}, v4, 4, v3")
e("v_min_u32 v2, 59, v1")
e(f"v_lshlrev_b32 v{V_PF}, 7, v2")
emit_rot2()
issue(2); flag(2)
issue(3); flag(3)
for s in range(4, 10):
    e("s_barrier")
    if s in (4, 9): stamp()
    issue(s); flag(s)
e("s_barrier")
for a in range(3):
    for cg in range(3):
        e(f"s_add_u32 m0, s{S_KD}, {3*PITCH + cg*6144 + a*1024}")
        e(f"s_add_u32 s{S_SO}, s{S_KB2}, {8*a*384 + cg*128}")
        e(f"buffer_load_dwordx4 v{V_OKB if a == 1 else V_OKA}, {R(R_K)}, s{S_SO} offen {args.kvflag} lds")
flag(10)
stamp()
e("s_barrier")
for kt in range(3):
    for cg in range(3):
        e(f"s_add_u32 m0, s{S_VD}, {kt*12288 + cg*4096}")
        e(f"s_add_u32 s{S_SO}, s{S_VB2}, {16*kt*384 + cg*128}")
        e(f"buffer_load_dwordx4 v{V_OV}, {R(R_V)}, s{S_SO} offen {args.kvflag} lds")
flag(11)
stamp()
e(f"s_mul_i32 s{S_WB}, s{S_J}, {768*1280}")
if args.wopf:
    e(f"s_lshr_b32 s{S_T2}, s2, 3"); e(f"s_lshl_b32 s{S_T2}, s{S_T2}, 2"); e(f"s_add_u32 s{S_T2}, s{S_T2}, s{S_L}")
    e(f"s_mul_i32 s{S_T2}, s{S_T2}, 7680"); e(f"s_add_u32 s{S_T2}, s{S_T2}, s{S_WB}")
    e(f"buffer_load_dword v{LDUMMY}, v{V_PF}, {R(R_WO)}, s{S_T2} offen")
e(f"s_mul_i32 s{S_T0}, s{S_CG}, 160")
e(f"s_add_u32 s{S_WB}, s{S_WB}, s{S_T0}")
e(f"s_mul_i32 s{S_LW}, s{S_L}, 5120")
e(f"s_add_u32 s{S_T3}, s{S_ROT}, s{S_L}")
stamp()
e("s_barrier")
for g in range(3):
    if g in (0, 2):
        e("s_barrier")
        stamp()
    for hf in range(2):
        e(f"s_add_u32 s{S_T0}, s{S_T3}, {8*g+4*hf}")
        e(f"s_sub_u32 s{S_T2}, s{S_T0}, 24")
        e(f"s_cmp_ge_u32 s{S_T0}, 24")
        e(f"s_cselect_b32 s{S_T0}, s{S_T2}, s{S_T0}")
        e(f"s_mul_i32 s{S_T0}, s{S_T0}, 40960")
        e(f"s_add_u32 s{S_T0}, s{S_T0}, s{S_WB}")
        for n in range(5):
            e(f"s_add_u32 m0, s{S_LW}, {wo_lds(8*g+4*hf) + n*1024}")
            if args.wdep < 63: e(f"s_waitcnt vmcnt({args.wdep})")
            e(f"buffer_load_dwordx4 v{V_OWO+n}, {R(R_WO)}, s{S_T0} offen {args.woflag} lds")
    flag(12+g)
    stamp()
e("s_waitcnt vmcnt(0)")
stamp()
stamp_store()
e("s_endpgm")

stamp_n[0] = 1 if STAMPS else 0
e.lab("L_compute")
S_B, S_JH, S_OB, S_SO, S_CNT, S_BG2, S_OB2, S_PB, S_F2, S_OUTB = S_A
V_L16, V_FL, V_OUT, V_SR, V_RDY = 10, 11, 12, 14, 15
V_AW, V_AX = 16, 22
FR = [32, 68]
ACC = 104
V_AV, V_AK, V_A0, V_A1, DUMMY = 176, 182, 188, 189, 191
QF = 192
SUMA, ONES, RINV = 228, 240, 244
V_SXW, V_SXR = 250, 251
if args.prio: e(f"s_setprio {args.prio}")
e(f"v_lshlrev_b32 v{V_L16}, 4, v1")
e("v_lshlrev_b32 v2, 2, v1")
e(f"v_add_u32 v2, {SY_FLG}, v2")
e("v_mov_b32 v4, 1")
e("ds_write_b32 v2, v4")
e("s_getpc_b64 s[60:61]")
e.lab("L_pc")
e(f"s_sub_u32 s60, s60, L_pc-{NAME}")
e("s_subb_u32 s61, s61, 0")
e(f"s_lshr_b32 s{S_T0}, s2, 3")
e(f"s_lshl_b32 s{S_T0}, s{S_T0}, 10")
e("v_and_b32 v2, 7, v1")
e("v_lshlrev_b32 v2, 7, v2")
e(f"v_add_u32 v2, s{S_T0}, v2")
e(f"global_load_dword v{DUMMY}, v2, s[60:61]")
e("s_waitcnt lgkmcnt(0)")
e("s_barrier")
e(f"s_lshl_b32 s{S_T2}, s{S_RG}, 7")
e(f"s_add_u32 s{S_T2}, s{S_T2}, {WS_E}")
e(f"s_load_dword s{S_NONCE}, s[{S_WS}:{S_WS+1}], s{S_T2}")
srd(R_OUT, S_OUT, 16*48*640*2)
srd(R_WS, S_WS, 268435456)
srd(R_K, S_DBG, 256)
e(f"s_mov_b32 s{S_BUD}, 0")
emit_rot2()
e(f"s_lshr_b32 s{S_B}, s{S_W}, 1")
e(f"s_and_b32 s{S_JH}, s{S_W}, 1")
e("v_lshrrev_b32 v2, 4, v1")
e("v_and_b32 v3, 15, v1")
e("v_mul_u32_u24 v4, 1280, v3")
e(f"v_lshl_add_u32 v{V_OUT}, v2, 3, v4")
e("v_and_b32 v4, 7, v1")
e(f"v_lshlrev_b32 v{V_FL}, 2, v4")
e("v_and_b32 v4, 3, v1")
e("v_lshlrev_b32 v5, 2, v4")
e(f"v_add_u32 v{V_SR}, {SY_FLG}, v5")
e(f"s_xor_b32 s{S_T3}, s{S_W}, 1")
e(f"s_mul_i32 s{S_T2}, s{S_W}, 9216")
e(f"s_mul_i32 s{S_T1}, s{S_T3}, 9216")
e(f"v_add_u32 v{V_SXW}, s{S_T2}, v{V_L16}")
e(f"v_add_u32 v{V_SXR}, s{S_T1}, v{V_L16}")
for r in range(4): e(f"v_mov_b32 v{ONES+r}, 0x3f803f80")
e("v_lshrrev_b32 v8, 1, v3")
e("v_xor_b32 v4, v8, v2")
e("v_lshlrev_b32 v4, 4, v4")
e("v_lshl_add_u32 v4, v3, 7, v4")
e(f"s_mul_i32 s{S_T2}, s{S_B}, 6144")
e(f"v_add_u32 v{V_AX}, s{S_T2}, v4")
e(f"v_xor_b32 v{V_AX+1}, 64, v{V_AX}")
e(f"v_add_u32 v{V_AX+8}, {2*PITCH}, v{V_AX}")
e(f"v_add_u32 v{V_AX+9}, {2*PITCH}, v{V_AX+1}")
e("v_lshrrev_b32 v9, 1, v2")
e("v_xor_b32 v9, v9, v8")
e("v_and_b32 v4, 1, v2")
e("v_lshlrev_b32 v4, 3, v4")
e("v_lshl_add_u32 v4, v3, 7, v4")
e(f"s_mul_i32 s{S_T2}, s{S_JH}, 12")
e(f"s_mul_i32 s{S_T1}, s{S_B}, 18432")
e(f"s_add_u32 s{S_T1}, s{S_T1}, {3*PITCH}")
for k in range(6):
    e(f"s_add_u32 s{S_T3}, s{S_T2}, {2*k}")
    e(f"s_and_b32 s{S_T0}, s{S_T3}, 7")
    e(f"s_lshr_b32 s{S_T3}, s{S_T3}, 3")
    e(f"s_mul_i32 s{S_T3}, s{S_T3}, 6144")
    e(f"s_add_u32 s{S_T3}, s{S_T3}, s{S_T1}")
    e(f"v_xor_b32 v6, s{S_T0}, v9")
    e(f"v_lshl_add_u32 v6, v6, 4, v4")
    e(f"v_add_u32 v{V_AK+k}, s{S_T3}, v6")
e("v_lshrrev_b32 v4, 2, v1")
e("v_and_b32 v4, 7, v4")
e("v_lshrrev_b32 v5, 5, v1")
e("v_lshlrev_b32 v5, 11, v5")
e("v_lshl_add_u32 v5, v4, 7, v5")
e("v_and_b32 v6, 3, v1")
e("v_lshl_add_u32 v5, v6, 3, v5")
e("v_lshrrev_b32 v4, 1, v4")
e(f"s_mul_i32 s{S_T2}, s{S_JH}, 6")
e(f"s_lshl_b32 s{S_T1}, s{S_B}, 10")
e(f"s_sub_u32 s{S_T1}, s{S_T1}, {XB}")
for t in range(6):
    e(f"s_add_u32 s{S_T3}, s{S_T2}, {t}")
    e(f"s_and_b32 s{S_T0}, s{S_T3}, 3")
    e(f"s_lshr_b32 s{S_T3}, s{S_T3}, 2")
    e(f"s_lshl_b32 s{S_T3}, s{S_T3}, 12")
    e(f"s_add_u32 s{S_T3}, s{S_T3}, {XB}")
    e(f"v_xor_b32 v6, s{S_T0}, v4")
    e(f"v_lshl_add_u32 v6, v6, 5, v5")
    e(f"v_add_u32 v{V_AW+t}, s{S_T3}, v6")
    e(f"v_add_u32 v{V_AW+8+t}, {2*PITCH}, v{V_AW+t}")
    e(f"v_add_u32 v{V_AV+t}, s{S_T1}, v{V_AW+t}")
e(f"s_lshl_b32 s{S_T2}, s{S_BP}, 1")
e(f"s_add_u32 s{S_T2}, s{S_T2}, s{S_B}")
e(f"s_lshl_b32 s{S_T2}, s{S_T2}, 5")
e(f"s_add_u32 s{S_T2}, s{S_T2}, s{S_H}")
e(f"s_mul_i32 s{S_OB}, s{S_T2}, 18432")
e(f"s_mul_i32 s{S_T3}, s{S_JH}, 9216")
e(f"s_add_u32 s{S_OB}, s{S_OB}, s{S_T3}")
e("v_lshrrev_b32 v2, 2, v1")
e("v_mul_u32_u24 v2, 160, v2")
e("v_and_b32 v3, 3, v1")
e(f"v_lshl_add_u32 v{V_A0}, v3, 3, v2")
e(f"v_add_u32 v{V_A0}, {PITCH}, v{V_A0}")
e(f"v_add_u32 v{V_A1}, 61440, v{V_A0}")
cs = (192 ** -0.5) * math.log2(math.e)
cbits = struct.unpack("<I", struct.pack("<f", cs))[0]
S_SC = S_T4
e(f"s_mov_b32 s{S_SC}, {cbits:#x}")
e("s_waitcnt lgkmcnt(0)")
e(f"s_mul_i32 s{S_NONCE}, s{S_NONCE}, 1664525")
e(f"s_add_u32 s{S_NONCE}, s{S_NONCE}, 1013904223")

slow = []
def fread(n): return f"ds_read_b32 v{V_RDY}, v{V_SR} offset:{16*n}"
def fcmp(): e(f"v_cmp_ne_u32 vcc, 0, v{V_RDY}")
def check(n):
    e(f"s_cbranch_vccnz L_slow{n}")
    e.lab(f"L_cont{n}")
    slow.append(n)
def fwait(n):
    e(f"s_branch L_slow{n}")
    e.lab(f"L_cont{n}")
    slow.append(n)
def read_ops(s, ks, fs):
    buf = bufof(s)
    aset = 8*(buf//2); boff = (buf % 2)*PITCH
    F = FR[fs]
    def xr(qt): return f"ds_read_b128 {vr(F+24+4*qt,4)}, v{V_AX+aset+ks} offset:{boff+qt*2048}"
    def wr(t, m): return f"ds_read_b64_tr_b16 {vr(F+4*t+2*m,2)}, v{V_AW+aset+t} offset:{boff+ks*12288+m*1024}"
    ops = [xr(0), wr(0,0), wr(0,1), xr(1), xr(2)]
    for t in range(1, 6): ops += [wr(t,0), wr(t,1)]
    return ops
def mfma_ops(fs, first):
    F = FR[fs]; ops = []
    for t in range(6):
        for qt in range(3):
            d = ACC + (t*3+qt)*4
            c = "0" if first else vr(d,4)
            ops.append(f"v_mfma_f32_16x16x32_bf16 {vr(d,4)}, {vr(F+4*t,4)}, {vr(F+24+4*qt,4)}, {c}")
    return ops
def interleave(mf, reads, dmas, first2=4):
    n = len(mf); rq = list(reads); dq = list(dmas)
    for k, m in enumerate(mf):
        e(m)
        for _ in range(2 if k < first2 else 1):
            if rq: e(rq.pop(0))
        if dq and k >= 1:
            per = max(1, math.ceil(len(dq) / max(1, n - 1 - k)))
            for _ in range(per):
                if dq: e.emit(dq.pop(0))
    assert not rq and not dq
def merge(mf, fill, per, start=0):
    fq = list(fill)
    for k, m in enumerate(mf):
        e(m)
        if k >= start:
            for _ in range(per):
                if fq: e.emit(fq.pop(0))
    return fq

fwait(0)
stamp()
KF, SA, SB, VF = 32, 68, 104, 32
for x in read_ops(0, 0, 0): e(x)
STS = [int(x) for x in args.st.split(",")]
for s in range(10):
    e.c(f"--- stage {s} kstep 0")
    e("s_waitcnt lgkmcnt(0)")
    interleave(mfma_ops(0, s == 0), read_ops(s, 1, 1) + ([fread(s+1)] if s < 9 else []), [])
    e("s_waitcnt lgkmcnt(0)")
    e.c(f"--- stage {s} kstep 1")
    mf = mfma_ops(1, False)
    if s < 9: fcmp()
    e(mf[0])
    if s <= 8: e("s_barrier") if s != 8 else None
    if s < 9: check(s+1)
    if s in STS: stamp()
    if s < 9:
        interleave(mf[1:], read_ops(s+1, 0, 0), [])
kreads = [f"ds_read_b64 {vr(KF+(kt*3+u)*4+2*ee,2)}, v{V_AK+2*u+ee} offset:{kt*2048}" for u in range(3) for kt in range(3) for ee in range(2)]
def qcvt(u):
    ops = []
    for hh in range(2):
        for qt in range(3):
            q = QF + (u*3+qt)*4
            a = ACC + ((2*u+hh)*3+qt)*4
            ops += [f"v_cvt_pk_bf16_f32 v{q+2*hh}, v{a}, v{a+1}", f"v_cvt_pk_bf16_f32 v{q+2*hh+1}, v{a+2}, v{a+3}"]
    return ops
fill = qcvt(0) + qcvt(1) + qcvt(2)
fill = merge(mf[1:], fill, 2, start=8)
for x in fill[:6]: e(x)
fill = fill[6:]
stamp()
fwait(10)
stamp()
for x in kreads: e(x)
for x in fill: e(x)
e("s_barrier")
def smf(u, kt, qt):
    d = SA + (kt*3+qt)*4
    c = "0" if u == 0 else vr(d,4)
    return f"v_mfma_f32_16x16x32_bf16 {vr(d,4)}, {vr(KF+(kt*3+u)*4,4)}, {vr(QF+(u*3+qt)*4,4)}, {c}"
for u in range(2):
    e(f"s_waitcnt lgkmcnt({12-6*u})")
    for kt in range(3):
        for qt in range(3): e(smf(u, kt, qt))
e("s_waitcnt lgkmcnt(0)")
def swr(kt, qt):
    k = kt*3+qt
    return f"ds_write_b128 v{V_SXW}, {vr(SA+4*k,4)} offset:{PITCH + k*1024}"
for qt in range(3):
    for kt in range(3): e(smf(2, kt, qt))
e("s_nop 1")
for qt in range(3):
    for kt in range(3): e(swr(kt, qt))
e("s_waitcnt lgkmcnt(0)")
e("s_barrier")
stamp()
vreads = [f"ds_read_b64_tr_b16 {vr(VF+6*t+2*kt,2)}, v{V_AV+t} offset:{kt*12288}" for t in range(6) for kt in range(3)]
for qt in range(3):
    for kt in range(3):
        k = kt*3+qt
        e(f"ds_read_b128 {vr(SB+4*k,4)}, v{V_SXR} offset:{PITCH + k*1024}")
def sreg(kt, qt, r): return SA + (kt*3+qt)*4 + r
M = [2, 3, 4]; T = [5, 6, 7]
for qt in range(3):
    e(f"s_waitcnt lgkmcnt({6-3*qt})")
    for kt in range(3):
        k = kt*3+qt
        for h2 in range(2):
            e(f"v_pk_add_f32 {vr(SA+4*k+2*h2,2)}, {vr(SA+4*k+2*h2,2)}, {vr(SB+4*k+2*h2,2)}")
    vals = [sreg(kt, qt, r) for kt in range(3) for r in range(4)]
    e(f"v_max3_f32 v{M[qt]}, v{vals[0]}, v{vals[1]}, v{vals[2]}")
    for k in range(3, 11, 2):
        e(f"v_max3_f32 v{M[qt]}, v{M[qt]}, v{vals[k]}, v{vals[k+1]}")
    e(f"v_max_f32 v{M[qt]}, v{M[qt]}, v{vals[11]}")
for sw in ("v_permlane32_swap_b32", "v_permlane16_swap_b32"):
    for qt in range(3): e(f"v_mov_b32 v{T[qt]}, v{M[qt]}")
    for qt in range(3): e(f"{sw} v{M[qt]}, v{T[qt]}")
    for qt in range(3): e(f"v_max_f32 v{M[qt]}, v{M[qt]}, v{T[qt]}")
for qt in range(3): e(f"v_mul_f32 v{M[qt]}, s{S_SC}, v{M[qt]}")
PF = QF
def Bops(qt):
    ops = []
    for kt in range(3):
        for r in range(4):
            x = sreg(kt, qt, r); ops.append(f"v_fma_f32 v{x}, v{x}, s{S_SC}, -v{M[qt]}")
    for kt in range(3):
        for r in range(4):
            x = sreg(kt, qt, r); ops.append(f"v_exp_f32 v{x}, v{x}")
    for kt in range(3):
        x = sreg(kt, qt, 0)
        ops += [f"v_cvt_pk_bf16_f32 v{PF+6*qt+2*kt}, v{x}, v{x+1}", f"v_cvt_pk_bf16_f32 v{PF+6*qt+2*kt+1}, v{x+2}, v{x+3}"]
    return ops
def SUMops(qt):
    d = SUMA + 4*qt
    return [f"v_mfma_f32_16x16x32_bf16 {vr(d,4)}, {vr(ONES,4)}, {vr(PF+6*qt,4)}, 0",
            f"v_mfma_f32_16x16x16_bf16 {vr(d,4)}, {vr(ONES,2)}, {vr(PF+6*qt+4,2)}, {vr(d,4)}"]
def PVops(qt):
    a = []; b = []
    for t in range(6):
        d = ACC + (t*3+qt)*4
        a.append(f"v_mfma_f32_16x16x32_bf16 {vr(d,4)}, {vr(VF+6*t,4)}, {vr(PF+6*qt,4)}, 0")
        b.append(f"v_mfma_f32_16x16x16_bf16 {vr(d,4)}, {vr(VF+6*t+4,2)}, {vr(PF+6*qt+4,2)}, {vr(d,4)}")
    return a + b
def Eops(qt):
    ops = []
    for u in range(3):
        q = SA + (u*3+qt)*4
        for hh in range(2):
            a = ACC + ((2*u+hh)*3+qt)*4
            for h2 in range(2):
                ops.append(f"v_pk_mul_f32 {vr(a+2*h2,2)}, {vr(a+2*h2,2)}, {vr(RINV+2*qt,2)} op_sel_hi:[1,0]")
        for hh in range(2):
            a = ACC + ((2*u+hh)*3+qt)*4
            ops += [f"v_cvt_pk_bf16_f32 v{q+2*hh}, v{a}, v{a+1}", f"v_cvt_pk_bf16_f32 v{q+2*hh+1}, v{a+2}, v{a+3}"]
        ops.append([f"s_add_u32 s{S_SO}, s{S_OB}, {WS_O + u*3072}",
                    (f"buffer_store_dwordx4 {vr(q,4)}, v{V_L16}, {R(R_WS)}, s{S_SO} offen offset:{qt*1024} {args.oflag}", "ost")])
    return ops
for qt in range(3):
    b = Bops(qt)
    if qt == 0:
        for x in b: e(x)
    else:
        sm = SUMops(qt-1)
        e(sm[0])
        for x in b[:12]: e(x)
        e(sm[1])
        for x in b[12:]: e(x)
sm = SUMops(2)
e(f"v_rcp_f32 v{RINV}, v{SUMA}")
e(f"v_rcp_f32 v{RINV+2}, v{SUMA+4}")
e(sm[0])
stamp()
fwait(11)
for x in vreads: e(x)
e(sm[1])
stamp(wait=False)
e("s_waitcnt lgkmcnt(0)")
pv0 = PVops(0)
for x in pv0[:6]: e(x)
e(f"v_rcp_f32 v{RINV+4}, v{SUMA+8}")
pv1 = PVops(1)
for x in pv1[:3]: e(x)
for x in pv0[6:]: e(x)
for x in pv1[3:6]: e(x)
pv2 = PVops(2)
rest = pv2[:3] + pv1[6:] + pv2[3:6]
f = merge(rest, Eops(0), 2, start=2)
f = merge(pv2[6:], f + Eops(1), 2)
for x in f: e.emit(x)
for x in Eops(2): e.emit(x)
stamp()
e(f"s_lshl_b32 s{S_T0}, s{S_BP}, 1")
e(f"s_add_u32 s{S_T0}, s{S_T0}, s{S_B}")
e(f"s_lshl_b32 s{S_T0}, s{S_T0}, 3")
e(f"s_add_u32 s{S_T0}, s{S_T0}, s{S_J}")
e(f"s_lshl_b32 s{S_T0}, s{S_T0}, 7")
e(f"s_lshl_b32 s{S_T1}, s{S_I}, 3")
e(f"s_add_u32 s{S_T0}, s{S_T0}, s{S_T1}")
e(f"s_lshl_b32 s{S_T1}, s{S_JH}, 2")
e(f"s_add_u32 s{S_T0}, s{S_T0}, s{S_T1}")
e(f"s_add_u32 s{S_T0}, s{S_T0}, {WS_F1}")
e(f"v_mov_b32 v2, s{S_NONCE}")
e("v_mov_b32 v3, 0")
e("v_lshlrev_b32 v5, 7, v1")
e(f"v_lshlrev_b32 v6, 5, v{V_FL}")
e(f"s_add_u32 s{S_T2}, s{S_OB}, {WS_O + 8192}")
e("s_mov_b64 exec, 1")
e.vmwait("ost")
e.vmem(f"buffer_store_dword v2, v3, {R(R_WS)}, s{S_T0} offen {args.oflag}", "f1")
e("s_mov_b64 exec, -1")
if not args.noopf:
    e(f"buffer_load_dword v{DUMMY}, v5, {R(R_WS)}, s{S_OB} offen sc1")
    e(f"buffer_load_dword v{DUMMY}, v6, {R(R_WS)}, s{S_T2} offen sc1")
stamp()
e("s_barrier")
e(f"s_lshl_b32 s{S_BG2}, s{S_RG}, 2")
e(f"s_add_u32 s{S_BG2}, s{S_BG2}, s{S_W}")
e(f"s_lshl_b32 s{S_T0}, s{S_BG2}, 3")
e(f"s_add_u32 s{S_T0}, s{S_T0}, s{S_J}")
e(f"s_mul_i32 s{S_OB2}, s{S_T0}, {4*18432}")
e(f"s_lshl_b32 s{S_T0}, s{S_T0}, 7")
e(f"s_add_u32 s{S_T0}, s{S_T0}, {WS_F1}")
def poll(lab, soff):
    e(f"s_mov_b32 s{S_CNT}, 0")
    e.lab(lab)
    e(f"buffer_load_dword v4, v{V_FL}, {R(R_WS)}, s{soff} offen sc1")
    e(f"s_add_u32 s{S_CNT}, s{S_CNT}, 1")
    e(f"s_cmp_ge_u32 s{S_CNT}, 100000")
    e(f"s_cbranch_scc1 {lab}_done")
    e("s_waitcnt vmcnt(0)")
    e(f"v_cmp_ne_u32 vcc, s{S_NONCE}, v4")
    e(f"s_cbranch_vccz {lab}_done")
    if args.sleep: e(f"s_sleep {args.sleep}")
    e(f"s_branch {lab}")
    e.lab(lab + "_done")
    e("s_waitcnt vmcnt(0)")
    e.vm = []
AF = [16, 36]; ACC2 = 56
def rd(u, fs):
    ops = []
    for tt in range(5):
        for m in range(2):
            off = wo_lds(u) - PITCH + m*2560 + tt*32
            a = V_A0
            if off >= 61440: off -= 61440; a = V_A1
            ops.append(f"ds_read_b64_tr_b16 {vr(AF[fs]+4*tt+2*m,2)}, v{a} offset:{off}")
    return ops
fwait(12)
for x in rd(0, 0): e(x)
poll("L_poll1", S_T0)
stamp()
def ofr(u, qt):
    k = u % 10
    b = 116 + 12*k if k < 5 else 192 + 12*(k-5)
    return vr(b + 4*qt, 4)
e(f"s_mul_i32 s{S_T1}, s{S_ROT}, 3072")
def oload(u):
    ops = [f"s_add_u32 s{S_SO}, s{S_OB2}, s{S_T1}"]
    for qt in range(3):
        ops.append((f"buffer_load_dwordx4 {ofr(u,qt)}, v{V_L16}, {R(R_WS)}, s{S_SO} offen offset:{qt*1024} {args.oload}", f"o{u}"))
    ops += [f"s_add_u32 s{S_T1}, s{S_T1}, 3072", f"s_cmp_eq_u32 s{S_T1}, {24*3072}", f"s_cselect_b32 s{S_T1}, 0, s{S_T1}"]
    return ops
NPRE = args.npre
assert NPRE <= 9
for u in range(NPRE): e.emit(oload(u))
for u in range(24):
    fs = u % 2
    e.vmwait(f"o{u}", extra=" lgkmcnt(0)")
    if u == 0: stamp()
    mf = []
    for tt in range(5):
        for qt in range(3):
            d = ACC2 + (tt*3+qt)*4
            c = "0" if u == 0 else vr(d, 4)
            mf.append(f"v_mfma_f32_16x16x32_bf16 {vr(d,4)}, {vr(AF[fs]+4*tt,4)}, {ofr(u,qt)}, {c}")
    dm = []
    if u + NPRE < 24:
        o = oload(u + NPRE)
        dm = [o[0:2], o[2:3], o[3:]]
    rq = rd(u+1, 1-fs) if u < 23 else []
    if u in (6, 14): rq = rq + [fread(13 if u == 6 else 14)]
    if u in (7, 15):
        fcmp(); e(mf[0]); check(13 if u == 7 else 14); mf = mf[1:]
    interleave(mf, rq, dm, first2=2)
stamp()
e(f"s_lshl_b32 s{S_T0}, s{S_RG}, 3")
e(f"s_add_u32 s{S_T0}, s{S_T0}, s{S_CG}")
e(f"s_lshl_b32 s{S_T0}, s{S_T0}, 2")
e(f"s_add_u32 s{S_T0}, s{S_T0}, s{S_W}")
e(f"s_lshl_b32 s{S_F2}, s{S_T0}, 7")
e(f"s_add_u32 s{S_F2}, s{S_F2}, {WS_F2}")
e(f"s_lshl_b32 s{S_PB}, s{S_T0}, 16")
e(f"s_add_u32 s{S_PB}, s{S_PB}, {WS_P}")
e(f"s_lshl_b32 s{S_T1}, s{S_J}, 10")
e(f"s_add_u32 s{S_T1}, s{S_T1}, s{S_PB}")
for p in range(8):
    q = 16 + 4*p
    for z in range(2):
        a = ACC2 + min(2*p+z, 14)*4
        e(f"v_cvt_pk_bf16_f32 v{q+2*z}, v{a}, v{a+1}")
        e(f"v_cvt_pk_bf16_f32 v{q+2*z+1}, v{a+2}, v{a+3}")
    e(f"s_add_u32 s{S_SO}, s{S_T1}, {p*8192}")
    e.vmem(f"buffer_store_dwordx4 {vr(q,4)}, v{V_L16}, {R(R_WS)}, s{S_SO} offen sc1", "pst")
e(f"s_lshl_b32 s{S_T1}, s{S_J}, 2")
e(f"s_add_u32 s{S_T1}, s{S_T1}, s{S_F2}")
e("s_mov_b64 exec, 1")
e.vmwait("pst")
e.vmem(f"buffer_store_dword v2, v3, {R(R_WS)}, s{S_T1} offen sc1", "f2")
e("s_mov_b64 exec, -1")
poll("L_poll2", S_F2)
stamp()
e(f"s_lshl_b32 s{S_T1}, s{S_J}, 13")
e(f"s_add_u32 s{S_T1}, s{S_T1}, s{S_PB}")
e(f"s_add_u32 s{S_T2}, s{S_T1}, 4096")
for jj in range(8):
    e.vmem(f"buffer_load_dwordx4 {vr(64+4*jj,4)}, v{V_L16}, {R(R_WS)}, s{S_T1 if jj < 4 else S_T2} offen offset:{(jj%4)*1024} sc1", f"pl{jj}")
e(f"s_mul_i32 s{S_OUTB}, s{S_BG2}, {48*1280}")
e(f"s_mul_i32 s{S_T0}, s{S_CG}, 160")
e(f"s_add_u32 s{S_OUTB}, s{S_OUTB}, s{S_T0}")
e(f"s_mov_b32 s{S_T4}, 0xffff0000")
for jj in range(8):
    e.vmwait(f"pl{jj}")
    dst = 100 if jj == 0 else 108
    for d in range(4):
        e(f"v_lshlrev_b32 v{dst+2*d}, 16, v{64+4*jj+d}")
        e(f"v_and_b32 v{dst+2*d+1}, s{S_T4}, v{64+4*jj+d}")
    if jj:
        for d in range(4):
            e(f"v_pk_add_f32 {vr(100+2*d,2)}, {vr(100+2*d,2)}, {vr(108+2*d,2)}")
res = [100, 104]
for z in range(2):
    b = res[z]
    e(f"v_cvt_pk_bf16_f32 v{20+2*z}, v{b}, v{b+1}")
    e(f"v_cvt_pk_bf16_f32 v{21+2*z}, v{b+2}, v{b+3}")
    e(f"s_lshl_b32 s{S_T0}, s{S_J}, 1")
    e(f"s_add_u32 s{S_T0}, s{S_T0}, {z}")
    if z == 1:
        e(f"s_cmp_eq_u32 s{S_T0}, 15")
        e("s_cbranch_scc1 L_fin")
    e(f"s_mul_i32 s{S_T1}, s{S_T0}, 11")
    e(f"s_lshr_b32 s{S_T1}, s{S_T1}, 5")
    e(f"s_mul_i32 s{S_T2}, s{S_T1}, 3")
    e(f"s_sub_u32 s{S_T2}, s{S_T0}, s{S_T2}")
    e(f"s_lshl_b32 s{S_T1}, s{S_T1}, 5")
    e(f"s_mul_i32 s{S_T2}, s{S_T2}, {16*1280}")
    e(f"s_add_u32 s{S_SO}, s{S_OUTB}, s{S_T1}")
    e(f"s_add_u32 s{S_SO}, s{S_SO}, s{S_T2}")
    e(f"buffer_store_dwordx2 {vr(20+2*z,2)}, v{V_OUT}, {R(R_OUT)}, s{S_SO} offen {args.outflag}")
e.lab("L_fin")
e(f"s_or_b32 s{S_T0}, s{S_J}, s{S_CG}")
e(f"s_cmp_lg_u32 s{S_T0}, 0")
e("s_cbranch_scc1 L_noep")
e("s_barrier")
e(f"s_cmp_lg_u32 s{S_W}, 0")
e("s_cbranch_scc1 L_noep")
e(f"s_lshl_b32 s{S_T2}, s{S_RG}, 7")
e(f"s_add_u32 s{S_T2}, s{S_T2}, {WS_E}")
e("s_mov_b64 exec, 1")
e(f"buffer_store_dword v2, v3, {R(R_WS)}, s{S_T2} offen sc1")
e("s_mov_b64 exec, -1")
e.lab("L_noep")
if STAMPS:
    e("s_waitcnt vmcnt(0)")
    stamp()
if args.dbg:
    e("s_mov_b64 exec, 1")
    e("v_mov_b32 v4, 0")
    for i in range(stamp_n[0]):
        if i == 0: e(f"s_not_b32 s{S_ST}, s{S_ST}")
        e(f"v_mov_b32 v6, s{S_ST+2*i}")
        e(f"buffer_atomic_umax v6, v4, {R(R_K)}, 0 offen offset:{4*i} sc1")
        e("s_nop 1")
else:
    stamp_store()
e.lab("L_end")
e("s_endpgm")
for n in slow:
    e.lab(f"L_slow{n}")
    e(fread(n))
    budget(f"L_cont{n}")
    e("s_waitcnt lgkmcnt(0)")
    fcmp()
    e(f"s_cbranch_vccnz L_slow{n}")
    e(f"s_branch L_cont{n}")
e.raw(".p2align 8")
e.raw(".fill 4096, 4, 0xBF810000")
hdr = ["; generated by dev/gen6.py (fused single kernel, 4 compute + 4 loader waves)",
       "; @launch grid=(256,1,1) block=(512,1,1) lds=163840",
       '.amdgcn_target "amdgcn-amd-amdhsa--gfx950"', ".text"]
desc = f""".amdhsa_kernel {NAME}
  .amdhsa_next_free_vgpr 256
  .amdhsa_next_free_sgpr 102
  .amdhsa_accum_offset 256
  .amdhsa_group_segment_fixed_size 0
  .amdhsa_kernarg_size 64
  .amdhsa_user_sgpr_count 2
  .amdhsa_user_sgpr_kernarg_segment_ptr 1
  .amdhsa_system_sgpr_workgroup_id_x 1
.end_amdhsa_kernel"""
body = hazard_pad(e.L, verbose=True)
sys.stdout.write("\n".join(hdr + body) + '\n.section .rodata,"a"\n.p2align 6\n' + desc + "\n")
```

```python
import sys, math, argparse, struct
from asmlib import *
ap = argparse.ArgumentParser()
ap.add_argument("--stamps", action="store_true")
ap.add_argument("--clk", action="store_true")
ap.add_argument("--oflag", default="sc1")
ap.add_argument("--oload", default="sc1")
ap.add_argument("--kvflag", default="nt")
ap.add_argument("--woflag", default="")
ap.add_argument("--outflag", default="")
ap.add_argument("--sleep", type=int, default=1)
ap.add_argument("--npre", type=int, default=3)
ap.add_argument("--prio", type=int, default=3)
ap.add_argument("--lprio", type=int, default=0)
ap.add_argument("--st", default="2,5")
ap.add_argument("--noopf", action="store_true")
ap.add_argument("--wopf", type=int, default=0)
ap.add_argument("--wdep", type=int, default=4)
ap.add_argument("--rotrg", type=int, default=6)
ap.add_argument("--dbg", action="store_true")
ap.add_argument("--nolocal", action="store_true")
ap.add_argument("--bshift", type=int, default=0)
ap.add_argument("--smpf", default="0,0,0,0,0,0,0,0,0,0")
ap.add_argument("--smstride", type=int, default=128)
ap.add_argument("--pvov", type=int, default=0)
ap.add_argument("--pretouch", type=int, default=0)
ap.add_argument("--opfearly", action="store_true")
ap.add_argument("--p2nomfma", action="store_true")
ap.add_argument("--p2noload", action="store_true")
ap.add_argument("--p2same", action="store_true")
ap.add_argument("--p2nord", action="store_true")
args = ap.parse_args()
STAMPS = args.stamps
NAME = "standalone__mha_block_cached__near_ridge_kernel"
WS_O = 0
WS_P = 16 << 20
WS_F1 = 48 << 20
WS_F2 = WS_F1 + 0x10000
WS_E = WS_F1 + 0x20000
WS_X = WS_F1 + 0x30000
NSTEP = 0x9E3779B0
WS_ST = 0x8000000
NST = 16
e = A()

S_X, S_K, S_V, S_WQ, S_WO, S_OUT, S_DBG, S_WS = 4, 6, 8, 10, 12, 14, 16, 18
R_X, R_WQ, R_K, R_V, R_WO, R_OUT, R_WS = 20, 24, 28, 32, 36, 40, 44
S_J, S_I, S_BP, S_H, S_W = 48, 49, 50, 51, 52
S_T0, S_T1, S_T2, S_T3, S_T4 = 53, 54, 55, 56, 57
S_RG, S_CG, S_NONCE = 3, 58, 59
S_A = list(range(60, 70))
S_ST = 70
S_BUD = 17
S_ROT = 16
BUD = 2000000
def srd(r, p, nbytes):
    e(f"s_mov_b32 s{r}, s{p}"); e(f"s_mov_b32 s{r+1}, s{p+1}"); e(f"s_mov_b32 s{r+2}, {nbytes}"); e(f"s_mov_b32 s{r+3}, 0x00020000")
def R(r): return f"s[{r}:{r+3}]"
stamp_n = [0]
def stamp(wait=True):
    if not STAMPS: return
    i = stamp_n[0]
    if i >= NST: return
    stamp_n[0] += 1
    e(f"s_mem{'time' if args.clk else 'realtime'} s[{S_ST+2*i}:{S_ST+2*i+1}]")
    if wait: e("s_waitcnt lgkmcnt(0)")
def stamp_store():
    if not STAMPS: return
    n = stamp_n[0]
    e(f"s_lshl_b32 s{S_T0}, s2, 3")
    e(f"s_add_u32 s{S_T0}, s{S_T0}, s{S_W}")
    e(f"s_mul_i32 s{S_T0}, s{S_T0}, {NST*8}")
    e(f"s_add_u32 s{S_T0}, s{S_T0}, {WS_ST}")
    e("v_mov_b32 v4, 0")
    for i in range(NST):
        k = min(i, n-1)
        e(f"v_mov_b32 v6, s{S_ST+2*k}")
        e(f"v_mov_b32 v7, s{S_ST+2*k+1}")
        e(f"buffer_store_dwordx2 v[6:7], v4, {R(R_WS)}, s{S_T0} offen offset:{8*i}")
        e("s_nop 1")
    sys.stderr.write(f"stamps: {n}\n")
def budget(done):
    e(f"s_add_u32 s{S_BUD}, s{S_BUD}, 1")
    e(f"s_cmp_gt_u32 s{S_BUD}, {BUD}")
    e(f"s_cbranch_scc1 {done}")
def emit_rot2():
    e(f"s_mul_i32 s{S_ROT}, s{S_CG}, 3")
    if args.rotrg:
        e(f"s_mul_i32 s{S_T2}, s{S_RG}, {args.rotrg}")
        e(f"s_add_u32 s{S_ROT}, s{S_ROT}, s{S_T2}")
        e(f"s_sub_u32 s{S_T2}, s{S_ROT}, 24")
        e(f"s_cmp_ge_u32 s{S_ROT}, 24")
        e(f"s_cselect_b32 s{S_ROT}, s{S_T2}, s{S_ROT}")

XB = 12288
PITCH = 40960
SY_FLG = 36864
def bufof(s): return (s + 1) % 4
def wo_lds(u): return (2*PITCH + u*5120) if u < 16 else (PITCH + (u-16)*5120)

def epoch_load():
    e(f"s_lshl_b32 s{S_T2}, s{S_RG}, 7")
    e(f"s_add_u32 s{S_T2}, s{S_T2}, {WS_E}")
    e(f"s_load_dword s{S_NONCE}, s[{S_WS}:{S_WS+1}], s{S_T2}")
def xval(dst):
    e(f"s_getreg_b32 s{dst}, hwreg(HW_REG_XCC_ID, 0, 4)")
    e(f"s_and_b32 s{S_T2}, s{S_NONCE}, 0xfffffff0")
    e(f"s_or_b32 s{dst}, s{dst}, s{S_T2}")
e.raw(f".globl {NAME}\n.p2align 8\n.type {NAME},@function\n{NAME}:")
stamp(wait=False)
e("s_load_dwordx16 s[4:19], s[0:1], 0")
e("s_cmp_ge_u32 s2, 256")
e("s_cbranch_scc1 L_end")
e("v_lshrrev_b32 v2, 6, v0")
e("v_and_b32 v1, 63, v0")
e(f"v_readfirstlane_b32 s{S_W}, v2")
e(f"s_and_b32 s{S_J}, s2, 7")
e(f"s_lshr_b32 s{S_T0}, s2, 3")
e(f"s_and_b32 s{S_I}, s{S_T0}, 3")
e(f"s_lshr_b32 s{S_BP}, s{S_T0}, 2")
e(f"s_lshl_b32 s{S_H}, s{S_J}, 2")
e(f"s_add_u32 s{S_H}, s{S_H}, s{S_I}")
e(f"s_lshr_b32 s{S_RG}, s{S_BP}, 1")
e(f"s_and_b32 s{S_CG}, s{S_BP}, 1")
e(f"s_lshl_b32 s{S_CG}, s{S_CG}, 2")
e(f"s_add_u32 s{S_CG}, s{S_CG}, s{S_I}")
e(f"s_cmp_lt_u32 s{S_W}, 4")
e("s_cbranch_scc1 L_compute")

S_L, S_KX, S_KW, S_XK, S_SO, S_LX, S_LW, S_XB, S_WB, S_KVB = S_A
V_OW, V_OXA, V_OXB, V_OV, V_OKA, V_OKB, V_OOB, V_PF, LDUMMY = 10, 11, 12, 13, 14, 15, 16, 17, 18
V_OWO = 20
S_KB2, S_VB2, S_FLB, S_KD, S_VD = 4, 5, 6, 7, 8
if args.lprio: e(f"s_setprio {args.lprio}")
e(f"s_sub_u32 s{S_L}, s{S_W}, 4")
e("v_lshrrev_b32 v2, 3, v1")
e("v_and_b32 v3, 7, v1")
e("v_lshrrev_b32 v4, 1, v2")
e("v_lshlrev_b32 v5, 1, v4")
e("v_xor_b32 v5, v5, v3")
e("v_lshlrev_b32 v5, 4, v5")
e("v_lshrrev_b32 v6, 2, v2")
e("v_lshlrev_b32 v6, 3, v6")
e("v_and_b32 v7, 3, v2")
e("v_add_u32 v6, v6, v7")
e("v_mul_u32_u24 v6, 12288, v6")
e(f"v_add_u32 v{V_OW}, v6, v5")
e("v_mul_u32_u24 v6, 1280, v2")
e("v_xor_b32 v7, v3, v4")
e("v_lshlrev_b32 v8, 4, v7")
e(f"s_and_b32 s{S_T1}, s{S_L}, 1")
e(f"s_lshl_b32 s{S_T2}, s{S_T1}, 6")
e(f"v_xor_b32 v8, s{S_T2}, v8")
e(f"v_add_u32 v{V_OXA}, v6, v8")
e("v_xor_b32 v9, 64, v8")
e(f"v_add_u32 v{V_OXB}, v6, v9")
e(f"s_mul_i32 s{S_XB}, s{S_BP}, {96*1280}")
e(f"s_mul_i32 s{S_T2}, s{S_L}, {24*1280}")
e(f"s_add_u32 s{S_XB}, s{S_XB}, s{S_T2}")
e(f"s_mul_i32 s{S_WB}, s{S_H}, 384")
e(f"s_lshr_b32 s{S_T0}, s{S_L}, 1")
e(f"s_mul_i32 s{S_T2}, s{S_T0}, {16*12288}")
e(f"s_add_u32 s{S_WB}, s{S_WB}, s{S_T2}")
e(f"s_mul_i32 s{S_T2}, s{S_T1}, {4*12288}")
e(f"s_add_u32 s{S_WB}, s{S_WB}, s{S_T2}")
e(f"s_mul_i32 s{S_KX}, s{S_BP}, 5")
e(f"s_lshr_b32 s{S_KX}, s{S_KX}, 2")
e(f"s_mul_i32 s{S_T2}, s{S_I}, 5")
e(f"s_lshr_b32 s{S_T2}, s{S_T2}, 1")
e(f"s_add_u32 s{S_KX}, s{S_KX}, s{S_T2}")
e(f"s_sub_u32 s{S_T2}, s{S_KX}, 10")
e(f"s_cmp_ge_u32 s{S_KX}, 10")
e(f"s_cselect_b32 s{S_KX}, s{S_T2}, s{S_KX}")
e(f"s_lshl_b32 s{S_KX}, s{S_KX}, 7")
e(f"s_mul_i32 s{S_LX}, s{S_L}, 3072")
e(f"s_lshl_b32 s{S_LW}, s{S_L}, 10")
e("s_waitcnt lgkmcnt(0)")
srd(R_X, S_X, 16*48*640*2)
srd(R_WQ, S_WQ, 640*6144*2)
def issue(s):
    buf = bufof(s)
    e(f"s_mul_i32 s{S_KW}, s{S_KX}, 6144"); e(f"s_add_u32 s{S_KW}, s{S_KW}, s{S_WB}"); e(f"s_add_u32 s{S_XK}, s{S_KX}, s{S_XB}")
    ws = [("w", ks, cg) for ks in range(2) for cg in range(3)]
    xs = [("x", a) for a in range(3)]
    for o in [xs[0], ws[0], ws[1], xs[1], ws[2], xs[2], ws[3], ws[4], ws[5]]:
        if o[0] == "w":
            _, ks, cg = o
            e(f"s_add_u32 m0, s{S_LW}, {buf*PITCH + XB + ks*12288 + cg*4096}")
            e(f"s_add_u32 s{S_SO}, s{S_KW}, {32*ks*12288 + cg*128}")
            e(f"buffer_load_dwordx4 v{V_OW}, {R(R_WQ)}, s{S_SO} offen lds")
        else:
            a = o[1]
            e(f"s_add_u32 m0, s{S_LX}, {buf*PITCH + a*1024}")
            e(f"s_add_u32 s{S_SO}, s{S_XK}, {8*a*1280}")
            e(f"buffer_load_dwordx4 v{V_OXB if a == 1 else V_OXA}, {R(R_X)}, s{S_SO} offen lds")
    e(f"s_add_u32 s{S_KX}, s{S_KX}, 128"); e(f"s_cmp_eq_u32 s{S_KX}, 1280"); e(f"s_cselect_b32 s{S_KX}, 0, s{S_KX}")
def flag(n):
    e(f"s_add_u32 m0, s{S_FLB}, {16*n}")
    e("s_mov_b64 exec, 1")
    e(f"buffer_load_dword v{V_OOB}, {R(R_X)}, 0 offen lds")
    e("s_mov_b64 exec, -1")
issue(0)
srd(R_K, S_K, 16*32*48*192*2)
srd(R_V, S_V, 16*32*48*192*2)
e(f"v_mov_b32 v{V_OOB}, 0x7ffffff0")
e(f"s_lshl_b32 s{S_FLB}, s{S_L}, 2")
e(f"s_add_u32 s{S_FLB}, s{S_FLB}, {SY_FLG}")
e("s_barrier")
flag(0)
issue(1); flag(1)
epoch_load()
srd(R_WO, S_WO, 6144*640*2)
srd(R_WS, S_WS, 268435456)
e("v_mul_u32_u24 v6, 384, v2")
e(f"v_add_u32 v{V_OV}, v6, v5")
e(f"v_add_u32 v{V_OKA}, v6, v8")
e(f"v_add_u32 v{V_OKB}, v6, v9")
e(f"s_lshl_b32 s{S_T2}, s{S_BP}, 1")
e(f"s_add_u32 s{S_T2}, s{S_T2}, s{S_T0}")
e(f"s_lshl_b32 s{S_T2}, s{S_T2}, 5")
e(f"s_add_u32 s{S_T2}, s{S_T2}, s{S_H}")
e(f"s_mul_i32 s{S_KVB}, s{S_T2}, 18432")
e(f"s_mul_i32 s{S_KD}, s{S_T0}, 18432")
e(f"s_mul_i32 s{S_T3}, s{S_T1}, 3072")
e(f"s_add_u32 s{S_KD}, s{S_KD}, s{S_T3}")
e(f"s_lshl_b32 s{S_VD}, s{S_T1}, 11")
e(f"s_lshl_b32 s{S_T3}, s{S_T0}, 10")
e(f"s_add_u32 s{S_VD}, s{S_VD}, s{S_T3}")
e(f"s_mul_i32 s{S_KB2}, s{S_T1}, {24*384}")
e(f"s_add_u32 s{S_KB2}, s{S_KB2}, s{S_KVB}")
e(f"s_mul_i32 s{S_VB2}, s{S_T1}, {8*384}")
e(f"s_add_u32 s{S_VB2}, s{S_VB2}, s{S_KVB}")
e(f"s_mov_b32 s{S_T0}, 0x1999999a")
for n in range(5):
    e(f"v_add_u32 v2, {64*n}, v1")
    e(f"v_mul_hi_u32 v3, v2, s{S_T0}")
    e("v_mul_u32_u24 v4, 10, v3")
    e("v_sub_u32 v4, v2, v4")
    e("v_mul_u32_u24 v3, 1280, v3")
    e(f"v_lshl_add_u32 v{V_OWO+n}, v4, 4, v3")
e("v_min_u32 v2, 59, v1")
e(f"v_lshlrev_b32 v{V_PF}, 7, v2")
emit_rot2()
e(f"s_add_u32 s10, s{R_K}, s{S_KB2}")
e(f"s_addc_u32 s11, s{R_K+1}, 0")
e(f"s_add_u32 s12, s{R_V}, s{S_KB2}")
e(f"s_addc_u32 s13, s{R_V+1}, 0")
SMQ = [f"s_load_dword s15, s[10:11], {o}" for o in range(0, 9216, args.smstride)] + [f"s_load_dword s15, s[12:13], {o}" for o in range(0, 9216, args.smstride)]
SMN = [int(x) for x in args.smpf.split(",")]
def smpf(n):
    for _ in range(SMN[n]):
        if SMQ: e(SMQ.pop(0))
issue(2); flag(2); smpf(2)
issue(3); flag(3); smpf(3)
for s in range(4, 10):
    e("s_barrier")
    if s in (4, 9) and not any(SMN): stamp()
    issue(s); flag(s); smpf(s)
e("s_barrier")
for a in range(3):
    for cg in range(3):
        e(f"s_add_u32 m0, s{S_KD}, {3*PITCH + cg*6144 + a*1024}")
        e(f"s_add_u32 s{S_SO}, s{S_KB2}, {8*a*384 + cg*128}")
        e(f"buffer_load_dwordx4 v{V_OKB if a == 1 else V_OKA}, {R(R_K)}, s{S_SO} offen {args.kvflag} lds")
flag(10)
e(f"s_lshl_b32 s{S_T2}, s{S_RG}, 3")
e(f"s_add_u32 s{S_T2}, s{S_T2}, s{S_J}")
e(f"s_lshl_b32 s{S_T2}, s{S_T2}, 7")
e(f"s_add_u32 s{S_T2}, s{S_T2}, {WS_X}")
e(f"s_load_dwordx8 s[92:99], s[{S_WS}:{S_WS+1}], s{S_T2} glc")
e("s_barrier")
for kt in range(3):
    for cg in range(3):
        e(f"s_add_u32 m0, s{S_VD}, {kt*12288 + cg*4096}")
        e(f"s_add_u32 s{S_SO}, s{S_VB2}, {16*kt*384 + cg*128}")
        e(f"buffer_load_dwordx4 v{V_OV}, {R(R_V)}, s{S_SO} offen {args.kvflag} lds")
e("s_waitcnt lgkmcnt(0)")
e(f"s_add_u32 s{S_NONCE}, s{S_NONCE}, {NSTEP:#x}")
xval(S_T3)
e(f"s_xor_b32 s{S_T0}, s92, s{S_T3}")
for k in range(1, 8):
    e(f"s_xor_b32 s{S_T2}, s{92+k}, s{S_T3}")
    e(f"s_or_b32 s{S_T0}, s{S_T0}, s{S_T2}")
e(f"s_cmp_lg_u32 s{S_T0}, 0")
e("s_cbranch_scc1 L_nolocal")
if not args.nolocal: flag(15)
e.lab("L_nolocal")
flag(11)
stamp()
e(f"s_mul_i32 s{S_WB}, s{S_J}, {768*1280}")
if args.wopf:
    e(f"s_lshr_b32 s{S_T2}, s2, 3"); e(f"s_lshl_b32 s{S_T2}, s{S_T2}, 2"); e(f"s_add_u32 s{S_T2}, s{S_T2}, s{S_L}")
    e(f"s_mul_i32 s{S_T2}, s{S_T2}, 7680"); e(f"s_add_u32 s{S_T2}, s{S_T2}, s{S_WB}")
    e(f"buffer_load_dword v{LDUMMY}, v{V_PF}, {R(R_WO)}, s{S_T2} offen")
e(f"s_mul_i32 s{S_T0}, s{S_CG}, 160")
e(f"s_add_u32 s{S_WB}, s{S_WB}, s{S_T0}")
e(f"s_mul_i32 s{S_LW}, s{S_L}, 5120")
e(f"s_add_u32 s{S_T3}, s{S_ROT}, s{S_L}")
stamp()
e("s_barrier")
for g in range(3):
    if g in (0, 2):
        e("s_barrier")
        stamp()
    for hf in range(2):
        e(f"s_add_u32 s{S_T0}, s{S_T3}, {8*g+4*hf}")
        e(f"s_sub_u32 s{S_T2}, s{S_T0}, 24")
        e(f"s_cmp_ge_u32 s{S_T0}, 24")
        e(f"s_cselect_b32 s{S_T0}, s{S_T2}, s{S_T0}")
        e(f"s_mul_i32 s{S_T0}, s{S_T0}, 40960")
        e(f"s_add_u32 s{S_T0}, s{S_T0}, s{S_WB}")
        for n in range(5):
            e(f"s_add_u32 m0, s{S_LW}, {wo_lds(8*g+4*hf) + n*1024}")
            if args.wdep < 63: e(f"s_waitcnt vmcnt({args.wdep})")
            e(f"buffer_load_dwordx4 v{V_OWO+n}, {R(R_WO)}, s{S_T0} offen {args.woflag} lds")
    flag(12+g)
    stamp()
e("s_waitcnt vmcnt(0)")
stamp()
stamp_store()
e("s_endpgm")

stamp_n[0] = 1 if STAMPS else 0
e.lab("L_compute")
S_B, S_JH, S_OB, S_SO, S_CNT, S_BG2, S_OB2, S_PB, S_F2, S_OUTB = S_A
V_L16, V_FL, V_OUT, V_SR, V_RDY = 10, 11, 12, 14, 15
V_AW, V_AX = 16, 22
FR = [32, 68]
ACC = 104
V_AV, V_AK, V_A0, V_A1, DUMMY = 176, 182, 188, 189, 191
QF = 192
SUMA, ONES, RINV = 228, 240, 244
V_SXW, V_SXR, V_LOC = 250, 251, 252
if args.prio: e(f"s_setprio {args.prio}")
e(f"v_lshlrev_b32 v{V_L16}, 4, v1")
e("v_lshlrev_b32 v2, 2, v1")
e(f"v_add_u32 v2, {SY_FLG}, v2")
e("v_mov_b32 v4, 1")
e("ds_write_b32 v2, v4")
e("s_getpc_b64 s[60:61]")
e.lab("L_pc")
e(f"s_sub_u32 s60, s60, L_pc-{NAME}")
e("s_subb_u32 s61, s61, 0")
e(f"s_lshr_b32 s{S_T0}, s2, 3")
e(f"s_lshl_b32 s{S_T0}, s{S_T0}, 10")
e("v_and_b32 v2, 7, v1")
e("v_lshlrev_b32 v2, 7, v2")
e(f"v_add_u32 v2, s{S_T0}, v2")
e(f"global_load_dword v{DUMMY}, v2, s[60:61]")
e("s_waitcnt lgkmcnt(0)")
e("s_barrier")
epoch_load()
srd(R_OUT, S_OUT, 16*48*640*2)
srd(R_WS, S_WS, 268435456)
srd(R_K, S_DBG, 256)
e(f"s_mov_b32 s{S_BUD}, 0")
emit_rot2()
e(f"s_lshr_b32 s{S_B}, s{S_W}, 1")
e(f"s_and_b32 s{S_JH}, s{S_W}, 1")
e("v_lshrrev_b32 v2, 4, v1")
e("v_and_b32 v3, 15, v1")
e("v_mul_u32_u24 v4, 1280, v3")
e(f"v_lshl_add_u32 v{V_OUT}, v2, 3, v4")
e("v_and_b32 v4, 7, v1")
e(f"v_lshlrev_b32 v{V_FL}, 2, v4")
e("v_and_b32 v4, 3, v1")
e("v_lshlrev_b32 v5, 2, v4")
e(f"v_add_u32 v{V_SR}, {SY_FLG}, v5")
e(f"s_xor_b32 s{S_T3}, s{S_W}, 1")
e(f"s_mul_i32 s{S_T2}, s{S_W}, 9216")
e(f"s_mul_i32 s{S_T1}, s{S_T3}, 9216")
e(f"v_add_u32 v{V_SXW}, s{S_T2}, v{V_L16}")
e(f"v_add_u32 v{V_SXR}, s{S_T1}, v{V_L16}")
for r in range(4): e(f"v_mov_b32 v{ONES+r}, 0x3f803f80")
e("v_lshrrev_b32 v8, 1, v3")
e("v_xor_b32 v4, v8, v2")
e("v_lshlrev_b32 v4, 4, v4")
e("v_lshl_add_u32 v4, v3, 7, v4")
e(f"s_mul_i32 s{S_T2}, s{S_B}, 6144")
e(f"v_add_u32 v{V_AX}, s{S_T2}, v4")
e(f"v_xor_b32 v{V_AX+1}, 64, v{V_AX}")
e(f"v_add_u32 v{V_AX+8}, {2*PITCH}, v{V_AX}")
e(f"v_add_u32 v{V_AX+9}, {2*PITCH}, v{V_AX+1}")
e("v_lshrrev_b32 v9, 1, v2")
e("v_xor_b32 v9, v9, v8")
e("v_and_b32 v4, 1, v2")
e("v_lshlrev_b32 v4, 3, v4")
e("v_lshl_add_u32 v4, v3, 7, v4")
e(f"s_mul_i32 s{S_T2}, s{S_JH}, 12")
e(f"s_mul_i32 s{S_T1}, s{S_B}, 18432")
e(f"s_add_u32 s{S_T1}, s{S_T1}, {3*PITCH}")
for k in range(6):
    e(f"s_add_u32 s{S_T3}, s{S_T2}, {2*k}")
    e(f"s_and_b32 s{S_T0}, s{S_T3}, 7")
    e(f"s_lshr_b32 s{S_T3}, s{S_T3}, 3")
    e(f"s_mul_i32 s{S_T3}, s{S_T3}, 6144")
    e(f"s_add_u32 s{S_T3}, s{S_T3}, s{S_T1}")
    e(f"v_xor_b32 v6, s{S_T0}, v9")
    e(f"v_lshl_add_u32 v6, v6, 4, v4")
    e(f"v_add_u32 v{V_AK+k}, s{S_T3}, v6")
e("v_lshrrev_b32 v4, 2, v1")
e("v_and_b32 v4, 7, v4")
e("v_lshrrev_b32 v5, 5, v1")
e("v_lshlrev_b32 v5, 11, v5")
e("v_lshl_add_u32 v5, v4, 7, v5")
e("v_and_b32 v6, 3, v1")
e("v_lshl_add_u32 v5, v6, 3, v5")
e("v_lshrrev_b32 v4, 1, v4")
e(f"s_mul_i32 s{S_T2}, s{S_JH}, 6")
e(f"s_lshl_b32 s{S_T1}, s{S_B}, 10")
e(f"s_sub_u32 s{S_T1}, s{S_T1}, {XB}")
for t in range(6):
    e(f"s_add_u32 s{S_T3}, s{S_T2}, {t}")
    e(f"s_and_b32 s{S_T0}, s{S_T3}, 3")
    e(f"s_lshr_b32 s{S_T3}, s{S_T3}, 2")
    e(f"s_lshl_b32 s{S_T3}, s{S_T3}, 12")
    e(f"s_add_u32 s{S_T3}, s{S_T3}, {XB}")
    e(f"v_xor_b32 v6, s{S_T0}, v4")
    e(f"v_lshl_add_u32 v6, v6, 5, v5")
    e(f"v_add_u32 v{V_AW+t}, s{S_T3}, v6")
    e(f"v_add_u32 v{V_AW+8+t}, {2*PITCH}, v{V_AW+t}")
    e(f"v_add_u32 v{V_AV+t}, s{S_T1}, v{V_AW+t}")
e(f"s_lshl_b32 s{S_T2}, s{S_BP}, 1")
e(f"s_add_u32 s{S_T2}, s{S_T2}, s{S_B}")
e(f"s_lshl_b32 s{S_T2}, s{S_T2}, 5")
e(f"s_add_u32 s{S_T2}, s{S_T2}, s{S_H}")
e(f"s_mul_i32 s{S_OB}, s{S_T2}, 18432")
e(f"s_mul_i32 s{S_T3}, s{S_JH}, 9216")
e(f"s_add_u32 s{S_OB}, s{S_OB}, s{S_T3}")
e("v_lshrrev_b32 v2, 2, v1")
e("v_mul_u32_u24 v2, 160, v2")
e("v_and_b32 v3, 3, v1")
e(f"v_lshl_add_u32 v{V_A0}, v3, 3, v2")
e(f"v_add_u32 v{V_A0}, {PITCH}, v{V_A0}")
e(f"v_add_u32 v{V_A1}, 61440, v{V_A0}")
cs = (192 ** -0.5) * math.log2(math.e)
cbits = struct.unpack("<I", struct.pack("<f", cs))[0]
S_SC = S_T4
e(f"s_mov_b32 s{S_SC}, {cbits:#x}")
e("s_waitcnt lgkmcnt(0)")
e(f"s_add_u32 s{S_NONCE}, s{S_NONCE}, {NSTEP:#x}")
e(f"s_cmp_lg_u32 s{S_W}, 0")
e("s_cbranch_scc1 L_nox")
xval(S_T3)
e(f"s_lshl_b32 s{S_T2}, s{S_RG}, 3")
e(f"s_add_u32 s{S_T2}, s{S_T2}, s{S_J}")
e(f"s_lshl_b32 s{S_T2}, s{S_T2}, 5")
e(f"s_add_u32 s{S_T2}, s{S_T2}, s{S_CG}")
e(f"s_lshl_b32 s{S_T2}, s{S_T2}, 2")
e(f"s_add_u32 s{S_T2}, s{S_T2}, {WS_X}")
e(f"v_mov_b32 v2, s{S_T3}")
e("v_mov_b32 v3, 0")
e("s_mov_b64 exec, 1")
e(f"buffer_store_dword v2, v3, {R(R_WS)}, s{S_T2} offen sc1")
e("s_mov_b64 exec, -1")
e.lab("L_nox")

slow = []
def fread(n): return f"ds_read_b32 v{V_RDY}, v{V_SR} offset:{16*n}"
def fcmp(): e(f"v_cmp_ne_u32 vcc, 0, v{V_RDY}")
def check(n):
    e(f"s_cbranch_vccnz L_slow{n}")
    e.lab(f"L_cont{n}")
    slow.append(n)
def fwait(n):
    e(f"s_branch L_slow{n}")
    e.lab(f"L_cont{n}")
    slow.append(n)
def read_ops(s, ks, fs):
    buf = bufof(s)
    aset = 8*(buf//2); boff = (buf % 2)*PITCH
    F = FR[fs]
    def xr(qt): return f"ds_read_b128 {vr(F+24+4*qt,4)}, v{V_AX+aset+ks} offset:{boff+qt*2048}"
    def wr(t, m): return f"ds_read_b64_tr_b16 {vr(F+4*t+2*m,2)}, v{V_AW+aset+t} offset:{boff+ks*12288+m*1024}"
    ops = [xr(0), wr(0,0), wr(0,1), xr(1), xr(2)]
    for t in range(1, 6): ops += [wr(t,0), wr(t,1)]
    return ops
def mfma_ops(fs, first):
    F = FR[fs]; ops = []
    for t in range(6):
        for qt in range(3):
            d = ACC + (t*3+qt)*4
            c = "0" if first else vr(d,4)
            ops.append(f"v_mfma_f32_16x16x32_bf16 {vr(d,4)}, {vr(F+4*t,4)}, {vr(F+24+4*qt,4)}, {c}")
    return ops
def interleave(mf, reads, dmas, first2=4):
    n = len(mf); rq = list(reads); dq = list(dmas)
    for k, m in enumerate(mf):
        e(m)
        for _ in range(2 if k < first2 else 1):
            if rq: e(rq.pop(0))
        if dq and k >= 1:
            per = max(1, math.ceil(len(dq) / max(1, n - 1 - k)))
            for _ in range(per):
                if dq: e.emit(dq.pop(0))
    assert not rq and not dq
def merge(mf, fill, per, start=0):
    fq = list(fill)
    for k, m in enumerate(mf):
        e(m)
        if k >= start:
            for _ in range(per):
                if fq: e.emit(fq.pop(0))
    return fq

fwait(0)
stamp()
KF, SA, SB, VF = 32, 68, 104, 32
for x in read_ops(0, 0, 0): e(x)
STS = [int(x) for x in args.st.split(",")]
for s in range(10):
    e.c(f"--- stage {s} kstep 0")
    e("s_waitcnt lgkmcnt(0)")
    interleave(mfma_ops(0, s == 0), read_ops(s, 1, 1) + ([fread(s+1)] if s < 9 else []), [])
    e("s_waitcnt lgkmcnt(0)")
    e.c(f"--- stage {s} kstep 1")
    mf = mfma_ops(1, False)
    if s < 9: fcmp()
    e(mf[0])
    if args.bshift <= s <= 7 + args.bshift: e("s_barrier")
    if s < 9: check(s+1)
    if s in STS: stamp()
    if s < 9:
        interleave(mf[1:], read_ops(s+1, 0, 0), [])
kreads = [f"ds_read_b64 {vr(KF+(kt*3+u)*4+2*ee,2)}, v{V_AK+2*u+ee} offset:{kt*2048}" for u in range(3) for kt in range(3) for ee in range(2)]
def qcvt(u):
    ops = []
    for hh in range(2):
        for qt in range(3):
            q = QF + (u*3+qt)*4
            a = ACC + ((2*u+hh)*3+qt)*4
            ops += [f"v_cvt_pk_bf16_f32 v{q+2*hh}, v{a}, v{a+1}", f"v_cvt_pk_bf16_f32 v{q+2*hh+1}, v{a+2}, v{a+3}"]
    return ops
fill = qcvt(0) + qcvt(1) + qcvt(2)
fill = merge(mf[1:], fill, 2, start=8)
for x in fill[:6]: e(x)
fill = fill[6:]
stamp()
if args.pretouch:
    e("v_lshlrev_b32 v5, 7, v1")
    e(f"v_lshlrev_b32 v6, 5, v{V_FL}")
    e(f"s_add_u32 s{S_T2}, s{S_OB}, {WS_O + 8192}")
    e(f"buffer_load_dword v{DUMMY}, v5, {R(R_WS)}, s{S_OB} offen sc1")
    e(f"buffer_load_dword v{DUMMY}, v6, {R(R_WS)}, s{S_T2} offen sc1")
fwait(10)
stamp()
for x in kreads: e(x)
for x in fill: e(x)
e("s_barrier")
def smf(u, kt, qt):
    d = SA + (kt*3+qt)*4
    c = "0" if u == 0 else vr(d,4)
    return f"v_mfma_f32_16x16x32_bf16 {vr(d,4)}, {vr(KF+(kt*3+u)*4,4)}, {vr(QF+(u*3+qt)*4,4)}, {c}"
for u in range(2):
    e(f"s_waitcnt lgkmcnt({12-6*u})")
    for kt in range(3):
        for qt in range(3): e(smf(u, kt, qt))
e("s_waitcnt lgkmcnt(0)")
def swr(kt, qt):
    k = kt*3+qt
    return f"ds_write_b128 v{V_SXW}, {vr(SA+4*k,4)} offset:{PITCH + k*1024}"
for qt in range(3):
    for kt in range(3): e(smf(2, kt, qt))
e("s_nop 1")
for qt in range(3):
    for kt in range(3): e(swr(kt, qt))
e("s_waitcnt lgkmcnt(0)")
e("s_barrier")
stamp()
vreads = [f"ds_read_b64_tr_b16 {vr(VF+6*t+2*kt,2)}, v{V_AV+t} offset:{kt*12288}" for t in range(6) for kt in range(3)]
for qt in range(3):
    for kt in range(3):
        k = kt*3+qt
        e(f"ds_read_b128 {vr(SB+4*k,4)}, v{V_SXR} offset:{PITCH + k*1024}")
def sreg(kt, qt, r): return SA + (kt*3+qt)*4 + r
M = [2, 3, 4]; T = [5, 6, 7]
for qt in range(3):
    e(f"s_waitcnt lgkmcnt({6-3*qt})")
    for kt in range(3):
        k = kt*3+qt
        for h2 in range(2):
            e(f"v_pk_add_f32 {vr(SA+4*k+2*h2,2)}, {vr(SA+4*k+2*h2,2)}, {vr(SB+4*k+2*h2,2)}")
    vals = [sreg(kt, qt, r) for kt in range(3) for r in range(4)]
    e(f"v_max3_f32 v{M[qt]}, v{vals[0]}, v{vals[1]}, v{vals[2]}")
    for k in range(3, 11, 2):
        e(f"v_max3_f32 v{M[qt]}, v{M[qt]}, v{vals[k]}, v{vals[k+1]}")
    e(f"v_max_f32 v{M[qt]}, v{M[qt]}, v{vals[11]}")
for sw in ("v_permlane32_swap_b32", "v_permlane16_swap_b32"):
    for qt in range(3): e(f"v_mov_b32 v{T[qt]}, v{M[qt]}")
    for qt in range(3): e(f"{sw} v{M[qt]}, v{T[qt]}")
    for qt in range(3): e(f"v_max_f32 v{M[qt]}, v{M[qt]}, v{T[qt]}")
for qt in range(3): e(f"v_mul_f32 v{M[qt]}, s{S_SC}, v{M[qt]}")
PF = QF
def Bops(qt):
    ops = []
    for kt in range(3):
        for r in range(4):
            x = sreg(kt, qt, r); ops.append(f"v_fma_f32 v{x}, v{x}, s{S_SC}, -v{M[qt]}")
    for kt in range(3):
        for r in range(4):
            x = sreg(kt, qt, r); ops.append(f"v_exp_f32 v{x}, v{x}")
    for kt in range(3):
        x = sreg(kt, qt, 0)
        ops += [f"v_cvt_pk_bf16_f32 v{PF+6*qt+2*kt}, v{x}, v{x+1}", f"v_cvt_pk_bf16_f32 v{PF+6*qt+2*kt+1}, v{x+2}, v{x+3}"]
    return ops
def SUMops(qt):
    d = SUMA + 4*qt
    return [f"v_mfma_f32_16x16x32_bf16 {vr(d,4)}, {vr(ONES,4)}, {vr(PF+6*qt,4)}, 0",
            f"v_mfma_f32_16x16x16_bf16 {vr(d,4)}, {vr(ONES,2)}, {vr(PF+6*qt+4,2)}, {vr(d,4)}"]
def PVops(qt):
    a = []; b = []
    for t in range(6):
        d = ACC + (t*3+qt)*4
        a.append(f"v_mfma_f32_16x16x32_bf16 {vr(d,4)}, {vr(VF+6*t,4)}, {vr(PF+6*qt,4)}, 0")
        b.append(f"v_mfma_f32_16x16x16_bf16 {vr(d,4)}, {vr(VF+6*t+4,2)}, {vr(PF+6*qt+4,2)}, {vr(d,4)}")
    return a + b
def Eops(qt, oflag):
    ops = []
    for u in range(3):
        q = SA + (u*3+qt)*4
        for hh in range(2):
            a = ACC + ((2*u+hh)*3+qt)*4
            for h2 in range(2):
                ops.append(f"v_pk_mul_f32 {vr(a+2*h2,2)}, {vr(a+2*h2,2)}, {vr(RINV+2*qt,2)} op_sel_hi:[1,0]")
        for hh in range(2):
            a = ACC + ((2*u+hh)*3+qt)*4
            ops += [f"v_cvt_pk_bf16_f32 v{q+2*hh}, v{a}, v{a+1}", f"v_cvt_pk_bf16_f32 v{q+2*hh+1}, v{a+2}, v{a+3}"]
        ops.append([f"s_add_u32 s{S_SO}, s{S_OB}, {WS_O + u*3072}",
                    (f"buffer_store_dwordx4 {vr(q,4)}, v{V_L16}, {R(R_WS)}, s{S_SO} offen offset:{qt*1024} {oflag}", "ost")])
    return ops
for qt in range(3):
    b = Bops(qt)
    if qt == 0:
        for x in b: e(x)
    else:
        sm = SUMops(qt-1)
        e(sm[0])
        for x in b[:12]: e(x)
        e(sm[1])
        for x in b[12:]: e(x)
sm = SUMops(2)
e(f"v_rcp_f32 v{RINV}, v{SUMA}")
e(f"v_rcp_f32 v{RINV+2}, v{SUMA+4}")
e(sm[0])
stamp()
fwait(11)
e(f"ds_read_b32 v{V_LOC}, v{V_SR} offset:{16*15}")
for x in vreads: e(x)
e(sm[1])
stamp(wait=False)
e(f"s_lshl_b32 s{S_T0}, s{S_BP}, 1")
e(f"s_add_u32 s{S_T0}, s{S_T0}, s{S_B}")
e(f"s_lshl_b32 s{S_T0}, s{S_T0}, 3")
e(f"s_add_u32 s{S_T0}, s{S_T0}, s{S_J}")
e(f"s_lshl_b32 s{S_T0}, s{S_T0}, 7")
e(f"s_lshl_b32 s{S_T1}, s{S_I}, 3")
e(f"s_add_u32 s{S_T0}, s{S_T0}, s{S_T1}")
e(f"s_lshl_b32 s{S_T1}, s{S_JH}, 2")
e(f"s_add_u32 s{S_T0}, s{S_T0}, s{S_T1}")
e(f"s_add_u32 s{S_T0}, s{S_T0}, {WS_F1}")
e(f"v_mov_b32 v2, s{S_NONCE}")
e("v_mov_b32 v3, 0")
e("s_waitcnt lgkmcnt(0)")
e(f"v_cmp_ne_u32 vcc, 0, v{V_LOC}")
pv0 = PVops(0); pv1 = PVops(1); pv2 = PVops(2)
for x in pv0[:6]: e(x)
e(f"v_rcp_f32 v{RINV+4}, v{SUMA+8}")
for x in pv1[:3]: e(x)
for x in pv0[6:]: e(x)
for x in pv1[3:6]: e(x)
e("s_cbranch_vccnz L_pubslow")
sn = stamp_n[0]
def publish(oflag):
    stamp_n[0] = sn
    rest = pv2[:3] + pv1[6:] + pv2[3:6]
    f = merge(rest, Eops(0, oflag), 2, start=2)
    f = merge(pv2[6:], f + Eops(1, oflag), 2)
    for x in f: e.emit(x)
    for x in Eops(2, oflag): e.emit(x)
    stamp()
    e("s_mov_b64 exec, 1")
    e("s_waitcnt vmcnt(0)")
    e.vm = []
    e(f"buffer_store_dword v2, v3, {R(R_WS)}, s{S_T0} offen {oflag}")
    e("s_mov_b64 exec, -1")
publish("")
e.lab("L_pubdone")
stamp()
e("s_barrier")
e(f"s_lshl_b32 s{S_BG2}, s{S_RG}, 2")
e(f"s_add_u32 s{S_BG2}, s{S_BG2}, s{S_W}")
e(f"s_lshl_b32 s{S_T0}, s{S_BG2}, 3")
e(f"s_add_u32 s{S_T0}, s{S_T0}, s{S_J}")
e(f"s_mul_i32 s{S_OB2}, s{S_T0}, {4*18432}")
if args.p2same: e(f"s_mul_i32 s{S_OB2}, s{S_J}, {4*18432}")
e(f"s_lshl_b32 s{S_T0}, s{S_T0}, 7")
e(f"s_add_u32 s{S_T0}, s{S_T0}, {WS_F1}")
def poll(lab, soff):
    e(f"s_mov_b32 s{S_CNT}, 0")
    e.lab(lab)
    e(f"buffer_load_dword v4, v{V_FL}, {R(R_WS)}, s{soff} offen sc1")
    e(f"s_add_u32 s{S_CNT}, s{S_CNT}, 1")
    e(f"s_cmp_ge_u32 s{S_CNT}, 100000")
    e(f"s_cbranch_scc1 {lab}_done")
    e("s_waitcnt vmcnt(0)")
    e(f"v_cmp_ne_u32 vcc, s{S_NONCE}, v4")
    e(f"s_cbranch_vccz {lab}_done")
    if args.sleep: e(f"s_sleep {args.sleep}")
    e(f"s_branch {lab}")
    e.lab(lab + "_done")
    e("s_waitcnt vmcnt(0)")
    e.vm = []
AF = [16, 36]; ACC2 = 56
def rd(u, fs):
    ops = []
    for tt in range(5):
        for m in range(2):
            off = wo_lds(u) - PITCH + m*2560 + tt*32
            a = V_A0
            if off >= 61440: off -= 61440; a = V_A1
            ops.append(f"ds_read_b64_tr_b16 {vr(AF[fs]+4*tt+2*m,2)}, v{a} offset:{off}")
    return ops
fwait(12)
for x in rd(0, 0): e(x)
poll("L_poll1", S_T0)
stamp()
def ofr(u, qt):
    k = u % 10
    b = 116 + 12*k if k < 5 else 192 + 12*(k-5)
    return vr(b + 4*qt, 4)
e(f"s_mul_i32 s{S_T1}, s{S_ROT}, 3072")
def oload(u):
    ops = [f"s_add_u32 s{S_SO}, s{S_OB2}, s{S_T1}"]
    for qt in range(3):
        if args.p2noload and u >= 1: ops.append(("s_nop 0", f"o{u}"))
        else: ops.append((f"buffer_load_dwordx4 {ofr(u,qt)}, v{V_L16}, {R(R_WS)}, s{S_SO} offen offset:{qt*1024} {args.oload}", f"o{u}"))
    ops += [f"s_add_u32 s{S_T1}, s{S_T1}, 3072", f"s_cmp_eq_u32 s{S_T1}, {24*3072}", f"s_cselect_b32 s{S_T1}, 0, s{S_T1}"]
    return ops
NPRE = args.npre
assert NPRE <= 9
for u in range(NPRE): e.emit(oload(u))
for u in range(24):
    fs = u % 2
    e.vmwait(f"o{u}", extra=" lgkmcnt(0)")
    if u == 0: stamp()
    mf = []
    for tt in range(5):
        for qt in range(3):
            d = ACC2 + (tt*3+qt)*4
            c = "0" if u == 0 else vr(d, 4)
            mf.append(f"v_mfma_f32_16x16x32_bf16 {vr(d,4)}, {vr(AF[fs]+4*tt,4)}, {ofr(u,qt)}, {c}")
    if args.p2nomfma: mf = ["s_nop 0"]*15
    dm = []
    if u + NPRE < 24:
        o = oload(u + NPRE)
        dm = [o[0:2], o[2:3], o[3:]]
    rq = rd(u+1, 1-fs) if (u < 23 and not args.p2nord) else []
    if u in (6, 14): rq = rq + [fread(13 if u == 6 else 14)]
    if u in (7, 15):
        fcmp(); e(mf[0]); check(13 if u == 7 else 14); mf = mf[1:]
    interleave(mf, rq, dm, first2=2)
stamp()
e(f"s_lshl_b32 s{S_T0}, s{S_RG}, 3")
e(f"s_add_u32 s{S_T0}, s{S_T0}, s{S_CG}")
e(f"s_lshl_b32 s{S_T0}, s{S_T0}, 2")
e(f"s_add_u32 s{S_T0}, s{S_T0}, s{S_W}")
e(f"s_lshl_b32 s{S_F2}, s{S_T0}, 7")
e(f"s_add_u32 s{S_F2}, s{S_F2}, {WS_F2}")
e(f"s_lshl_b32 s{S_PB}, s{S_T0}, 16")
e(f"s_add_u32 s{S_PB}, s{S_PB}, {WS_P}")
e(f"s_lshl_b32 s{S_T1}, s{S_J}, 10")
e(f"s_add_u32 s{S_T1}, s{S_T1}, s{S_PB}")
for p in range(8):
    q = 16 + 4*p
    for z in range(2):
        a = ACC2 + min(2*p+z, 14)*4
        e(f"v_cvt_pk_bf16_f32 v{q+2*z}, v{a}, v{a+1}")
        e(f"v_cvt_pk_bf16_f32 v{q+2*z+1}, v{a+2}, v{a+3}")
    e(f"s_add_u32 s{S_SO}, s{S_T1}, {p*8192}")
    e.vmem(f"buffer_store_dwordx4 {vr(q,4)}, v{V_L16}, {R(R_WS)}, s{S_SO} offen sc1", "pst")
e(f"s_lshl_b32 s{S_T1}, s{S_J}, 2")
e(f"s_add_u32 s{S_T1}, s{S_T1}, s{S_F2}")
e("s_mov_b64 exec, 1")
e.vmwait("pst")
e.vmem(f"buffer_store_dword v2, v3, {R(R_WS)}, s{S_T1} offen sc1", "f2")
e("s_mov_b64 exec, -1")
poll("L_poll2", S_F2)
stamp()
e(f"s_lshl_b32 s{S_T1}, s{S_J}, 13")
e(f"s_add_u32 s{S_T1}, s{S_T1}, s{S_PB}")
e(f"s_add_u32 s{S_T2}, s{S_T1}, 4096")
for jj in range(8):
    e.vmem(f"buffer_load_dwordx4 {vr(64+4*jj,4)}, v{V_L16}, {R(R_WS)}, s{S_T1 if jj < 4 else S_T2} offen offset:{(jj%4)*1024} sc1", f"pl{jj}")
e(f"s_mul_i32 s{S_OUTB}, s{S_BG2}, {48*1280}")
e(f"s_mul_i32 s{S_T0}, s{S_CG}, 160")
e(f"s_add_u32 s{S_OUTB}, s{S_OUTB}, s{S_T0}")
e(f"s_mov_b32 s{S_T4}, 0xffff0000")
for jj in range(8):
    e.vmwait(f"pl{jj}")
    dst = 100 if jj == 0 else 108
    for d in range(4):
        e(f"v_lshlrev_b32 v{dst+2*d}, 16, v{64+4*jj+d}")
        e(f"v_and_b32 v{dst+2*d+1}, s{S_T4}, v{64+4*jj+d}")
    if jj:
        for d in range(4):
            e(f"v_pk_add_f32 {vr(100+2*d,2)}, {vr(100+2*d,2)}, {vr(108+2*d,2)}")
res = [100, 104]
for z in range(2):
    b = res[z]
    e(f"v_cvt_pk_bf16_f32 v{20+2*z}, v{b}, v{b+1}")
    e(f"v_cvt_pk_bf16_f32 v{21+2*z}, v{b+2}, v{b+3}")
    e(f"s_lshl_b32 s{S_T0}, s{S_J}, 1")
    e(f"s_add_u32 s{S_T0}, s{S_T0}, {z}")
    if z == 1:
        e(f"s_cmp_eq_u32 s{S_T0}, 15")
        e("s_cbranch_scc1 L_fin")
    e(f"s_mul_i32 s{S_T1}, s{S_T0}, 11")
    e(f"s_lshr_b32 s{S_T1}, s{S_T1}, 5")
    e(f"s_mul_i32 s{S_T2}, s{S_T1}, 3")
    e(f"s_sub_u32 s{S_T2}, s{S_T0}, s{S_T2}")
    e(f"s_lshl_b32 s{S_T1}, s{S_T1}, 5")
    e(f"s_mul_i32 s{S_T2}, s{S_T2}, {16*1280}")
    e(f"s_add_u32 s{S_SO}, s{S_OUTB}, s{S_T1}")
    e(f"s_add_u32 s{S_SO}, s{S_SO}, s{S_T2}")
    e(f"buffer_store_dwordx2 {vr(20+2*z,2)}, v{V_OUT}, {R(R_OUT)}, s{S_SO} offen {args.outflag}")
e.lab("L_fin")
e(f"s_or_b32 s{S_T0}, s{S_J}, s{S_CG}")
e(f"s_cmp_lg_u32 s{S_T0}, 0")
e("s_cbranch_scc1 L_noep")
e("s_barrier")
e(f"s_cmp_lg_u32 s{S_W}, 0")
e("s_cbranch_scc1 L_noep")
e(f"s_lshl_b32 s{S_T2}, s{S_RG}, 7")
e(f"s_add_u32 s{S_T2}, s{S_T2}, {WS_E}")
e("s_mov_b64 exec, 1")
e(f"buffer_store_dword v2, v3, {R(R_WS)}, s{S_T2} offen sc1")
e("s_mov_b64 exec, -1")
e.lab("L_noep")
if STAMPS:
    e("s_waitcnt vmcnt(0)")
    stamp()
if args.dbg:
    e("s_mov_b64 exec, 1")
    e("v_mov_b32 v4, 0")
    for i in range(stamp_n[0]):
        if i == 0: e(f"s_not_b32 s{S_ST}, s{S_ST}")
        e(f"v_mov_b32 v6, s{S_ST+2*i}")
        e(f"buffer_atomic_umax v6, v4, {R(R_K)}, 0 offen offset:{4*i} sc1")
        e("s_nop 1")
else:
    stamp_store()
e.lab("L_end")
e("s_endpgm")
e.lab("L_pubslow")
e("s_nop 7")
snap = stamp_n[0]
publish("sc1")
stamp_n[0] = snap
e("s_branch L_pubdone")
for n in slow:
    e.lab(f"L_slow{n}")
    e(fread(n))
    budget(f"L_cont{n}")
    e("s_waitcnt lgkmcnt(0)")
    fcmp()
    e(f"s_cbranch_vccnz L_slow{n}")
    e(f"s_branch L_cont{n}")
e.raw(".p2align 8")
e.raw(".fill 4096, 4, 0xBF810000")
hdr = ["; generated by dev/gen9.py (fused single kernel, 4 compute + 4 loader waves)",
       "; @launch grid=(256,1,1) block=(512,1,1) lds=163840",
       '.amdgcn_target "amdgcn-amd-amdhsa--gfx950"', ".text"]
desc = f""".amdhsa_kernel {NAME}
  .amdhsa_next_free_vgpr 256
  .amdhsa_next_free_sgpr 102
  .amdhsa_accum_offset 256
  .amdhsa_group_segment_fixed_size 0
  .amdhsa_kernarg_size 64
  .amdhsa_user_sgpr_count 2
  .amdhsa_user_sgpr_kernarg_segment_ptr 1
  .amdhsa_system_sgpr_workgroup_id_x 1
.end_amdhsa_kernel"""
body = hazard_pad(e.L, verbose=True)
sys.stdout.write("\n".join(hdr + body) + '\n.section .rodata,"a"\n.p2align 6\n' + desc + "\n")
```

```python
import sys, math, argparse, struct
from asmlib import *
ap = argparse.ArgumentParser()
ap.add_argument("--stamps", action="store_true")
ap.add_argument("--clk", action="store_true")
ap.add_argument("--kvflag", default="nt")
ap.add_argument("--outflag", default="")
ap.add_argument("--sleep", type=int, default=1)
ap.add_argument("--prio", type=int, default=2)
ap.add_argument("--st", default="2,5")
ap.add_argument("--wopf", type=int, default=1)
ap.add_argument("--wdep", type=int, default=6)
ap.add_argument("--wdep2", type=int, default=63)
ap.add_argument("--nolocal", action="store_true")
ap.add_argument("--bars", default="1:4,5;3:6,7;5:8,9;6:;8:")
ap.add_argument("--rel", default="2:6,7,8;5:9,10,11")
ap.add_argument("--f2atom", type=int, default=4)
ap.add_argument("--f2sleep", type=int, default=2)
ap.add_argument("--ackstep", type=int, default=2)
ap.add_argument("--rotkk", type=int, default=0)
ap.add_argument("--late2", type=int, default=0)
ap.add_argument("--p2st", action="store_true")
ap.add_argument("--apoll", default="")
ap.add_argument("--otpos", type=int, default=-1)
ap.add_argument("--wppos", type=int, default=-1)
ap.add_argument("--r1n", type=int, default=3)
args = ap.parse_args()
STAMPS = args.stamps
def parse_sched(t):
    out = []
    for it in t.split(";"):
        m, l = it.split(":")
        out.append((int(m), [int(x) for x in l.split(",") if x]))
    return out
BARS = parse_sched(args.bars)
for m, l in BARS:
    for n in l: assert m >= n - 4
assert sorted(sum([l for m, l in BARS], [])) == list(range(4, 10))
assert BARS[-2][0] >= 6 and BARS[-1][0] >= 7 and not BARS[-1][1]
REL = parse_sched(args.rel)
for m, l in REL:
    for n in l: assert m >= n - 6
assert sorted(sum([l for m, l in REL], [])) == list(range(6, 12))
NAME = "standalone__mha_block_cached__near_ridge_kernel"
WS_O = 0
WS_P = 16 << 20
WS_F1 = 48 << 20
WS_E = WS_F1 + 0x20000
WS_X = WS_F1 + 0x30000
WS_F2 = WS_F1 + 0x40000
NSTEP = 0x9E3779B0
WS_ST = 0x8000000
NST = 16
e = A()

S_X, S_K, S_V, S_WQ, S_WO, S_OUT, S_DBG, S_WS = 4, 6, 8, 10, 12, 14, 16, 18
R_X, R_WQ, R_K, R_V, R_WO, R_OUT, R_WS = 20, 24, 28, 32, 36, 40, 44
S_J, S_I, S_BP, S_H, S_W = 48, 49, 50, 51, 52
S_T0, S_T1, S_T2, S_T3, S_T4 = 53, 54, 55, 56, 57
S_IDX, S_LOC, S_NONCE = 3, 58, 59
S_A = list(range(60, 70))
S_ST = 70
S_BUD = 17
BUD = 2000000
def srd(r, p, nbytes):
    e(f"s_mov_b32 s{r}, s{p}"); e(f"s_mov_b32 s{r+1}, s{p+1}"); e(f"s_mov_b32 s{r+2}, {nbytes}"); e(f"s_mov_b32 s{r+3}, 0x00020000")
def R(r): return f"s[{r}:{r+3}]"
stamp_n = [0]
def stamp(wait=True):
    if not STAMPS: return
    i = stamp_n[0]
    if i >= NST: return
    stamp_n[0] += 1
    e(f"s_mem{'time' if args.clk else 'realtime'} s[{S_ST+2*i}:{S_ST+2*i+1}]")
    if wait: e("s_waitcnt lgkmcnt(0)")
def stamp_store():
    if not STAMPS: return
    n = stamp_n[0]
    e(f"s_lshl_b32 s{S_T0}, s2, 3")
    e(f"s_add_u32 s{S_T0}, s{S_T0}, s{S_W}")
    e(f"s_mul_i32 s{S_T0}, s{S_T0}, {NST*8}")
    e(f"s_add_u32 s{S_T0}, s{S_T0}, {WS_ST}")
    e("v_mov_b32 v4, 0")
    for i in range(NST):
        k = min(i, n-1)
        e(f"v_mov_b32 v6, s{S_ST+2*k}")
        e(f"v_mov_b32 v7, s{S_ST+2*k+1}")
        e(f"buffer_store_dwordx2 v[6:7], v4, {R(R_WS)}, s{S_T0} offen offset:{8*i}")
        e("s_nop 1")
    sys.stderr.write(f"stamps: {n}\n")
def budget(done):
    e(f"s_add_u32 s{S_BUD}, s{S_BUD}, 1")
    e(f"s_cmp_gt_u32 s{S_BUD}, {BUD}")
    e(f"s_cbranch_scc1 {done}")
XB = 12288
PITCH = 40960
SY_FLG = 36864
F_K, F_V, F_LOC, F_WO = 10, 11, 12, 16
def bufof(s): return (s + 1) % 4
def wo_lds(u): return PITCH + (u % 6)*20480
def epoch_load():
    e(f"s_lshl_b32 s{S_T2}, s{S_BP}, 7")
    e(f"s_add_u32 s{S_T2}, s{S_T2}, {WS_E}")
    e(f"s_load_dword s{S_NONCE}, s[{S_WS}:{S_WS+1}], s{S_T2}")
def xval(dst):
    e(f"s_getreg_b32 s{dst}, hwreg(HW_REG_XCC_ID, 0, 4)")
    e(f"s_and_b32 s{S_T2}, s{S_NONCE}, 0xfffffff0")
    e(f"s_or_b32 s{dst}, s{dst}, s{S_T2}")
def xline(dst):
    e(f"s_lshl_b32 s{dst}, s{S_BP}, 3")
    e(f"s_add_u32 s{dst}, s{dst}, s{S_J}")
    e(f"s_lshl_b32 s{dst}, s{dst}, 7")
    e(f"s_add_u32 s{dst}, s{dst}, {WS_X}")

e.raw(f".globl {NAME}\n.p2align 8\n.type {NAME},@function\n{NAME}:")
stamp(wait=False)
e("s_load_dwordx16 s[4:19], s[0:1], 0")
e("s_cmp_ge_u32 s2, 256")
e("s_cbranch_scc1 L_end")
e("v_lshrrev_b32 v2, 6, v0")
e("v_and_b32 v1, 63, v0")
e(f"v_readfirstlane_b32 s{S_W}, v2")
e(f"s_and_b32 s{S_J}, s2, 7")
e(f"s_lshr_b32 s{S_IDX}, s2, 3")
e(f"s_and_b32 s{S_I}, s{S_IDX}, 3")
e(f"s_lshr_b32 s{S_BP}, s{S_IDX}, 2")
e(f"s_lshl_b32 s{S_H}, s{S_J}, 2")
e(f"s_add_u32 s{S_H}, s{S_H}, s{S_I}")
e(f"s_cmp_lt_u32 s{S_W}, 4")
e("s_cbranch_scc1 L_compute")

S_L, S_KX, S_KW, S_XK, S_SO, S_LX, S_LW, S_XB, S_WB, S_KVB = S_A
V_OW, V_OXA, V_OXB, V_OV, V_OKA, V_OKB, V_OOB, V_PF, LDUMMY = 10, 11, 12, 13, 14, 15, 16, 17, 18
V_OWO = 20
S_KB2, S_VB2, S_FLB, S_KD, S_VD, S_WOB = 4, 5, 6, 7, 8, 9
e(f"s_sub_u32 s{S_L}, s{S_W}, 4")
e("v_lshrrev_b32 v2, 3, v1")
e("v_and_b32 v3, 7, v1")
e("v_lshrrev_b32 v4, 1, v2")
e("v_lshlrev_b32 v5, 1, v4")
e("v_xor_b32 v5, v5, v3")
e("v_lshlrev_b32 v5, 4, v5")
e("v_lshrrev_b32 v6, 2, v2")
e("v_lshlrev_b32 v6, 3, v6")
e("v_and_b32 v7, 3, v2")
e("v_add_u32 v6, v6, v7")
e("v_mul_u32_u24 v6, 12288, v6")
e(f"v_add_u32 v{V_OW}, v6, v5")
e("v_mul_u32_u24 v6, 1280, v2")
e("v_xor_b32 v7, v3, v4")
e("v_lshlrev_b32 v8, 4, v7")
e(f"s_and_b32 s{S_T1}, s{S_L}, 1")
e(f"s_lshl_b32 s{S_T2}, s{S_T1}, 6")
e(f"v_xor_b32 v8, s{S_T2}, v8")
e(f"v_add_u32 v{V_OXA}, v6, v8")
e("v_xor_b32 v9, 64, v8")
e(f"v_add_u32 v{V_OXB}, v6, v9")
e(f"s_mul_i32 s{S_XB}, s{S_BP}, {96*1280}")
e(f"s_mul_i32 s{S_T2}, s{S_L}, {24*1280}")
e(f"s_add_u32 s{S_XB}, s{S_XB}, s{S_T2}")
e(f"s_mul_i32 s{S_WB}, s{S_H}, 384")
e(f"s_lshr_b32 s{S_T0}, s{S_L}, 1")
e(f"s_mul_i32 s{S_T2}, s{S_T0}, {16*12288}")
e(f"s_add_u32 s{S_WB}, s{S_WB}, s{S_T2}")
e(f"s_mul_i32 s{S_T2}, s{S_T1}, {4*12288}")
e(f"s_add_u32 s{S_WB}, s{S_WB}, s{S_T2}")
e(f"s_mul_i32 s{S_KX}, s{S_BP}, 5")
e(f"s_lshr_b32 s{S_KX}, s{S_KX}, 2")
e(f"s_mul_i32 s{S_T2}, s{S_I}, 5")
e(f"s_lshr_b32 s{S_T2}, s{S_T2}, 1")
e(f"s_add_u32 s{S_KX}, s{S_KX}, s{S_T2}")
e(f"s_sub_u32 s{S_T2}, s{S_KX}, 10")
e(f"s_cmp_ge_u32 s{S_KX}, 10")
e(f"s_cselect_b32 s{S_KX}, s{S_T2}, s{S_KX}")
e(f"s_lshl_b32 s{S_KX}, s{S_KX}, 7")
e(f"s_mul_i32 s{S_LX}, s{S_L}, 3072")
e(f"s_lshl_b32 s{S_LW}, s{S_L}, 10")
e("s_waitcnt lgkmcnt(0)")
srd(R_X, S_X, 16*48*640*2)
srd(R_WQ, S_WQ, 640*6144*2)
def issue(s):
    buf = bufof(s)
    e(f"s_mul_i32 s{S_KW}, s{S_KX}, 6144"); e(f"s_add_u32 s{S_KW}, s{S_KW}, s{S_WB}"); e(f"s_add_u32 s{S_XK}, s{S_KX}, s{S_XB}")
    ws = [("w", ks, cg) for ks in range(2) for cg in range(3)]
    xs = [("x", a) for a in range(3)]
    for o in [xs[0], ws[0], ws[1], xs[1], ws[2], xs[2], ws[3], ws[4], ws[5]]:
        if o[0] == "w":
            _, ks, cg = o
            e(f"s_add_u32 m0, s{S_LW}, {buf*PITCH + XB + ks*12288 + cg*4096}")
            e(f"s_add_u32 s{S_SO}, s{S_KW}, {32*ks*12288 + cg*128}")
            e(f"buffer_load_dwordx4 v{V_OW}, {R(R_WQ)}, s{S_SO} offen lds")
        else:
            a = o[1]
            e(f"s_add_u32 m0, s{S_LX}, {buf*PITCH + a*1024}")
            e(f"s_add_u32 s{S_SO}, s{S_XK}, {8*a*1280}")
            e(f"buffer_load_dwordx4 v{V_OXB if a == 1 else V_OXA}, {R(R_X)}, s{S_SO} offen lds")
    e(f"s_add_u32 s{S_KX}, s{S_KX}, 128"); e(f"s_cmp_eq_u32 s{S_KX}, 1280"); e(f"s_cselect_b32 s{S_KX}, 0, s{S_KX}")
def flag(n):
    e(f"s_add_u32 m0, s{S_FLB}, {16*n}")
    e("s_mov_b64 exec, 1")
    e(f"buffer_load_dword v{V_OOB}, {R(R_X)}, 0 offen lds")
    e("s_mov_b64 exec, -1")
issue(0)
srd(R_K, S_K, 16*32*48*192*2)
srd(R_V, S_V, 16*32*48*192*2)
e(f"v_mov_b32 v{V_OOB}, 0x7ffffff0")
e(f"s_lshl_b32 s{S_FLB}, s{S_L}, 2")
e(f"s_add_u32 s{S_FLB}, s{S_FLB}, {SY_FLG}")
e("s_barrier")
flag(0)
issue(1); flag(1)
epoch_load()
srd(R_WO, S_WO, 6144*640*2)
srd(R_WS, S_WS, 268435456)
e("v_mul_u32_u24 v6, 384, v2")
e(f"v_add_u32 v{V_OV}, v6, v5")
e(f"v_add_u32 v{V_OKA}, v6, v8")
e(f"v_add_u32 v{V_OKB}, v6, v9")
e(f"s_lshl_b32 s{S_T2}, s{S_BP}, 1")
e(f"s_add_u32 s{S_T2}, s{S_T2}, s{S_T0}")
e(f"s_lshl_b32 s{S_T2}, s{S_T2}, 5")
e(f"s_add_u32 s{S_T2}, s{S_T2}, s{S_H}")
e(f"s_mul_i32 s{S_KVB}, s{S_T2}, 18432")
e(f"s_mul_i32 s{S_KD}, s{S_T0}, 18432")
e(f"s_mul_i32 s{S_T3}, s{S_T1}, 3072")
e(f"s_add_u32 s{S_KD}, s{S_KD}, s{S_T3}")
e(f"s_lshl_b32 s{S_VD}, s{S_T1}, 11")
e(f"s_lshl_b32 s{S_T3}, s{S_T0}, 10")
e(f"s_add_u32 s{S_VD}, s{S_VD}, s{S_T3}")
e(f"s_mul_i32 s{S_KB2}, s{S_T1}, {24*384}")
e(f"s_add_u32 s{S_KB2}, s{S_KB2}, s{S_KVB}")
e(f"s_mul_i32 s{S_VB2}, s{S_T1}, {8*384}")
e(f"s_add_u32 s{S_VB2}, s{S_VB2}, s{S_KVB}")
e(f"s_mul_i32 s{S_WOB}, s{S_J}, {768*1280}")
e(f"s_mul_i32 s{S_T2}, s{S_T0}, {96*1280}")
e(f"s_add_u32 s{S_WOB}, s{S_WOB}, s{S_T2}")
e(f"s_mul_i32 s{S_T2}, s{S_T1}, {16*1280}")
e(f"s_add_u32 s{S_WOB}, s{S_WOB}, s{S_T2}")
e(f"s_mul_i32 s{S_T2}, s{S_I}, 320")
e(f"s_add_u32 s{S_WOB}, s{S_WOB}, s{S_T2}")
e(f"s_mov_b32 s{S_T0}, 0x0ccccccd")
for n in range(5):
    e(f"v_add_u32 v2, {64*n}, v1")
    e(f"v_mul_hi_u32 v3, v2, s{S_T0}")
    e("v_mul_u32_u24 v4, 20, v3")
    e("v_sub_u32 v4, v2, v4")
    e("v_lshrrev_b32 v5, 1, v3")
    e("v_and_b32 v5, 2, v5")
    e("v_xor_b32 v4, v4, v5")
    e("v_mul_u32_u24 v3, 1280, v3")
    e(f"v_lshl_add_u32 v{V_OWO+n}, v4, 4, v3")
e("v_min_u32 v2, 59, v1")
e(f"v_lshlrev_b32 v{V_PF}, 7, v2")
V_T1, V_T2 = 26, 27
S_OT = 10
e(f"v_lshlrev_b32 v{V_T1}, 7, v1")
e("v_and_b32 v2, 7, v1")
e(f"v_lshlrev_b32 v{V_T2}, 7, v2")
e(f"s_mul_i32 s{S_OT}, s{S_T1}, 9216")
e(f"s_add_u32 s{S_OT}, s{S_OT}, s{S_KVB}")
def wopf():
    e(f"s_lshl_b32 s{S_T2}, s{S_IDX}, 2"); e(f"s_add_u32 s{S_T2}, s{S_T2}, s{S_L}")
    e(f"s_mul_i32 s{S_T2}, s{S_T2}, 7680"); e(f"s_mul_i32 s{S_T3}, s{S_J}, {768*1280}"); e(f"s_add_u32 s{S_T2}, s{S_T2}, s{S_T3}")
    e(f"buffer_load_dword v{LDUMMY}, v{V_PF}, {R(R_WO)}, s{S_T2} offen")
def extra(n):
    if n == args.otpos:
        e(f"s_add_u32 s{S_T2}, s{S_OT}, {WS_O + 8192}")
        e(f"buffer_load_dword v{LDUMMY}, v{V_T1}, {R(R_WS)}, s{S_OT} offen sc1")
        e(f"buffer_load_dword v{LDUMMY}, v{V_T2}, {R(R_WS)}, s{S_T2} offen sc1")
    if n == args.wppos: wopf()
issue(2); flag(2); extra(2)
issue(3); flag(3); extra(3)
for bi, (m, l) in enumerate(BARS[:-1]):
    e("s_barrier")
    if bi in (0, len(BARS)-2): stamp()
    for n in l: issue(n); flag(n); extra(n)
xline(S_T2)
e(f"s_load_dwordx4 s[12:15], s[{S_WS}:{S_WS+1}], s{S_T2} glc")
for a in range(3):
    for cg in range(3):
        e(f"s_add_u32 m0, s{S_KD}, {3*PITCH + cg*6144 + a*1024}")
        e(f"s_add_u32 s{S_SO}, s{S_KB2}, {8*a*384 + cg*128}")
        e(f"buffer_load_dwordx4 v{V_OKB if a == 1 else V_OKA}, {R(R_K)}, s{S_SO} offen {args.kvflag} lds")
flag(F_K)
extra(10)
e("s_barrier")
for kt in range(3):
    for cg in range(3):
        e(f"s_add_u32 m0, s{S_VD}, {kt*12288 + cg*4096}")
        e(f"s_add_u32 s{S_SO}, s{S_VB2}, {16*kt*384 + cg*128}")
        e(f"buffer_load_dwordx4 v{V_OV}, {R(R_V)}, s{S_SO} offen {args.kvflag} lds")
e("s_waitcnt lgkmcnt(0)")
e(f"s_add_u32 s{S_NONCE}, s{S_NONCE}, {NSTEP:#x}")
xval(S_T3)
e(f"s_xor_b32 s{S_T0}, s12, s{S_T3}")
for k in range(1, 4):
    e(f"s_xor_b32 s{S_T2}, s{12+k}, s{S_T3}")
    e(f"s_or_b32 s{S_T0}, s{S_T0}, s{S_T2}")
e(f"s_cmp_lg_u32 s{S_T0}, 0")
e("s_cbranch_scc1 L_nolocal")
if not args.nolocal: flag(F_LOC)
e.lab("L_nolocal")
flag(F_V)
extra(11)
stamp()
e(f"s_mul_i32 s{S_LW}, s{S_L}, 5120")
def wopf():
    e(f"s_lshl_b32 s{S_T2}, s{S_IDX}, 2"); e(f"s_add_u32 s{S_T2}, s{S_T2}, s{S_L}")
    e(f"s_mul_i32 s{S_T2}, s{S_T2}, 7680"); e(f"s_mul_i32 s{S_T3}, s{S_J}, {768*1280}"); e(f"s_add_u32 s{S_T2}, s{S_T2}, s{S_T3}")
    e(f"buffer_load_dword v{LDUMMY}, v{V_PF}, {R(R_WO)}, s{S_T2} offen")
def wounit(u, dep):
    hd, kk = divmod(u, 3)
    if kk == 0:
        e(f"s_add_u32 s{S_T0}, s{S_I}, {hd}")
        e(f"s_and_b32 s{S_T0}, s{S_T0}, 3")
        e(f"s_mul_i32 s{S_T0}, s{S_T0}, {192*1280}")
        e(f"s_add_u32 s{S_T0}, s{S_T0}, s{S_WOB}")
    e(f"s_add_u32 s{S_SO}, s{S_T0}, {kk*32*1280}")
    for n in range(5):
        e(f"s_add_u32 m0, s{S_LW}, {wo_lds(u) + n*1024}")
        if dep < 63: e(f"s_waitcnt vmcnt({dep})")
        e(f"buffer_load_dwordx4 v{V_OWO+n}, {R(R_WO)}, s{S_SO} offen lds")
    flag(F_WO + u)
e("s_barrier")
if args.wopf == 0: wopf()
e("s_barrier")
e("s_barrier")
stamp()
for u in range(6):
    wounit(u, args.wdep)
    if args.wopf == u+1: wopf()
    if u in (2, 5): stamp()
for (m, l) in REL:
    e("s_barrier")
    stamp()
    for u in l: wounit(u, args.wdep2)
    stamp()
e("s_waitcnt vmcnt(0)")
stamp()
if STAMPS:
    e("s_barrier"); e("s_barrier")
stamp_store()
e("s_endpgm")

stamp_n[0] = 1 if STAMPS else 0
e.lab("L_compute")
S_B, S_JH, S_OB, S_SO, S_CNT, S_F1, S_OB2, S_PB, S_F2, S_OUTB = S_A
V_L16, V_FL, V_OUT, V_SR, V_RDY = 10, 11, 12, 14, 15
V_AW, V_AX = 16, 22
FR = [32, 68]
ACC = 104
V_AV, V_AK, DUMMY = 176, 182, 191
QF = 192
SUMA, ONES, RINV = 228, 240, 244
V_SXW, V_SXR, V_LOC, V_FL8 = 250, 251, 252, 255
VA2 = [8, 9, 13, 188, 189, 190, 253, 254]
def va2(st, par, hi): return VA2[st*4 + par*2 + hi]
if args.prio: e(f"s_setprio {args.prio}")
e(f"v_lshlrev_b32 v{V_L16}, 4, v1")
e("v_lshlrev_b32 v2, 2, v0")
e(f"v_add_u32 v2, {SY_FLG}, v2")
e("v_mov_b32 v4, 1")
e("ds_write_b32 v2, v4")
e("s_getpc_b64 s[60:61]")
e.lab("L_pc")
e(f"s_sub_u32 s60, s60, L_pc-{NAME}")
e("s_subb_u32 s61, s61, 0")
e(f"s_lshl_b32 s{S_T0}, s{S_IDX}, 10")
e("v_and_b32 v2, 7, v1")
e("v_lshlrev_b32 v2, 7, v2")
e(f"v_add_u32 v2, s{S_T0}, v2")
e(f"global_load_dword v{DUMMY}, v2, s[60:61]")
e("s_waitcnt lgkmcnt(0)")
e("s_barrier")
epoch_load()
srd(R_OUT, S_OUT, 16*48*640*2)
srd(R_WS, S_WS, 268435456)
e(f"s_mov_b32 s{S_BUD}, 0")
e(f"s_lshr_b32 s{S_B}, s{S_W}, 1")
e(f"s_and_b32 s{S_JH}, s{S_W}, 1")
e("v_lshrrev_b32 v2, 4, v1")
e("v_and_b32 v3, 15, v1")
e("v_mul_u32_u24 v4, 1280, v3")
e(f"v_lshl_add_u32 v{V_OUT}, v2, 3, v4")
e("v_and_b32 v4, 7, v1")
e(f"v_lshlrev_b32 v{V_FL8}, 2, v4")
e("v_and_b32 v4, 3, v1")
e(f"v_lshlrev_b32 v{V_FL}, 3, v4")
e("v_lshlrev_b32 v5, 2, v4")
e(f"v_add_u32 v{V_SR}, {SY_FLG}, v5")
e(f"s_xor_b32 s{S_T3}, s{S_W}, 1")
e(f"s_mul_i32 s{S_T2}, s{S_W}, 9216")
e(f"s_mul_i32 s{S_T1}, s{S_T3}, 9216")
e(f"v_add_u32 v{V_SXW}, s{S_T2}, v{V_L16}")
e(f"v_add_u32 v{V_SXR}, s{S_T1}, v{V_L16}")
for r in range(4): e(f"v_mov_b32 v{ONES+r}, 0x3f803f80")
e("v_lshrrev_b32 v8, 1, v3")
e("v_xor_b32 v4, v8, v2")
e("v_lshlrev_b32 v4, 4, v4")
e("v_lshl_add_u32 v4, v3, 7, v4")
e(f"s_mul_i32 s{S_T2}, s{S_B}, 6144")
e(f"v_add_u32 v{V_AX}, s{S_T2}, v4")
e(f"v_xor_b32 v{V_AX+1}, 64, v{V_AX}")
e(f"v_add_u32 v{V_AX+8}, {2*PITCH}, v{V_AX}")
e(f"v_add_u32 v{V_AX+9}, {2*PITCH}, v{V_AX+1}")
e("v_lshrrev_b32 v9, 1, v2")
e("v_xor_b32 v9, v9, v8")
e("v_and_b32 v4, 1, v2")
e("v_lshlrev_b32 v4, 3, v4")
e("v_lshl_add_u32 v4, v3, 7, v4")
e(f"s_mul_i32 s{S_T2}, s{S_JH}, 12")
e(f"s_mul_i32 s{S_T1}, s{S_B}, 18432")
e(f"s_add_u32 s{S_T1}, s{S_T1}, {3*PITCH}")
for k in range(6):
    e(f"s_add_u32 s{S_T3}, s{S_T2}, {2*k}")
    e(f"s_and_b32 s{S_T0}, s{S_T3}, 7")
    e(f"s_lshr_b32 s{S_T3}, s{S_T3}, 3")
    e(f"s_mul_i32 s{S_T3}, s{S_T3}, 6144")
    e(f"s_add_u32 s{S_T3}, s{S_T3}, s{S_T1}")
    e(f"v_xor_b32 v6, s{S_T0}, v9")
    e(f"v_lshl_add_u32 v6, v6, 4, v4")
    e(f"v_add_u32 v{V_AK+k}, s{S_T3}, v6")
e("v_lshrrev_b32 v4, 2, v1")
e("v_and_b32 v4, 7, v4")
e("v_lshrrev_b32 v5, 5, v1")
e("v_lshlrev_b32 v5, 11, v5")
e("v_lshl_add_u32 v5, v4, 7, v5")
e("v_and_b32 v6, 3, v1")
e("v_lshl_add_u32 v5, v6, 3, v5")
e("v_lshrrev_b32 v4, 1, v4")
e(f"s_mul_i32 s{S_T2}, s{S_JH}, 6")
e(f"s_lshl_b32 s{S_T1}, s{S_B}, 10")
e(f"s_sub_u32 s{S_T1}, s{S_T1}, {XB}")
for t in range(6):
    e(f"s_add_u32 s{S_T3}, s{S_T2}, {t}")
    e(f"s_and_b32 s{S_T0}, s{S_T3}, 3")
    e(f"s_lshr_b32 s{S_T3}, s{S_T3}, 2")
    e(f"s_lshl_b32 s{S_T3}, s{S_T3}, 12")
    e(f"s_add_u32 s{S_T3}, s{S_T3}, {XB}")
    e(f"v_xor_b32 v6, s{S_T0}, v4")
    e(f"v_lshl_add_u32 v6, v6, 5, v5")
    e(f"v_add_u32 v{V_AW+t}, s{S_T3}, v6")
    e(f"v_add_u32 v{V_AW+8+t}, {2*PITCH}, v{V_AW+t}")
    e(f"v_add_u32 v{V_AV+t}, s{S_T1}, v{V_AW+t}")
e(f"s_lshl_b32 s{S_T2}, s{S_BP}, 1")
e(f"s_add_u32 s{S_T2}, s{S_T2}, s{S_B}")
e(f"s_mul_i32 s{S_OUTB}, s{S_T2}, {48*1280}")
e(f"s_lshl_b32 s{S_T2}, s{S_T2}, 3")
e(f"s_add_u32 s{S_T2}, s{S_T2}, s{S_J}")
e(f"s_mul_i32 s{S_OB2}, s{S_T2}, {4*18432}")
e(f"s_mul_i32 s{S_T3}, s{S_JH}, 9216")
e(f"s_add_u32 s{S_OB2}, s{S_OB2}, s{S_T3}")
e(f"s_mul_i32 s{S_T3}, s{S_I}, 18432")
e(f"s_add_u32 s{S_OB}, s{S_OB2}, s{S_T3}")
e(f"s_lshl_b32 s{S_F1}, s{S_T2}, 7")
e(f"s_lshl_b32 s{S_T3}, s{S_JH}, 2")
e(f"s_add_u32 s{S_F1}, s{S_F1}, s{S_T3}")
e(f"s_add_u32 s{S_F1}, s{S_F1}, {WS_F1}")
e(f"s_mul_i32 s{S_T3}, s{S_I}, 320")
e(f"s_add_u32 s{S_OUTB}, s{S_OUTB}, s{S_T3}")
e(f"s_mul_i32 s{S_T3}, s{S_JH}, 160")
e(f"s_add_u32 s{S_OUTB}, s{S_OUTB}, s{S_T3}")
e("v_lshrrev_b32 v2, 2, v1")
e("v_mul_u32_u24 v2, 320, v2")
e("v_and_b32 v3, 3, v1")
e("v_lshl_add_u32 v2, v3, 3, v2")
e("v_lshrrev_b32 v3, 4, v1")
e("v_and_b32 v3, 1, v3")
e("v_lshlrev_b32 v3, 5, v3")
e("v_add_u32 v4, v2, v3")
e("v_sub_u32 v5, v2, v3")
e(f"s_mul_i32 s{S_T0}, s{S_JH}, {32*320}")
e(f"s_add_u32 s{S_T0}, s{S_T0}, {PITCH}")
e(f"s_cmp_eq_u32 s{S_JH}, 0")
e("s_cselect_b64 vcc, -1, 0")
e(f"s_cselect_b32 s{S_T1}, 160, 0")
e(f"s_cselect_b32 s{S_T2}, 0, 160")
e(f"s_add_u32 s{S_T1}, s{S_T1}, s{S_T0}")
e(f"s_add_u32 s{S_T2}, s{S_T2}, s{S_T0}")
e("v_cndmask_b32 v6, v4, v5, vcc")
e("v_cndmask_b32 v7, v5, v4, vcc")
e(f"v_add_u32 v{va2(0,0,0)}, s{S_T1}, v6")
e(f"v_add_u32 v{va2(0,1,0)}, s{S_T1}, v7")
e(f"v_add_u32 v{va2(1,0,0)}, s{S_T2}, v7")
e(f"v_add_u32 v{va2(1,1,0)}, s{S_T2}, v6")
for st in range(2):
    for par in range(2): e(f"v_add_u32 v{va2(st,par,1)}, 61440, v{va2(st,par,0)}")
cs = (192 ** -0.5) * math.log2(math.e)
cbits = struct.unpack("<I", struct.pack("<f", cs))[0]
S_SC = S_T4
e(f"s_mov_b32 s{S_SC}, {cbits:#x}")
e("s_waitcnt lgkmcnt(0)")
e(f"s_add_u32 s{S_NONCE}, s{S_NONCE}, {NSTEP:#x}")
e(f"s_cmp_lg_u32 s{S_W}, 0")
e("s_cbranch_scc1 L_nox")
xval(S_T3)
xline(S_T2)
e(f"s_lshl_b32 s{S_T1}, s{S_I}, 2")
e(f"s_add_u32 s{S_T2}, s{S_T2}, s{S_T1}")
e(f"v_mov_b32 v2, s{S_T3}")
e("v_mov_b32 v3, 0")
e("s_mov_b64 exec, 1")
e(f"buffer_store_dword v2, v3, {R(R_WS)}, s{S_T2} offen sc1")
e("s_mov_b64 exec, -1")
e.lab("L_nox")

slow = []
def fread(n): return f"ds_read_b32 v{V_RDY}, v{V_SR} offset:{16*n}"
def fcmp(): e(f"v_cmp_ne_u32 vcc, 0, v{V_RDY}")
def check(n):
    e(f"s_cbranch_vccnz L_slow{n}")
    e.lab(f"L_cont{n}")
    slow.append(n)
def fwait(n):
    e(f"s_branch L_slow{n}")
    e.lab(f"L_cont{n}")
    slow.append(n)
def read_ops(s, ks, fs):
    buf = bufof(s)
    aset = 8*(buf//2); boff = (buf % 2)*PITCH
    F = FR[fs]
    def xr(qt): return f"ds_read_b128 {vr(F+24+4*qt,4)}, v{V_AX+aset+ks} offset:{boff+qt*2048}"
    def wr(t, m): return f"ds_read_b64_tr_b16 {vr(F+4*t+2*m,2)}, v{V_AW+aset+t} offset:{boff+ks*12288+m*1024}"
    ops = [xr(0), wr(0,0), wr(0,1), xr(1), xr(2)]
    for t in range(1, 6): ops += [wr(t,0), wr(t,1)]
    return ops
def mfma_ops(fs, first):
    F = FR[fs]; ops = []
    for t in range(6):
        for qt in range(3):
            d = ACC + (t*3+qt)*4
            c = "0" if first else vr(d,4)
            ops.append(f"v_mfma_f32_16x16x32_bf16 {vr(d,4)}, {vr(F+4*t,4)}, {vr(F+24+4*qt,4)}, {c}")
    return ops
def interleave(mf, reads, dmas, first2=4):
    n = len(mf); rq = list(reads); dq = list(dmas)
    for k, m in enumerate(mf):
        e(m)
        for _ in range(2 if k < first2 else 1):
            if rq: e(rq.pop(0))
        if dq and k >= 1:
            per = max(1, math.ceil(len(dq) / max(1, n - 1 - k)))
            for _ in range(per):
                if dq: e.emit(dq.pop(0))
    assert not rq and not dq
def merge(mf, fill, per, start=0):
    fq = list(fill)
    for k, m in enumerate(mf):
        e(m)
        if k >= start:
            for _ in range(per):
                if fq: e.emit(fq.pop(0))
    return fq

fwait(0)
stamp()
KF, SA, SB, VF = 32, 68, 104, 32
for x in read_ops(0, 0, 0): e(x)
STS = [int(x) for x in args.st.split(",")]
for s in range(10):
    e.c(f"--- stage {s} kstep 0")
    e("s_waitcnt lgkmcnt(0)")
    interleave(mfma_ops(0, s == 0), read_ops(s, 1, 1) + ([fread(s+1)] if s < 9 else []), [])
    e("s_waitcnt lgkmcnt(0)")
    e.c(f"--- stage {s} kstep 1")
    mf = mfma_ops(1, False)
    if s < 9: fcmp()
    e(mf[0])
    if s in [m for m, l in BARS]: e("s_barrier")
    if s < 9: check(s+1)
    if s in STS: stamp()
    if s < 9:
        interleave(mf[1:], read_ops(s+1, 0, 0), [])
kreads = [f"ds_read_b64 {vr(KF+(kt*3+u)*4+2*ee,2)}, v{V_AK+2*u+ee} offset:{kt*2048}" for u in range(3) for kt in range(3) for ee in range(2)]
def qcvt(u):
    ops = []
    for hh in range(2):
        for qt in range(3):
            q = QF + (u*3+qt)*4
            a = ACC + ((2*u+hh)*3+qt)*4
            ops += [f"v_cvt_pk_bf16_f32 v{q+2*hh}, v{a}, v{a+1}", f"v_cvt_pk_bf16_f32 v{q+2*hh+1}, v{a+2}, v{a+3}"]
    return ops
fill = qcvt(0) + qcvt(1) + qcvt(2)
fill = merge(mf[1:], fill, 2, start=8)
for x in fill[:6]: e(x)
fill = fill[6:]
stamp()
fwait(F_K)
stamp()
for x in kreads: e(x)
for x in fill: e(x)
e("s_barrier")
def smf(u, kt, qt):
    d = SA + (kt*3+qt)*4
    c = "0" if u == 0 else vr(d,4)
    return f"v_mfma_f32_16x16x32_bf16 {vr(d,4)}, {vr(KF+(kt*3+u)*4,4)}, {vr(QF+(u*3+qt)*4,4)}, {c}"
for u in range(2):
    e(f"s_waitcnt lgkmcnt({12-6*u})")
    for kt in range(3):
        for qt in range(3): e(smf(u, kt, qt))
e("s_waitcnt lgkmcnt(0)")
for qt in range(3):
    for kt in range(3): e(smf(2, kt, qt))
e("s_nop 1")
for qt in range(3):
    for kt in range(3):
        k = kt*3+qt
        e(f"ds_write_b128 v{V_SXW}, {vr(SA+4*k,4)} offset:{PITCH + k*1024}")
e("s_waitcnt lgkmcnt(0)")
e("s_barrier")
stamp()
vreads = [f"ds_read_b64_tr_b16 {vr(VF+6*t+2*kt,2)}, v{V_AV+t} offset:{kt*12288}" for t in range(6) for kt in range(3)]
for qt in range(3):
    for kt in range(3):
        k = kt*3+qt
        e(f"ds_read_b128 {vr(SB+4*k,4)}, v{V_SXR} offset:{PITCH + k*1024}")
def sreg(kt, qt, r): return SA + (kt*3+qt)*4 + r
M = [2, 3, 4]; T = [5, 6, 7]
for qt in range(3):
    e(f"s_waitcnt lgkmcnt({6-3*qt})")
    if qt == 2: e("s_barrier")
    for kt in range(3):
        k = kt*3+qt
        for h2 in range(2):
            e(f"v_pk_add_f32 {vr(SA+4*k+2*h2,2)}, {vr(SA+4*k+2*h2,2)}, {vr(SB+4*k+2*h2,2)}")
    vals = [sreg(kt, qt, r) for kt in range(3) for r in range(4)]
    e(f"v_max3_f32 v{M[qt]}, v{vals[0]}, v{vals[1]}, v{vals[2]}")
    for k in range(3, 11, 2):
        e(f"v_max3_f32 v{M[qt]}, v{M[qt]}, v{vals[k]}, v{vals[k+1]}")
    e(f"v_max_f32 v{M[qt]}, v{M[qt]}, v{vals[11]}")
for sw in ("v_permlane32_swap_b32", "v_permlane16_swap_b32"):
    for qt in range(3): e(f"v_mov_b32 v{T[qt]}, v{M[qt]}")
    for qt in range(3): e(f"{sw} v{M[qt]}, v{T[qt]}")
    for qt in range(3): e(f"v_max_f32 v{M[qt]}, v{M[qt]}, v{T[qt]}")
for qt in range(3): e(f"v_mul_f32 v{M[qt]}, s{S_SC}, v{M[qt]}")
PF = QF
def Bops(qt):
    ops = []
    for kt in range(3):
        for r in range(4):
            x = sreg(kt, qt, r); ops.append(f"v_fma_f32 v{x}, v{x}, s{S_SC}, -v{M[qt]}")
    for kt in range(3):
        for r in range(4):
            x = sreg(kt, qt, r); ops.append(f"v_exp_f32 v{x}, v{x}")
    for kt in range(3):
        x = sreg(kt, qt, 0)
        ops += [f"v_cvt_pk_bf16_f32 v{PF+6*qt+2*kt}, v{x}, v{x+1}", f"v_cvt_pk_bf16_f32 v{PF+6*qt+2*kt+1}, v{x+2}, v{x+3}"]
    return ops
def SUMops(qt):
    d = SUMA + 4*qt
    return [f"v_mfma_f32_16x16x32_bf16 {vr(d,4)}, {vr(ONES,4)}, {vr(PF+6*qt,4)}, 0",
            f"v_mfma_f32_16x16x16_bf16 {vr(d,4)}, {vr(ONES,2)}, {vr(PF+6*qt+4,2)}, {vr(d,4)}"]
def PVops(qt):
    a = []; b = []
    for t in range(6):
        d = ACC + (t*3+qt)*4
        a.append(f"v_mfma_f32_16x16x32_bf16 {vr(d,4)}, {vr(VF+6*t,4)}, {vr(PF+6*qt,4)}, 0")
        b.append(f"v_mfma_f32_16x16x16_bf16 {vr(d,4)}, {vr(VF+6*t+4,2)}, {vr(PF+6*qt+4,2)}, {vr(d,4)}")
    return a + b
def Eops(qt, oflag):
    ops = []
    for u in range(3):
        q = SA + (u*3+qt)*4
        for hh in range(2):
            a = ACC + ((2*u+hh)*3+qt)*4
            for h2 in range(2):
                ops.append(f"v_pk_mul_f32 {vr(a+2*h2,2)}, {vr(a+2*h2,2)}, {vr(RINV+2*qt,2)} op_sel_hi:[1,0]")
        for hh in range(2):
            a = ACC + ((2*u+hh)*3+qt)*4
            ops += [f"v_cvt_pk_bf16_f32 v{q+2*hh}, v{a}, v{a+1}", f"v_cvt_pk_bf16_f32 v{q+2*hh+1}, v{a+2}, v{a+3}"]
        ops.append([f"s_add_u32 s{S_SO}, s{S_OB}, {WS_O + u*3072}",
                    f"buffer_store_dwordx4 {vr(q,4)}, v{V_L16}, {R(R_WS)}, s{S_SO} offen offset:{qt*1024} {oflag}"])
    return ops
for qt in range(3):
    b = Bops(qt)
    if qt == 0:
        for x in b: e(x)
    else:
        sm = SUMops(qt-1)
        e(sm[0])
        for x in b[:12]: e(x)
        e(sm[1])
        for x in b[12:]: e(x)
sm = SUMops(2)
e(f"v_rcp_f32 v{RINV}, v{SUMA}")
e(f"v_rcp_f32 v{RINV+2}, v{SUMA+4}")
e(sm[0])
stamp()
fwait(F_V)
e(f"ds_read_b32 v{V_LOC}, v{V_SR} offset:{16*F_LOC}")
for x in vreads: e(x)
e(sm[1])
stamp(wait=False)
e(f"v_mov_b32 v2, s{S_NONCE}")
e(f"s_lshl_b32 s{S_T0}, s{S_I}, 3")
e(f"v_mov_b32 v3, s{S_T0}")
e("s_waitcnt lgkmcnt(0)")
e(f"v_cmp_ne_u32 vcc, 0, v{V_LOC}")
pv0 = PVops(0); pv1 = PVops(1); pv2 = PVops(2)
for x in pv0[:6]: e(x)
e(f"v_rcp_f32 v{RINV+4}, v{SUMA+8}")
for x in pv1[:3]: e(x)
e(f"s_or_b32 s{S_LOC}, vcc_lo, vcc_hi")
for x in pv0[6:]: e(x)
for x in pv1[3:6]: e(x)
e("s_cbranch_vccnz L_pubslow")
def publish(oflag):
    rest = pv2[:3] + pv1[6:] + pv2[3:6]
    f = merge(rest, Eops(0, oflag), 2, start=2)
    f = merge(pv2[6:], f + Eops(1, oflag), 2)
    for x in f: e.emit(x)
    for x in Eops(2, oflag): e.emit(x)
publish("")
e.lab("L_pubdone")
if args.p2st: stamp_n[0] = 1
stamp()
AF = [16, 36]; ACC2 = [104, 192]
def ofr(u, qt):
    hd, kk = divmod(u, 3)
    if hd % 2 == 0: b = SA + 12*kk
    else: b = [56, 164, 176][kk]
    return vr(b + 4*qt, 4)
def rd(step):
    u, st = divmod(step, 2); fs = step % 2
    ops = []
    for tt in range(5):
        for m in range(2):
            off = wo_lds(u) - PITCH + m*5120 + tt*32
            hi = 0
            if off >= 61440: off -= 61440; hi = 1
            ops.append(f"ds_read_b64_tr_b16 {vr(AF[fs]+4*tt+2*m,2)}, v{va2(st, tt % 2, hi)} offset:{off}")
    return ops
def p2mf(step):
    u, st = divmod(step, 2); fs = step % 2
    out = []
    for tt in range(5):
        for qt in range(3):
            d = ACC2[st] + (tt*3+qt)*4
            c = "0" if u == 0 else vr(d, 4)
            out.append(f"v_mfma_f32_16x16x32_bf16 {vr(d,4)}, {vr(AF[fs]+4*tt,4)}, {ofr(u,qt)}, {c}")
    return out
def oload(u):
    hd, kk = divmod(u, 3)
    ops = []
    if kk == 0:
        ops += [f"s_add_u32 s{S_T1}, s{S_I}, {hd}", f"s_and_b32 s{S_T1}, s{S_T1}, 3", f"s_mul_i32 s{S_T1}, s{S_T1}, 18432", f"s_add_u32 s{S_T1}, s{S_T1}, s{S_OB2}"]
    ops.append(f"s_add_u32 s{S_SO}, s{S_T1}, {WS_O + kk*3072}")
    for qt in range(3):
        ops.append((f"buffer_load_dwordx4 {ofr(u,qt)}, v{V_L16}, {R(R_WS)}, s{S_SO} offen offset:{qt*1024} sc1", f"o{u}"))
    return ops
def poll(lab, soff, vfl):
    e(f"s_mov_b32 s{S_CNT}, 0")
    e.lab(lab)
    e(f"buffer_load_dword v4, v{vfl}, {R(R_WS)}, s{soff} offen sc1")
    e(f"s_add_u32 s{S_CNT}, s{S_CNT}, 1")
    e(f"s_cmp_ge_u32 s{S_CNT}, 100000")
    e(f"s_cbranch_scc1 {lab}_done")
    e("s_waitcnt vmcnt(0)")
    e(f"v_cmp_ne_u32 vcc, s{S_NONCE}, v4")
    e(f"s_cbranch_vccz {lab}_done")
    if args.sleep: e(f"s_sleep {args.sleep}")
    e(f"s_branch {lab}")
    e.lab(lab + "_done")
    e("s_waitcnt vmcnt(0)")
    e.vm = []
fwait(F_WO)
for x in rd(0): e(x)
RELM = [m for m, l in REL]
APOLL = [int(x) for x in args.apoll.split(",") if x]
S_GOT = 16
if APOLL: assert args.r1n == 3
YREG = PITCH + 0
for step in range(24):
    u, st = divmod(step, 2)
    if step == 6:
        stamp()
        if APOLL:
            e(f"s_cmp_lg_u32 s{S_GOT}, 0")
            e("s_cbranch_scc1 L_got6")
        poll("L_poll1", S_F1, V_FL)
        for uu in range(3, 3 + args.r1n): e.emit(oload(uu))
        e.lab("L_got6")
        stamp()
        if args.late2 and 2 in RELM: e("s_barrier")
    if st == 0 and u >= 3: e.vmwait(f"o{u}", extra=" lgkmcnt(0)")
    else: e("s_waitcnt lgkmcnt(0)")
    if step == 6 or (args.p2st and st == 0 and u > 3): stamp()
    mf = p2mf(step)
    rq = rd(step+1) if step < 23 else []
    dm = []
    if st == 0 and u < 11: rq = rq + [fread(F_WO + u + 1)]
    if st == 1:
        if u < 11: fcmp()
        e(mf[0]); mf = mf[1:]
        if (u in RELM and not (u == 2 and args.late2)) or u == 9: e("s_barrier")
        if u < 11: check(F_WO + u + 1)
    if step == args.ackstep:
        e(mf[0]); mf = mf[1:]
        e("s_waitcnt vmcnt(0)")
        e(f"s_cmp_lg_u32 s{S_LOC}, 0")
        e("s_cbranch_scc1 L_fslow")
        e(f"buffer_store_dword v2, v3, {R(R_WS)}, s{S_F1} offen")
        e.lab("L_fdone")
        if APOLL:
            e(f"s_mov_b32 s{S_GOT}, 0")
            e(f"buffer_load_dword v4, v{V_FL}, {R(R_WS)}, s{S_F1} offen sc1")
    if step in APOLL:
        k = 3
        for x in mf[:k]:
            e(x)
            if rq: e(rq.pop(0))
            if rq: e(rq.pop(0))
        mf = mf[k:]
        e(f"s_cmp_lg_u32 s{S_GOT}, 0")
        e(f"s_cbranch_scc1 L_ap{step}_d")
        e("s_waitcnt vmcnt(0)")
        e(f"v_cmp_ne_u32 vcc, s{S_NONCE}, v4")
        e(f"s_cbranch_vccz L_ap{step}_g")
        if step != APOLL[-1]: e(f"buffer_load_dword v4, v{V_FL}, {R(R_WS)}, s{S_F1} offen sc1")
        e.lab(f"L_ap{step}_d")
    nxt = None
    if st == 0 and 6 <= u <= 8: nxt = u + 3
    if st == 0 and 3 <= u <= 5 and u + 3 >= 3 + args.r1n: nxt = u + 3
    if nxt is not None:
        o = oload(nxt)
        dm = [o[:-2], o[-2:-1], o[-1:]]
    if step == 22:
        e(f"s_mul_i32 s{S_T0}, s{S_W}, 15360")
        e(f"s_xor_b32 s{S_T2}, s{S_W}, 1")
        e(f"s_mul_i32 s{S_T2}, s{S_T2}, 15360")
        e(f"v_add_u32 v5, s{S_T0}, v{V_L16}")
        e(f"v_add_u32 v6, s{S_T2}, v{V_L16}")
    if step < 23:
        interleave(mf, rq, dm, first2=2)
    else:
        w = [f"ds_write_b128 v5, {vr(ACC2[0]+4*k,4)} offset:{YREG + k*1024}" for k in range(15)]
        for x in merge(mf, w, 1): e(x)
e("s_waitcnt lgkmcnt(0)")
e("s_barrier")
for k in range(15):
    e(f"ds_read_b128 {vr(ACC2[0]+4*k,4)}, v6 offset:{YREG + k*1024}")
stamp(wait=False)
e(f"s_lshl_b32 s{S_T0}, s{S_IDX}, 2")
e(f"s_add_u32 s{S_T0}, s{S_T0}, s{S_W}")
e(f"s_lshl_b32 s{S_F2}, s{S_T0}, 10")
e(f"s_add_u32 s{S_F2}, s{S_F2}, {WS_F2}")
e(f"s_lshl_b32 s{S_PB}, s{S_T0}, 16")
e(f"s_add_u32 s{S_PB}, s{S_PB}, {WS_P}")
e(f"s_lshl_b32 s{S_T1}, s{S_J}, 10")
e(f"s_add_u32 s{S_T1}, s{S_T1}, s{S_PB}")
if STAMPS: e("s_waitcnt lgkmcnt(0)")
for p in range(8):
    q = 16 + 4*p
    for z in range(2):
        k = 2*p+z
        if k < 15:
            e(f"s_waitcnt lgkmcnt({14-k})")
            a = ACC2[1] + 4*k; b = ACC2[0] + 4*k
            for h2 in range(2):
                e(f"v_pk_add_f32 {vr(a+2*h2,2)}, {vr(a+2*h2,2)}, {vr(b+2*h2,2)}")
        a = ACC2[1] + min(k, 14)*4
        e(f"v_cvt_pk_bf16_f32 v{q+2*z}, v{a}, v{a+1}")
        e(f"v_cvt_pk_bf16_f32 v{q+2*z+1}, v{a+2}, v{a+3}")
    e(f"s_add_u32 s{S_SO}, s{S_T1}, {p*8192}")
    e(f"buffer_store_dwordx4 {vr(q,4)}, v{V_L16}, {R(R_WS)}, s{S_SO} offen sc1")
e(f"s_lshl_b32 s{S_T1}, s{S_J}, 2")
e(f"s_add_u32 s{S_T1}, s{S_T1}, s{S_F2}")
e(f"v_lshlrev_b32 v5, 5, v{V_FL8}")
e(f"s_lshl_b32 s{S_T2}, s{S_J}, 7")
e(f"s_add_u32 s{S_F2}, s{S_F2}, s{S_T2}")
e("s_mov_b64 exec, 0xff")
e("s_waitcnt vmcnt(0)")
e(f"buffer_store_dword v2, v5, {R(R_WS)}, s{S_T1} offen sc1")
D = args.f2atom
e(f"s_mov_b32 s{S_CNT}, 0")
for k in range(D-1):
    e(f"v_mov_b32 v{24+k}, 0")
    e(f"buffer_atomic_or v{24+k}, v{V_FL8}, {R(R_WS)}, s{S_F2} offen sc0 sc1")
    e(f"s_sleep {args.f2sleep}")
e.lab("L_poll2")
for k in range(D):
    nw = (k + D - 1) % D
    e(f"v_mov_b32 v{24+nw}, 0")
    e(f"buffer_atomic_or v{24+nw}, v{V_FL8}, {R(R_WS)}, s{S_F2} offen sc0 sc1")
    e(f"s_waitcnt vmcnt({D-1})")
    e(f"v_cmp_ne_u32 vcc, s{S_NONCE}, v{24+k}")
    e("s_cbranch_vccz L_poll2_done")
    e(f"s_sleep {args.f2sleep}")
e(f"s_add_u32 s{S_CNT}, s{S_CNT}, 1")
e(f"s_cmp_lt_u32 s{S_CNT}, 50000")
e("s_cbranch_scc1 L_poll2")
e.lab("L_poll2_done")
e("s_mov_b64 exec, -1")
stamp()
e(f"s_lshl_b32 s{S_T1}, s{S_J}, 13")
e(f"s_add_u32 s{S_T1}, s{S_T1}, s{S_PB}")
e(f"s_add_u32 s{S_T2}, s{S_T1}, 4096")
for jj in range(8):
    e(f"buffer_load_dwordx4 {vr(64+4*jj,4)}, v{V_L16}, {R(R_WS)}, s{S_T1 if jj < 4 else S_T2} offen offset:{(jj%4)*1024} sc1")
e(f"s_mov_b32 s{S_T4}, 0xffff0000")
for jj in range(8):
    e(f"s_waitcnt vmcnt({7-jj})")
    dst = 100 if jj == 0 else 108
    for d in range(4):
        e(f"v_lshlrev_b32 v{dst+2*d}, 16, v{64+4*jj+d}")
        e(f"v_and_b32 v{dst+2*d+1}, s{S_T4}, v{64+4*jj+d}")
    if jj:
        for d in range(4):
            e(f"v_pk_add_f32 {vr(100+2*d,2)}, {vr(100+2*d,2)}, {vr(108+2*d,2)}")
res = [100, 104]
for z in range(2):
    b = res[z]
    e(f"v_cvt_pk_bf16_f32 v{20+2*z}, v{b}, v{b+1}")
    e(f"v_cvt_pk_bf16_f32 v{21+2*z}, v{b+2}, v{b+3}")
    e(f"s_lshl_b32 s{S_T0}, s{S_J}, 1")
    e(f"s_add_u32 s{S_T0}, s{S_T0}, {z}")
    if z == 1:
        e(f"s_cmp_eq_u32 s{S_T0}, 15")
        e("s_cbranch_scc1 L_fin")
    e(f"s_mul_i32 s{S_T1}, s{S_T0}, 11")
    e(f"s_lshr_b32 s{S_T1}, s{S_T1}, 5")
    e(f"s_mul_i32 s{S_T2}, s{S_T1}, 3")
    e(f"s_sub_u32 s{S_T2}, s{S_T0}, s{S_T2}")
    e(f"s_lshl_b32 s{S_T1}, s{S_T1}, 5")
    e(f"s_mul_i32 s{S_T2}, s{S_T2}, {16*1280}")
    e(f"s_add_u32 s{S_SO}, s{S_OUTB}, s{S_T1}")
    e(f"s_add_u32 s{S_SO}, s{S_SO}, s{S_T2}")
    e(f"buffer_store_dwordx2 {vr(20+2*z,2)}, v{V_OUT}, {R(R_OUT)}, s{S_SO} offen {args.outflag}")
e.lab("L_fin")
e(f"s_or_b32 s{S_T0}, s{S_J}, s{S_I}")
e(f"s_cmp_lg_u32 s{S_T0}, 0")
e("s_cbranch_scc1 L_noep")
e("s_barrier")
e(f"s_cmp_lg_u32 s{S_W}, 0")
e("s_cbranch_scc1 L_noep")
e(f"s_lshl_b32 s{S_T2}, s{S_BP}, 7")
e(f"s_add_u32 s{S_T2}, s{S_T2}, {WS_E}")
e("s_mov_b64 exec, 1")
e(f"buffer_store_dword v2, v3, {R(R_WS)}, s{S_T2} offen sc1")
e("s_mov_b64 exec, -1")
e.lab("L_noep")
if STAMPS:
    e("s_waitcnt vmcnt(0)")
    stamp()
stamp_store()
e.lab("L_end")
e("s_endpgm")
e.lab("L_pubslow")
e("s_nop 7")
publish("sc1")
e("s_branch L_pubdone")
e.lab("L_fslow")
e(f"buffer_store_dword v2, v3, {R(R_WS)}, s{S_F1} offen sc1")
e("s_branch L_fdone")
for st_ in APOLL:
    e.lab(f"L_ap{st_}_g")
    for uu in range(3, 6):
        for x in oload(uu): e(x[0] if isinstance(x, tuple) else x)
    e(f"s_mov_b32 s{S_GOT}, 1")
    e(f"s_branch L_ap{st_}_d")
for n in slow:
    e.lab(f"L_slow{n}")
    e(fread(n))
    budget(f"L_cont{n}")
    e("s_waitcnt lgkmcnt(0)")
    fcmp()
    e(f"s_cbranch_vccnz L_slow{n}")
    e(f"s_branch L_cont{n}")
e.raw(".p2align 8")
e.raw(".fill 4096, 4, 0xBF810000")
hdr = ["; generated by dev/gen12.py (fused single kernel, 4 compute + 4 loader waves)",
       "; @launch grid=(256,1,1) block=(512,1,1) lds=163840",
       '.amdgcn_target "amdgcn-amd-amdhsa--gfx950"', ".text"]
desc = f""".amdhsa_kernel {NAME}
  .amdhsa_next_free_vgpr 256
  .amdhsa_next_free_sgpr 102
  .amdhsa_accum_offset 256
  .amdhsa_group_segment_fixed_size 0
  .amdhsa_kernarg_size 64
  .amdhsa_user_sgpr_count 2
  .amdhsa_user_sgpr_kernarg_segment_ptr 1
  .amdhsa_system_sgpr_workgroup_id_x 1
.end_amdhsa_kernel"""
body = hazard_pad(e.L, verbose=True)
sys.stdout.write("\n".join(hdr + body) + '\n.section .rodata,"a"\n.p2align 6\n' + desc + "\n")
```

```python
import sys, math, argparse, struct
from asmlib import *
ap = argparse.ArgumentParser()
ap.add_argument("--stamps", action="store_true")
ap.add_argument("--clk", action="store_true")
ap.add_argument("--oflag", default="sc1")
ap.add_argument("--oload", default="sc1")
ap.add_argument("--kvflag", default="nt")
ap.add_argument("--woflag", default="")
ap.add_argument("--outflag", default="")
ap.add_argument("--sleep", type=int, default=1)
ap.add_argument("--npre", type=int, default=3)
ap.add_argument("--prio", type=int, default=2)
ap.add_argument("--lprio", type=int, default=0)
ap.add_argument("--st", default="2,5")
ap.add_argument("--noopf", action="store_true")
ap.add_argument("--wopf", type=int, default=0)
ap.add_argument("--wdep", type=int, default=4)
ap.add_argument("--rotrg", type=int, default=6)
ap.add_argument("--dbg", action="store_true")
ap.add_argument("--nolocal", action="store_true")
ap.add_argument("--bshift", type=int, default=0)
ap.add_argument("--smpf", default="0,0,0,0,0,0,0,0,0,0")
ap.add_argument("--smstride", type=int, default=128)
ap.add_argument("--pvov", type=int, default=0)
ap.add_argument("--bars", default="1:4,5;3:6,7;5:8,9;6:;8:")
ap.add_argument("--popmask", type=lambda x: int(x, 0), default=0)
ap.add_argument("--av", type=int, default=1)
ap.add_argument("--apos", type=int, default=3)
ap.add_argument("--x2pos", type=int, default=-1)
ap.add_argument("--wdep3", type=int, default=4)
ap.add_argument("--f2own", type=int, default=1)
ap.add_argument("--f2atom", type=int, default=4)
ap.add_argument("--f2sleep", type=int, default=2)
ap.add_argument("--pretouch", type=int, default=0)
ap.add_argument("--opfearly", action="store_true")
ap.add_argument("--p2nomfma", action="store_true")
ap.add_argument("--p2noload", action="store_true")
ap.add_argument("--p2same", action="store_true")
ap.add_argument("--p2nord", action="store_true")
args = ap.parse_args()
STAMPS = args.stamps
BARS = []
for it in args.bars.split(";"):
    m, l = it.split(":")
    BARS.append((int(m), [int(x) for x in l.split(",") if x]))
for m, l in BARS:
    for n in l: assert m >= n - 4
assert sorted(sum([l for m, l in BARS], [])) == list(range(4, 10))
assert BARS[-2][0] >= 6 and BARS[-1][0] >= 7 and not BARS[-1][1]
NAME = "standalone__mha_block_cached__near_ridge_kernel"
WS_O = 0
WS_P = 16 << 20
WS_F1 = 48 << 20
WS_F2 = WS_F1 + 0x10000
WS_E = WS_F1 + 0x20000
WS_X = WS_F1 + 0x30000
NSTEP = 0x9E3779B0
WS_ST = 0x8000000
NST = 16
e = A()

S_X, S_K, S_V, S_WQ, S_WO, S_OUT, S_DBG, S_WS = 4, 6, 8, 10, 12, 14, 16, 18
R_X, R_WQ, R_K, R_V, R_WO, R_OUT, R_WS = 20, 24, 28, 32, 36, 40, 44
S_J, S_I, S_BP, S_H, S_W = 48, 49, 50, 51, 52
S_T0, S_T1, S_T2, S_T3, S_T4 = 53, 54, 55, 56, 57
S_RG, S_CG, S_NONCE = 3, 58, 59
S_A = list(range(60, 70))
S_ST = 70
S_BUD = 17
S_ROT = 16
BUD = 2000000
def srd(r, p, nbytes):
    e(f"s_mov_b32 s{r}, s{p}"); e(f"s_mov_b32 s{r+1}, s{p+1}"); e(f"s_mov_b32 s{r+2}, {nbytes}"); e(f"s_mov_b32 s{r+3}, 0x00020000")
def R(r): return f"s[{r}:{r+3}]"
stamp_n = [0]
def stamp(wait=True):
    if not STAMPS: return
    i = stamp_n[0]
    if i >= NST: return
    stamp_n[0] += 1
    e(f"s_mem{'time' if args.clk else 'realtime'} s[{S_ST+2*i}:{S_ST+2*i+1}]")
    if wait: e("s_waitcnt lgkmcnt(0)")
def stamp_store():
    if not STAMPS: return
    n = stamp_n[0]
    e(f"s_lshl_b32 s{S_T0}, s2, 3")
    e(f"s_add_u32 s{S_T0}, s{S_T0}, s{S_W}")
    e(f"s_mul_i32 s{S_T0}, s{S_T0}, {NST*8}")
    e(f"s_add_u32 s{S_T0}, s{S_T0}, {WS_ST}")
    e("v_mov_b32 v4, 0")
    for i in range(NST):
        k = min(i, n-1)
        e(f"v_mov_b32 v6, s{S_ST+2*k}")
        e(f"v_mov_b32 v7, s{S_ST+2*k+1}")
        e(f"buffer_store_dwordx2 v[6:7], v4, {R(R_WS)}, s{S_T0} offen offset:{8*i}")
        e("s_nop 1")
    sys.stderr.write(f"stamps: {n}\n")
def budget(done):
    e(f"s_add_u32 s{S_BUD}, s{S_BUD}, 1")
    e(f"s_cmp_gt_u32 s{S_BUD}, {BUD}")
    e(f"s_cbranch_scc1 {done}")
def emit_rot2():
    e(f"s_mul_i32 s{S_ROT}, s{S_CG}, 3")
    if args.rotrg:
        e(f"s_mul_i32 s{S_T2}, s{S_RG}, {args.rotrg}")
        e(f"s_add_u32 s{S_ROT}, s{S_ROT}, s{S_T2}")
        e(f"s_sub_u32 s{S_T2}, s{S_ROT}, 24")
        e(f"s_cmp_ge_u32 s{S_ROT}, 24")
        e(f"s_cselect_b32 s{S_ROT}, s{S_T2}, s{S_ROT}")

XB = 12288
PITCH = 40960
SY_FLG = 36864
def bufof(s): return (s + 1) % 4
def wo_lds(u): return (2*PITCH + u*5120) if u < 16 else (PITCH + (u-16)*5120)

def epoch_load():
    e(f"s_lshl_b32 s{S_T2}, s{S_RG}, 7")
    e(f"s_add_u32 s{S_T2}, s{S_T2}, {WS_E}")
    e(f"s_load_dword s{S_NONCE}, s[{S_WS}:{S_WS+1}], s{S_T2}")
def xval(dst):
    e(f"s_getreg_b32 s{dst}, hwreg(HW_REG_XCC_ID, 0, 4)")
    e(f"s_and_b32 s{S_T2}, s{S_NONCE}, 0xfffffff0")
    e(f"s_or_b32 s{dst}, s{dst}, s{S_T2}")
e.raw(f".globl {NAME}\n.p2align 8\n.type {NAME},@function\n{NAME}:")
stamp(wait=False)
e("s_load_dwordx16 s[4:19], s[0:1], 0")
e("s_cmp_ge_u32 s2, 256")
e("s_cbranch_scc1 L_end")
e("v_lshrrev_b32 v2, 6, v0")
e("v_and_b32 v1, 63, v0")
e(f"v_readfirstlane_b32 s{S_W}, v2")
e(f"s_and_b32 s{S_J}, s2, 7")
e(f"s_lshr_b32 s{S_T0}, s2, 3")
e(f"s_and_b32 s{S_I}, s{S_T0}, 3")
e(f"s_lshr_b32 s{S_BP}, s{S_T0}, 2")
e(f"s_lshl_b32 s{S_H}, s{S_J}, 2")
e(f"s_add_u32 s{S_H}, s{S_H}, s{S_I}")
e(f"s_lshr_b32 s{S_RG}, s{S_BP}, 1")
e(f"s_and_b32 s{S_CG}, s{S_BP}, 1")
e(f"s_lshl_b32 s{S_CG}, s{S_CG}, 2")
e(f"s_add_u32 s{S_CG}, s{S_CG}, s{S_I}")
e(f"s_cmp_lt_u32 s{S_W}, 4")
e("s_cbranch_scc1 L_compute")

S_L, S_KX, S_KW, S_XK, S_SO, S_LX, S_LW, S_XB, S_WB, S_KVB = S_A
V_OW, V_OXA, V_OXB, V_OV, V_OKA, V_OKB, V_OOB, V_PF, LDUMMY = 10, 11, 12, 13, 14, 15, 16, 17, 18
V_OWO = 20
S_KB2, S_VB2, S_FLB, S_KD, S_VD = 4, 5, 6, 7, 8
if args.lprio: e(f"s_setprio {args.lprio}")
e(f"s_sub_u32 s{S_L}, s{S_W}, 4")
e("v_lshrrev_b32 v2, 3, v1")
e("v_and_b32 v3, 7, v1")
e("v_lshrrev_b32 v4, 1, v2")
e("v_lshlrev_b32 v5, 1, v4")
e("v_xor_b32 v5, v5, v3")
e("v_lshlrev_b32 v5, 4, v5")
e("v_lshrrev_b32 v6, 2, v2")
e("v_lshlrev_b32 v6, 3, v6")
e("v_and_b32 v7, 3, v2")
e("v_add_u32 v6, v6, v7")
e("v_mul_u32_u24 v6, 12288, v6")
e(f"v_add_u32 v{V_OW}, v6, v5")
e("v_mul_u32_u24 v6, 1280, v2")
e("v_xor_b32 v7, v3, v4")
e("v_lshlrev_b32 v8, 4, v7")
e(f"s_and_b32 s{S_T1}, s{S_L}, 1")
e(f"s_lshl_b32 s{S_T2}, s{S_T1}, 6")
e(f"v_xor_b32 v8, s{S_T2}, v8")
e(f"v_add_u32 v{V_OXA}, v6, v8")
e("v_xor_b32 v9, 64, v8")
e(f"v_add_u32 v{V_OXB}, v6, v9")
e(f"s_mul_i32 s{S_XB}, s{S_BP}, {96*1280}")
e(f"s_mul_i32 s{S_T2}, s{S_L}, {24*1280}")
e(f"s_add_u32 s{S_XB}, s{S_XB}, s{S_T2}")
e(f"s_mul_i32 s{S_WB}, s{S_H}, 384")
e(f"s_lshr_b32 s{S_T0}, s{S_L}, 1")
e(f"s_mul_i32 s{S_T2}, s{S_T0}, {16*12288}")
e(f"s_add_u32 s{S_WB}, s{S_WB}, s{S_T2}")
e(f"s_mul_i32 s{S_T2}, s{S_T1}, {4*12288}")
e(f"s_add_u32 s{S_WB}, s{S_WB}, s{S_T2}")
e(f"s_mul_i32 s{S_KX}, s{S_BP}, 5")
e(f"s_lshr_b32 s{S_KX}, s{S_KX}, 2")
e(f"s_mul_i32 s{S_T2}, s{S_I}, 5")
e(f"s_lshr_b32 s{S_T2}, s{S_T2}, 1")
e(f"s_add_u32 s{S_KX}, s{S_KX}, s{S_T2}")
e(f"s_sub_u32 s{S_T2}, s{S_KX}, 10")
e(f"s_cmp_ge_u32 s{S_KX}, 10")
e(f"s_cselect_b32 s{S_KX}, s{S_T2}, s{S_KX}")
e(f"s_lshl_b32 s{S_KX}, s{S_KX}, 7")
e(f"s_mul_i32 s{S_LX}, s{S_L}, 3072")
e(f"s_lshl_b32 s{S_LW}, s{S_L}, 10")
e("s_waitcnt lgkmcnt(0)")
srd(R_X, S_X, 16*48*640*2)
srd(R_WQ, S_WQ, 640*6144*2)
def issue(s):
    buf = bufof(s)
    e(f"s_mul_i32 s{S_KW}, s{S_KX}, 6144"); e(f"s_add_u32 s{S_KW}, s{S_KW}, s{S_WB}"); e(f"s_add_u32 s{S_XK}, s{S_KX}, s{S_XB}")
    ws = [("w", ks, cg) for ks in range(2) for cg in range(3)]
    xs = [("x", a) for a in range(3)]
    for o in [xs[0], ws[0], ws[1], xs[1], ws[2], xs[2], ws[3], ws[4], ws[5]]:
        if o[0] == "w":
            _, ks, cg = o
            e(f"s_add_u32 m0, s{S_LW}, {buf*PITCH + XB + ks*12288 + cg*4096}")
            e(f"s_add_u32 s{S_SO}, s{S_KW}, {32*ks*12288 + cg*128}")
            e(f"buffer_load_dwordx4 v{V_OW}, {R(R_WQ)}, s{S_SO} offen lds")
        else:
            a = o[1]
            e(f"s_add_u32 m0, s{S_LX}, {buf*PITCH + a*1024}")
            e(f"s_add_u32 s{S_SO}, s{S_XK}, {8*a*1280}")
            e(f"buffer_load_dwordx4 v{V_OXB if a == 1 else V_OXA}, {R(R_X)}, s{S_SO} offen lds")
    e(f"s_add_u32 s{S_KX}, s{S_KX}, 128"); e(f"s_cmp_eq_u32 s{S_KX}, 1280"); e(f"s_cselect_b32 s{S_KX}, 0, s{S_KX}")
def flag(n):
    e(f"s_add_u32 m0, s{S_FLB}, {16*n}")
    e("s_mov_b64 exec, 1")
    e(f"buffer_load_dword v{V_OOB}, {R(R_X)}, 0 offen lds")
    e("s_mov_b64 exec, -1")
issue(0)
srd(R_K, S_K, 16*32*48*192*2)
srd(R_V, S_V, 16*32*48*192*2)
e(f"v_mov_b32 v{V_OOB}, 0x7ffffff0")
e(f"s_lshl_b32 s{S_FLB}, s{S_L}, 2")
e(f"s_add_u32 s{S_FLB}, s{S_FLB}, {SY_FLG}")
e("s_barrier")
flag(0)
issue(1); flag(1)
epoch_load()
srd(R_WO, S_WO, 6144*640*2)
srd(R_WS, S_WS, 268435456)
e("v_mul_u32_u24 v6, 384, v2")
e(f"v_add_u32 v{V_OV}, v6, v5")
e(f"v_add_u32 v{V_OKA}, v6, v8")
e(f"v_add_u32 v{V_OKB}, v6, v9")
e(f"s_lshl_b32 s{S_T2}, s{S_BP}, 1")
e(f"s_add_u32 s{S_T2}, s{S_T2}, s{S_T0}")
e(f"s_lshl_b32 s{S_T2}, s{S_T2}, 5")
e(f"s_add_u32 s{S_T2}, s{S_T2}, s{S_H}")
e(f"s_mul_i32 s{S_KVB}, s{S_T2}, 18432")
e(f"s_mul_i32 s{S_KD}, s{S_T0}, 18432")
e(f"s_mul_i32 s{S_T3}, s{S_T1}, 3072")
e(f"s_add_u32 s{S_KD}, s{S_KD}, s{S_T3}")
e(f"s_lshl_b32 s{S_VD}, s{S_T1}, 11")
e(f"s_lshl_b32 s{S_T3}, s{S_T0}, 10")
e(f"s_add_u32 s{S_VD}, s{S_VD}, s{S_T3}")
e(f"s_mul_i32 s{S_KB2}, s{S_T1}, {24*384}")
e(f"s_add_u32 s{S_KB2}, s{S_KB2}, s{S_KVB}")
e(f"s_mul_i32 s{S_VB2}, s{S_T1}, {8*384}")
e(f"s_add_u32 s{S_VB2}, s{S_VB2}, s{S_KVB}")
e(f"s_mov_b32 s{S_T0}, 0x1999999a")
for n in range(5):
    e(f"v_add_u32 v2, {64*n}, v1")
    e(f"v_mul_hi_u32 v3, v2, s{S_T0}")
    e("v_mul_u32_u24 v4, 10, v3")
    e("v_sub_u32 v4, v2, v4")
    e("v_mul_u32_u24 v3, 1280, v3")
    e(f"v_lshl_add_u32 v{V_OWO+n}, v4, 4, v3")
e("v_min_u32 v2, 59, v1")
e(f"v_lshlrev_b32 v{V_PF}, 7, v2")
emit_rot2()
S_POP = 9
KREG, VREG, V_KD, V_VD, V_FW, V_ZERO = 32, 68, 26, 27, 28, 29
e(f"s_lshr_b32 s{S_T2}, s2, 3")
e(f"s_and_b32 s{S_T2}, s{S_T2}, 7")
e(f"s_lshr_b32 s{S_POP}, {args.popmask}, s{S_T2}")
e(f"s_and_b32 s{S_POP}, s{S_POP}, 1")
e("v_lshlrev_b32 v2, 4, v1")
e(f"v_add_u32 v{V_KD}, s{S_KD}, v2")
e(f"v_add_u32 v{V_KD}, {3*PITCH}, v{V_KD}")
e(f"v_add_u32 v{V_VD}, s{S_VD}, v2")
e(f"v_mov_b32 v{V_FW}, s{S_FLB}")
e(f"v_mov_b32 v{V_ZERO}, 0")
def early(n):
    if n != args.apos or not args.popmask: return
    e(f"s_cmp_eq_u32 s{S_POP}, 0")
    e("s_cbranch_scc1 L_noearly")
    for a in range(3):
        e(f"s_add_u32 s{S_SO}, s{S_KB2}, {8*a*384}")
        for cg in range(3):
            e(f"buffer_load_dwordx4 {vr(KREG+(a*3+cg)*4,4)}, v{V_OKB if a == 1 else V_OKA}, {R(R_K)}, s{S_SO} offen offset:{cg*128} {args.kvflag}")
    if args.av:
        for kt in range(3):
            e(f"s_add_u32 s{S_SO}, s{S_VB2}, {16*kt*384}")
            for cg in range(3):
                e(f"buffer_load_dwordx4 {vr(VREG+(kt*3+cg)*4,4)}, v{V_OV}, {R(R_V)}, s{S_SO} offen offset:{cg*128} {args.kvflag}")
    e.lab("L_noearly")
issue(2); flag(2); early(2)
issue(3); flag(3); early(3)
for bi, (m, l) in enumerate(BARS[:-1]):
    e("s_barrier")
    if bi in (0, len(BARS)-2): stamp()
    for n in l: issue(n); flag(n); early(n)
def vdma(toreg=False):
    for kt in range(3):
        for cg in range(3):
            if toreg:
                e(f"s_add_u32 s{S_SO}, s{S_VB2}, {16*kt*384}")
                e(f"buffer_load_dwordx4 {vr(VREG+(kt*3+cg)*4,4)}, v{V_OV}, {R(R_V)}, s{S_SO} offen offset:{cg*128} {args.kvflag}")
            else:
                e(f"s_add_u32 m0, s{S_VD}, {kt*12288 + cg*4096}")
                e(f"s_add_u32 s{S_SO}, s{S_VB2}, {16*kt*384 + cg*128}")
                e(f"buffer_load_dwordx4 v{V_OV}, {R(R_V)}, s{S_SO} offen {args.kvflag} lds")
e(f"s_lshl_b32 s{S_T2}, s{S_RG}, 3")
e(f"s_add_u32 s{S_T2}, s{S_T2}, s{S_J}")
e(f"s_lshl_b32 s{S_T2}, s{S_T2}, 7")
e(f"s_add_u32 s{S_T2}, s{S_T2}, {WS_X}")
e(f"s_load_dwordx8 s[92:99], s[{S_WS}:{S_WS+1}], s{S_T2} glc")
if args.popmask:
    e(f"s_cmp_eq_u32 s{S_POP}, 0")
    e("s_cbranch_scc1 L_popB")
    if not args.av: vdma(True)
    e("s_barrier")
    e("s_setprio 3")
    e(f"s_waitcnt vmcnt({0 if args.av else 9})")
    for a in range(3):
        for cg in range(3):
            e(f"ds_write_b128 v{V_KD}, {vr(KREG+(a*3+cg)*4,4)} offset:{cg*6144 + a*1024}")
    e(f"ds_write_b32 v{V_FW}, v{V_ZERO} offset:{16*10}")
    e("s_waitcnt vmcnt(0)")
    for kt in range(3):
        for cg in range(3):
            e(f"ds_write_b128 v{V_VD}, {vr(VREG+(kt*3+cg)*4,4)} offset:{kt*12288 + cg*4096}")
    e("s_setprio 0")
    e("s_branch L_popJ")
    e.lab("L_popB")
for a in range(3):
    for cg in range(3):
        e(f"s_add_u32 m0, s{S_KD}, {3*PITCH + cg*6144 + a*1024}")
        e(f"s_add_u32 s{S_SO}, s{S_KB2}, {8*a*384 + cg*128}")
        e(f"buffer_load_dwordx4 v{V_OKB if a == 1 else V_OKA}, {R(R_K)}, s{S_SO} offen {args.kvflag} lds")
flag(10)
e("s_barrier")
vdma()
e.lab("L_popJ")
e("s_waitcnt lgkmcnt(0)")
e(f"s_add_u32 s{S_NONCE}, s{S_NONCE}, {NSTEP:#x}")
xval(S_T3)
e(f"s_xor_b32 s{S_T0}, s92, s{S_T3}")
for k in range(1, 8):
    e(f"s_xor_b32 s{S_T2}, s{92+k}, s{S_T3}")
    e(f"s_or_b32 s{S_T0}, s{S_T0}, s{S_T2}")
e(f"s_cmp_lg_u32 s{S_T0}, 0")
e("s_cbranch_scc1 L_nolocal")
if not args.nolocal: flag(15)
e.lab("L_nolocal")
flag(11)
stamp()
e(f"s_mul_i32 s{S_WB}, s{S_J}, {768*1280}")
if args.wopf:
    e(f"s_lshr_b32 s{S_T2}, s2, 3"); e(f"s_lshl_b32 s{S_T2}, s{S_T2}, 2"); e(f"s_add_u32 s{S_T2}, s{S_T2}, s{S_L}")
    e(f"s_mul_i32 s{S_T2}, s{S_T2}, 7680"); e(f"s_add_u32 s{S_T2}, s{S_T2}, s{S_WB}")
    e(f"buffer_load_dword v{LDUMMY}, v{V_PF}, {R(R_WO)}, s{S_T2} offen")
e(f"s_mul_i32 s{S_T0}, s{S_CG}, 160")
e(f"s_add_u32 s{S_WB}, s{S_WB}, s{S_T0}")
e(f"s_mul_i32 s{S_LW}, s{S_L}, 5120")
e(f"s_add_u32 s{S_T3}, s{S_ROT}, s{S_L}")
stamp()
e("s_barrier")
for g in range(3):
    if g in (0, 2):
        e("s_barrier")
        stamp()
    for hf in range(2):
        e(f"s_add_u32 s{S_T0}, s{S_T3}, {8*g+4*hf}")
        e(f"s_sub_u32 s{S_T2}, s{S_T0}, 24")
        e(f"s_cmp_ge_u32 s{S_T0}, 24")
        e(f"s_cselect_b32 s{S_T0}, s{S_T2}, s{S_T0}")
        e(f"s_mul_i32 s{S_T0}, s{S_T0}, 40960")
        e(f"s_add_u32 s{S_T0}, s{S_T0}, s{S_WB}")
        for n in range(5):
            e(f"s_add_u32 m0, s{S_LW}, {wo_lds(8*g+4*hf) + n*1024}")
            wd = args.wdep if g < 2 else args.wdep3
            if wd < 63: e(f"s_waitcnt vmcnt({wd})")
            e(f"buffer_load_dwordx4 v{V_OWO+n}, {R(R_WO)}, s{S_T0} offen {args.woflag} lds")
    flag(12+g)
    stamp()
e("s_waitcnt vmcnt(0)")
stamp()
stamp_store()
e("s_endpgm")

stamp_n[0] = 1 if STAMPS else 0
e.lab("L_compute")
S_B, S_JH, S_OB, S_SO, S_CNT, S_BG2, S_OB2, S_PB, S_F2, S_OUTB = S_A
V_L16, V_FL, V_OUT, V_SR, V_RDY = 10, 11, 12, 14, 15
V_AW, V_AX = 16, 22
FR = [32, 68]
ACC = 104
V_AV, V_AK, V_A0, V_A1, DUMMY = 176, 182, 188, 189, 191
QF = 192
SUMA, ONES, RINV = 228, 240, 244
V_SXW, V_SXR, V_LOC = 250, 251, 252
if args.prio: e(f"s_setprio {args.prio}")
e(f"v_lshlrev_b32 v{V_L16}, 4, v1")
e("v_lshlrev_b32 v2, 2, v1")
e(f"v_add_u32 v2, {SY_FLG}, v2")
e("v_mov_b32 v4, 1")
e("ds_write_b32 v2, v4")
e("s_getpc_b64 s[60:61]")
e.lab("L_pc")
e(f"s_sub_u32 s60, s60, L_pc-{NAME}")
e("s_subb_u32 s61, s61, 0")
e(f"s_lshr_b32 s{S_T0}, s2, 3")
e(f"s_lshl_b32 s{S_T0}, s{S_T0}, 10")
e("v_and_b32 v2, 7, v1")
e("v_lshlrev_b32 v2, 7, v2")
e(f"v_add_u32 v2, s{S_T0}, v2")
e(f"global_load_dword v{DUMMY}, v2, s[60:61]")
e("s_waitcnt lgkmcnt(0)")
e("s_barrier")
epoch_load()
srd(R_OUT, S_OUT, 16*48*640*2)
srd(R_WS, S_WS, 268435456)
srd(R_K, S_DBG, 256)
e(f"s_mov_b32 s{S_BUD}, 0")
emit_rot2()
e(f"s_lshr_b32 s{S_B}, s{S_W}, 1")
e(f"s_and_b32 s{S_JH}, s{S_W}, 1")
e("v_lshrrev_b32 v2, 4, v1")
e("v_and_b32 v3, 15, v1")
e("v_mul_u32_u24 v4, 1280, v3")
e(f"v_lshl_add_u32 v{V_OUT}, v2, 3, v4")
e("v_and_b32 v4, 7, v1")
e(f"v_lshlrev_b32 v{V_FL}, 2, v4")
e("v_and_b32 v4, 3, v1")
e("v_lshlrev_b32 v5, 2, v4")
e(f"v_add_u32 v{V_SR}, {SY_FLG}, v5")
e(f"s_xor_b32 s{S_T3}, s{S_W}, 1")
e(f"s_mul_i32 s{S_T2}, s{S_W}, 9216")
e(f"s_mul_i32 s{S_T1}, s{S_T3}, 9216")
e(f"v_add_u32 v{V_SXW}, s{S_T2}, v{V_L16}")
e(f"v_add_u32 v{V_SXR}, s{S_T1}, v{V_L16}")
for r in range(4): e(f"v_mov_b32 v{ONES+r}, 0x3f803f80")
e("v_lshrrev_b32 v8, 1, v3")
e("v_xor_b32 v4, v8, v2")
e("v_lshlrev_b32 v4, 4, v4")
e("v_lshl_add_u32 v4, v3, 7, v4")
e(f"s_mul_i32 s{S_T2}, s{S_B}, 6144")
e(f"v_add_u32 v{V_AX}, s{S_T2}, v4")
e(f"v_xor_b32 v{V_AX+1}, 64, v{V_AX}")
e(f"v_add_u32 v{V_AX+8}, {2*PITCH}, v{V_AX}")
e(f"v_add_u32 v{V_AX+9}, {2*PITCH}, v{V_AX+1}")
e("v_lshrrev_b32 v9, 1, v2")
e("v_xor_b32 v9, v9, v8")
e("v_and_b32 v4, 1, v2")
e("v_lshlrev_b32 v4, 3, v4")
e("v_lshl_add_u32 v4, v3, 7, v4")
e(f"s_mul_i32 s{S_T2}, s{S_JH}, 12")
e(f"s_mul_i32 s{S_T1}, s{S_B}, 18432")
e(f"s_add_u32 s{S_T1}, s{S_T1}, {3*PITCH}")
for k in range(6):
    e(f"s_add_u32 s{S_T3}, s{S_T2}, {2*k}")
    e(f"s_and_b32 s{S_T0}, s{S_T3}, 7")
    e(f"s_lshr_b32 s{S_T3}, s{S_T3}, 3")
    e(f"s_mul_i32 s{S_T3}, s{S_T3}, 6144")
    e(f"s_add_u32 s{S_T3}, s{S_T3}, s{S_T1}")
    e(f"v_xor_b32 v6, s{S_T0}, v9")
    e(f"v_lshl_add_u32 v6, v6, 4, v4")
    e(f"v_add_u32 v{V_AK+k}, s{S_T3}, v6")
e("v_lshrrev_b32 v4, 2, v1")
e("v_and_b32 v4, 7, v4")
e("v_lshrrev_b32 v5, 5, v1")
e("v_lshlrev_b32 v5, 11, v5")
e("v_lshl_add_u32 v5, v4, 7, v5")
e("v_and_b32 v6, 3, v1")
e("v_lshl_add_u32 v5, v6, 3, v5")
e("v_lshrrev_b32 v4, 1, v4")
e(f"s_mul_i32 s{S_T2}, s{S_JH}, 6")
e(f"s_lshl_b32 s{S_T1}, s{S_B}, 10")
e(f"s_sub_u32 s{S_T1}, s{S_T1}, {XB}")
for t in range(6):
    e(f"s_add_u32 s{S_T3}, s{S_T2}, {t}")
    e(f"s_and_b32 s{S_T0}, s{S_T3}, 3")
    e(f"s_lshr_b32 s{S_T3}, s{S_T3}, 2")
    e(f"s_lshl_b32 s{S_T3}, s{S_T3}, 12")
    e(f"s_add_u32 s{S_T3}, s{S_T3}, {XB}")
    e(f"v_xor_b32 v6, s{S_T0}, v4")
    e(f"v_lshl_add_u32 v6, v6, 5, v5")
    e(f"v_add_u32 v{V_AW+t}, s{S_T3}, v6")
    e(f"v_add_u32 v{V_AW+8+t}, {2*PITCH}, v{V_AW+t}")
    e(f"v_add_u32 v{V_AV+t}, s{S_T1}, v{V_AW+t}")
e(f"s_lshl_b32 s{S_T2}, s{S_BP}, 1")
e(f"s_add_u32 s{S_T2}, s{S_T2}, s{S_B}")
e(f"s_lshl_b32 s{S_T2}, s{S_T2}, 5")
e(f"s_add_u32 s{S_T2}, s{S_T2}, s{S_H}")
e(f"s_mul_i32 s{S_OB}, s{S_T2}, 18432")
e(f"s_mul_i32 s{S_T3}, s{S_JH}, 9216")
e(f"s_add_u32 s{S_OB}, s{S_OB}, s{S_T3}")
e("v_lshrrev_b32 v2, 2, v1")
e("v_mul_u32_u24 v2, 160, v2")
e("v_and_b32 v3, 3, v1")
e(f"v_lshl_add_u32 v{V_A0}, v3, 3, v2")
e(f"v_add_u32 v{V_A0}, {PITCH}, v{V_A0}")
e(f"v_add_u32 v{V_A1}, 61440, v{V_A0}")
cs = (192 ** -0.5) * math.log2(math.e)
cbits = struct.unpack("<I", struct.pack("<f", cs))[0]
S_SC = S_T4
e(f"s_mov_b32 s{S_SC}, {cbits:#x}")
e("s_waitcnt lgkmcnt(0)")
e(f"s_add_u32 s{S_NONCE}, s{S_NONCE}, {NSTEP:#x}")
e(f"s_cmp_lg_u32 s{S_W}, 0")
e("s_cbranch_scc1 L_nox")
xval(S_T3)
e(f"s_lshl_b32 s{S_T2}, s{S_RG}, 3")
e(f"s_add_u32 s{S_T2}, s{S_T2}, s{S_J}")
e(f"s_lshl_b32 s{S_T2}, s{S_T2}, 5")
e(f"s_add_u32 s{S_T2}, s{S_T2}, s{S_CG}")
e(f"s_lshl_b32 s{S_T2}, s{S_T2}, 2")
e(f"s_add_u32 s{S_T2}, s{S_T2}, {WS_X}")
e(f"v_mov_b32 v2, s{S_T3}")
e("v_mov_b32 v3, 0")
e("s_mov_b64 exec, 1")
e(f"buffer_store_dword v2, v3, {R(R_WS)}, s{S_T2} offen sc1")
e("s_mov_b64 exec, -1")
e.lab("L_nox")

slow = []
def fread(n): return f"ds_read_b32 v{V_RDY}, v{V_SR} offset:{16*n}"
def fcmp(): e(f"v_cmp_ne_u32 vcc, 0, v{V_RDY}")
def check(n):
    e(f"s_cbranch_vccnz L_slow{n}")
    e.lab(f"L_cont{n}")
    slow.append(n)
def fwait(n):
    e(f"s_branch L_slow{n}")
    e.lab(f"L_cont{n}")
    slow.append(n)
def read_ops(s, ks, fs):
    buf = bufof(s)
    aset = 8*(buf//2); boff = (buf % 2)*PITCH
    F = FR[fs]
    def xr(qt): return f"ds_read_b128 {vr(F+24+4*qt,4)}, v{V_AX+aset+ks} offset:{boff+qt*2048}"
    def wr(t, m): return f"ds_read_b64_tr_b16 {vr(F+4*t+2*m,2)}, v{V_AW+aset+t} offset:{boff+ks*12288+m*1024}"
    ops = [xr(0), wr(0,0), wr(0,1), xr(1), xr(2)]
    for t in range(1, 6): ops += [wr(t,0), wr(t,1)]
    return ops
def mfma_ops(fs, first):
    F = FR[fs]; ops = []
    for t in range(6):
        for qt in range(3):
            d = ACC + (t*3+qt)*4
            c = "0" if first else vr(d,4)
            ops.append(f"v_mfma_f32_16x16x32_bf16 {vr(d,4)}, {vr(F+4*t,4)}, {vr(F+24+4*qt,4)}, {c}")
    return ops
def interleave(mf, reads, dmas, first2=4):
    n = len(mf); rq = list(reads); dq = list(dmas)
    for k, m in enumerate(mf):
        e(m)
        for _ in range(2 if k < first2 else 1):
            if rq: e(rq.pop(0))
        if dq and k >= 1:
            per = max(1, math.ceil(len(dq) / max(1, n - 1 - k)))
            for _ in range(per):
                if dq: e.emit(dq.pop(0))
    assert not rq and not dq
def merge(mf, fill, per, start=0):
    fq = list(fill)
    for k, m in enumerate(mf):
        e(m)
        if k >= start:
            for _ in range(per):
                if fq: e.emit(fq.pop(0))
    return fq

fwait(0)
stamp()
KF, SA, SB, VF = 32, 68, 104, 32
for x in read_ops(0, 0, 0): e(x)
STS = [int(x) for x in args.st.split(",")]
for s in range(10):
    e.c(f"--- stage {s} kstep 0")
    e("s_waitcnt lgkmcnt(0)")
    interleave(mfma_ops(0, s == 0), read_ops(s, 1, 1) + ([fread(s+1)] if s < 9 else []), [])
    e("s_waitcnt lgkmcnt(0)")
    e.c(f"--- stage {s} kstep 1")
    mf = mfma_ops(1, False)
    if s < 9: fcmp()
    e(mf[0])
    if s in [m for m, l in BARS]: e("s_barrier")
    if s < 9: check(s+1)
    if s in STS: stamp()
    if s < 9:
        interleave(mf[1:], read_ops(s+1, 0, 0), [])
kreads = [f"ds_read_b64 {vr(KF+(kt*3+u)*4+2*ee,2)}, v{V_AK+2*u+ee} offset:{kt*2048}" for u in range(3) for kt in range(3) for ee in range(2)]
def qcvt(u):
    ops = []
    for hh in range(2):
        for qt in range(3):
            q = QF + (u*3+qt)*4
            a = ACC + ((2*u+hh)*3+qt)*4
            ops += [f"v_cvt_pk_bf16_f32 v{q+2*hh}, v{a}, v{a+1}", f"v_cvt_pk_bf16_f32 v{q+2*hh+1}, v{a+2}, v{a+3}"]
    return ops
fill = qcvt(0) + qcvt(1) + qcvt(2)
fill = merge(mf[1:], fill, 2, start=8)
for x in fill[:6]: e(x)
fill = fill[6:]
stamp()
if args.pretouch:
    e("v_lshlrev_b32 v5, 7, v1")
    e(f"v_lshlrev_b32 v6, 5, v{V_FL}")
    e(f"s_add_u32 s{S_T2}, s{S_OB}, {WS_O + 8192}")
    e(f"buffer_load_dword v{DUMMY}, v5, {R(R_WS)}, s{S_OB} offen sc1")
    e(f"buffer_load_dword v{DUMMY}, v6, {R(R_WS)}, s{S_T2} offen sc1")
fwait(10)
stamp()
for x in kreads: e(x)
for x in fill: e(x)
e("s_barrier")
def smf(u, kt, qt):
    d = SA + (kt*3+qt)*4
    c = "0" if u == 0 else vr(d,4)
    return f"v_mfma_f32_16x16x32_bf16 {vr(d,4)}, {vr(KF+(kt*3+u)*4,4)}, {vr(QF+(u*3+qt)*4,4)}, {c}"
for u in range(2):
    e(f"s_waitcnt lgkmcnt({12-6*u})")
    for kt in range(3):
        for qt in range(3): e(smf(u, kt, qt))
e("s_waitcnt lgkmcnt(0)")
def swr(kt, qt):
    k = kt*3+qt
    return f"ds_write_b128 v{V_SXW}, {vr(SA+4*k,4)} offset:{PITCH + k*1024}"
for qt in range(3):
    for kt in range(3): e(smf(2, kt, qt))
e("s_nop 1")
for qt in range(3):
    for kt in range(3): e(swr(kt, qt))
e("s_waitcnt lgkmcnt(0)")
e("s_barrier")
stamp()
vreads = [f"ds_read_b64_tr_b16 {vr(VF+6*t+2*kt,2)}, v{V_AV+t} offset:{kt*12288}" for t in range(6) for kt in range(3)]
for qt in range(3):
    for kt in range(3):
        k = kt*3+qt
        e(f"ds_read_b128 {vr(SB+4*k,4)}, v{V_SXR} offset:{PITCH + k*1024}")
def sreg(kt, qt, r): return SA + (kt*3+qt)*4 + r
M = [2, 3, 4]; T = [5, 6, 7]
for qt in range(3):
    e(f"s_waitcnt lgkmcnt({6-3*qt})")
    for kt in range(3):
        k = kt*3+qt
        for h2 in range(2):
            e(f"v_pk_add_f32 {vr(SA+4*k+2*h2,2)}, {vr(SA+4*k+2*h2,2)}, {vr(SB+4*k+2*h2,2)}")
    vals = [sreg(kt, qt, r) for kt in range(3) for r in range(4)]
    e(f"v_max3_f32 v{M[qt]}, v{vals[0]}, v{vals[1]}, v{vals[2]}")
    for k in range(3, 11, 2):
        e(f"v_max3_f32 v{M[qt]}, v{M[qt]}, v{vals[k]}, v{vals[k+1]}")
    e(f"v_max_f32 v{M[qt]}, v{M[qt]}, v{vals[11]}")
for sw in ("v_permlane32_swap_b32", "v_permlane16_swap_b32"):
    for qt in range(3): e(f"v_mov_b32 v{T[qt]}, v{M[qt]}")
    for qt in range(3): e(f"{sw} v{M[qt]}, v{T[qt]}")
    for qt in range(3): e(f"v_max_f32 v{M[qt]}, v{M[qt]}, v{T[qt]}")
for qt in range(3): e(f"v_mul_f32 v{M[qt]}, s{S_SC}, v{M[qt]}")
PF = QF
def Bops(qt):
    ops = []
    for kt in range(3):
        for r in range(4):
            x = sreg(kt, qt, r); ops.append(f"v_fma_f32 v{x}, v{x}, s{S_SC}, -v{M[qt]}")
    for kt in range(3):
        for r in range(4):
            x = sreg(kt, qt, r); ops.append(f"v_exp_f32 v{x}, v{x}")
    for kt in range(3):
        x = sreg(kt, qt, 0)
        ops += [f"v_cvt_pk_bf16_f32 v{PF+6*qt+2*kt}, v{x}, v{x+1}", f"v_cvt_pk_bf16_f32 v{PF+6*qt+2*kt+1}, v{x+2}, v{x+3}"]
    return ops
def SUMops(qt):
    d = SUMA + 4*qt
    return [f"v_mfma_f32_16x16x32_bf16 {vr(d,4)}, {vr(ONES,4)}, {vr(PF+6*qt,4)}, 0",
            f"v_mfma_f32_16x16x16_bf16 {vr(d,4)}, {vr(ONES,2)}, {vr(PF+6*qt+4,2)}, {vr(d,4)}"]
def PVops(qt):
    a = []; b = []
    for t in range(6):
        d = ACC + (t*3+qt)*4
        a.append(f"v_mfma_f32_16x16x32_bf16 {vr(d,4)}, {vr(VF+6*t,4)}, {vr(PF+6*qt,4)}, 0")
        b.append(f"v_mfma_f32_16x16x16_bf16 {vr(d,4)}, {vr(VF+6*t+4,2)}, {vr(PF+6*qt+4,2)}, {vr(d,4)}")
    return a + b
def Eops(qt, oflag):
    ops = []
    for u in range(3):
        q = SA + (u*3+qt)*4
        for hh in range(2):
            a = ACC + ((2*u+hh)*3+qt)*4
            for h2 in range(2):
                ops.append(f"v_pk_mul_f32 {vr(a+2*h2,2)}, {vr(a+2*h2,2)}, {vr(RINV+2*qt,2)} op_sel_hi:[1,0]")
        for hh in range(2):
            a = ACC + ((2*u+hh)*3+qt)*4
            ops += [f"v_cvt_pk_bf16_f32 v{q+2*hh}, v{a}, v{a+1}", f"v_cvt_pk_bf16_f32 v{q+2*hh+1}, v{a+2}, v{a+3}"]
        ops.append([f"s_add_u32 s{S_SO}, s{S_OB}, {WS_O + u*3072}",
                    (f"buffer_store_dwordx4 {vr(q,4)}, v{V_L16}, {R(R_WS)}, s{S_SO} offen offset:{qt*1024} {oflag}", "ost")])
    return ops
for qt in range(3):
    b = Bops(qt)
    if qt == 0:
        for x in b: e(x)
    else:
        sm = SUMops(qt-1)
        e(sm[0])
        for x in b[:12]: e(x)
        e(sm[1])
        for x in b[12:]: e(x)
sm = SUMops(2)
e(f"v_rcp_f32 v{RINV}, v{SUMA}")
e(f"v_rcp_f32 v{RINV+2}, v{SUMA+4}")
e(sm[0])
stamp()
fwait(11)
e(f"ds_read_b32 v{V_LOC}, v{V_SR} offset:{16*15}")
for x in vreads: e(x)
e(sm[1])
stamp(wait=False)
e(f"s_lshl_b32 s{S_T0}, s{S_BP}, 1")
e(f"s_add_u32 s{S_T0}, s{S_T0}, s{S_B}")
e(f"s_lshl_b32 s{S_T0}, s{S_T0}, 3")
e(f"s_add_u32 s{S_T0}, s{S_T0}, s{S_J}")
e(f"s_lshl_b32 s{S_T0}, s{S_T0}, 7")
e(f"s_lshl_b32 s{S_T1}, s{S_I}, 3")
e(f"s_add_u32 s{S_T0}, s{S_T0}, s{S_T1}")
e(f"s_lshl_b32 s{S_T1}, s{S_JH}, 2")
e(f"s_add_u32 s{S_T0}, s{S_T0}, s{S_T1}")
e(f"s_add_u32 s{S_T0}, s{S_T0}, {WS_F1}")
e(f"v_mov_b32 v2, s{S_NONCE}")
e("v_mov_b32 v3, 0")
e("s_waitcnt lgkmcnt(0)")
e(f"v_cmp_ne_u32 vcc, 0, v{V_LOC}")
pv0 = PVops(0); pv1 = PVops(1); pv2 = PVops(2)
for x in pv0[:6]: e(x)
e(f"v_rcp_f32 v{RINV+4}, v{SUMA+8}")
for x in pv1[:3]: e(x)
for x in pv0[6:]: e(x)
for x in pv1[3:6]: e(x)
e("s_cbranch_vccnz L_pubslow")
sn = stamp_n[0]
def publish(oflag):
    stamp_n[0] = sn
    rest = pv2[:3] + pv1[6:] + pv2[3:6]
    f = merge(rest, Eops(0, oflag), 2, start=2)
    f = merge(pv2[6:], f + Eops(1, oflag), 2)
    for x in f: e.emit(x)
    for x in Eops(2, oflag): e.emit(x)
    stamp()
    e("s_mov_b64 exec, 1")
    e("s_waitcnt vmcnt(0)")
    e.vm = []
    e(f"buffer_store_dword v2, v3, {R(R_WS)}, s{S_T0} offen {oflag}")
    e("s_mov_b64 exec, -1")
publish("")
e.lab("L_pubdone")
stamp()
if args.x2pos < 0: e("s_barrier")
e(f"s_lshl_b32 s{S_BG2}, s{S_RG}, 2")
e(f"s_add_u32 s{S_BG2}, s{S_BG2}, s{S_W}")
e(f"s_lshl_b32 s{S_T0}, s{S_BG2}, 3")
e(f"s_add_u32 s{S_T0}, s{S_T0}, s{S_J}")
e(f"s_mul_i32 s{S_OB2}, s{S_T0}, {4*18432}")
if args.p2same: e(f"s_mul_i32 s{S_OB2}, s{S_J}, {4*18432}")
e(f"s_lshl_b32 s{S_T0}, s{S_T0}, 7")
e(f"s_add_u32 s{S_T0}, s{S_T0}, {WS_F1}")
def poll(lab, soff):
    e(f"s_mov_b32 s{S_CNT}, 0")
    e.lab(lab)
    e(f"buffer_load_dword v4, v{V_FL}, {R(R_WS)}, s{soff} offen sc1")
    e(f"s_add_u32 s{S_CNT}, s{S_CNT}, 1")
    e(f"s_cmp_ge_u32 s{S_CNT}, 100000")
    e(f"s_cbranch_scc1 {lab}_done")
    e("s_waitcnt vmcnt(0)")
    e(f"v_cmp_ne_u32 vcc, s{S_NONCE}, v4")
    e(f"s_cbranch_vccz {lab}_done")
    if args.sleep: e(f"s_sleep {args.sleep}")
    e(f"s_branch {lab}")
    e.lab(lab + "_done")
    e("s_waitcnt vmcnt(0)")
    e.vm = []
AF = [16, 36]; ACC2 = 56
def rd(u, fs):
    ops = []
    for tt in range(5):
        for m in range(2):
            off = wo_lds(u) - PITCH + m*2560 + tt*32
            a = V_A0
            if off >= 61440: off -= 61440; a = V_A1
            ops.append(f"ds_read_b64_tr_b16 {vr(AF[fs]+4*tt+2*m,2)}, v{a} offset:{off}")
    return ops
fwait(12)
for x in rd(0, 0): e(x)
poll("L_poll1", S_T0)
stamp()
def ofr(u, qt):
    k = u % 10
    b = 116 + 12*k if k < 5 else 192 + 12*(k-5)
    return vr(b + 4*qt, 4)
e(f"s_mul_i32 s{S_T1}, s{S_ROT}, 3072")
def oload(u):
    ops = [f"s_add_u32 s{S_SO}, s{S_OB2}, s{S_T1}"]
    for qt in range(3):
        if args.p2noload and u >= 1: ops.append(("s_nop 0", f"o{u}"))
        else: ops.append((f"buffer_load_dwordx4 {ofr(u,qt)}, v{V_L16}, {R(R_WS)}, s{S_SO} offen offset:{qt*1024} {args.oload}", f"o{u}"))
    ops += [f"s_add_u32 s{S_T1}, s{S_T1}, 3072", f"s_cmp_eq_u32 s{S_T1}, {24*3072}", f"s_cselect_b32 s{S_T1}, 0, s{S_T1}"]
    return ops
NPRE = args.npre
assert NPRE <= 9
for u in range(NPRE): e.emit(oload(u))
for u in range(24):
    fs = u % 2
    e.vmwait(f"o{u}", extra=" lgkmcnt(0)")
    if u == 0: stamp()
    mf = []
    for tt in range(5):
        for qt in range(3):
            d = ACC2 + (tt*3+qt)*4
            c = "0" if u == 0 else vr(d, 4)
            mf.append(f"v_mfma_f32_16x16x32_bf16 {vr(d,4)}, {vr(AF[fs]+4*tt,4)}, {ofr(u,qt)}, {c}")
    if args.p2nomfma: mf = ["s_nop 0"]*15
    dm = []
    if u + NPRE < 24:
        o = oload(u + NPRE)
        dm = [o[0:2], o[2:3], o[3:]]
    rq = rd(u+1, 1-fs) if (u < 23 and not args.p2nord) else []
    if u in (6, 14): rq = rq + [fread(13 if u == 6 else 14)]
    if u in (7, 15):
        fcmp(); e(mf[0]); check(13 if u == 7 else 14); mf = mf[1:]
    if u == args.x2pos:
        e(mf[0]); e("s_barrier"); mf = mf[1:]
    interleave(mf, rq, dm, first2=2)
stamp()
e(f"s_lshl_b32 s{S_T0}, s{S_RG}, 3")
e(f"s_add_u32 s{S_T0}, s{S_T0}, s{S_CG}")
e(f"s_lshl_b32 s{S_T0}, s{S_T0}, 2")
e(f"s_add_u32 s{S_T0}, s{S_T0}, s{S_W}")
e(f"s_lshl_b32 s{S_F2}, s{S_T0}, 7")
e(f"s_add_u32 s{S_F2}, s{S_F2}, {WS_F2}")
e(f"s_lshl_b32 s{S_PB}, s{S_T0}, 16")
e(f"s_add_u32 s{S_PB}, s{S_PB}, {WS_P}")
e(f"s_lshl_b32 s{S_T1}, s{S_J}, 10")
e(f"s_add_u32 s{S_T1}, s{S_T1}, s{S_PB}")
for p in range(8):
    q = 16 + 4*p
    for z in range(2):
        a = ACC2 + min(2*p+z, 14)*4
        e(f"v_cvt_pk_bf16_f32 v{q+2*z}, v{a}, v{a+1}")
        e(f"v_cvt_pk_bf16_f32 v{q+2*z+1}, v{a+2}, v{a+3}")
    e(f"s_add_u32 s{S_SO}, s{S_T1}, {p*8192}")
    e.vmem(f"buffer_store_dwordx4 {vr(q,4)}, v{V_L16}, {R(R_WS)}, s{S_SO} offen sc1", "pst")
if args.f2own:
    e(f"s_sub_u32 s{S_F2}, s{S_F2}, {WS_F2}")
    e(f"s_lshl_b32 s{S_F2}, s{S_F2}, 3")
    e(f"s_add_u32 s{S_F2}, s{S_F2}, {WS_F1 + 0x40000}")
    e(f"s_lshl_b32 s{S_T1}, s{S_J}, 2")
    e(f"s_add_u32 s{S_T1}, s{S_T1}, s{S_F2}")
    e(f"v_lshlrev_b32 v5, 5, v{V_FL}")
    e(f"s_lshl_b32 s{S_T2}, s{S_J}, 7")
    e(f"s_add_u32 s{S_F2}, s{S_F2}, s{S_T2}")
    e("s_mov_b64 exec, 0xff")
    e.vmwait("pst")
    e.vmem(f"buffer_store_dword v2, v5, {R(R_WS)}, s{S_T1} offen sc1", "f2")
    e("s_mov_b64 exec, -1")
else:
    e(f"s_lshl_b32 s{S_T1}, s{S_J}, 2")
    e(f"s_add_u32 s{S_T1}, s{S_T1}, s{S_F2}")
    e("s_mov_b64 exec, 1")
    e.vmwait("pst")
    e.vmem(f"buffer_store_dword v2, v3, {R(R_WS)}, s{S_T1} offen sc1", "f2")
    e("s_mov_b64 exec, -1")
if args.f2atom:
    D = args.f2atom
    e("s_mov_b64 exec, 0xff")
    e(f"s_mov_b32 s{S_CNT}, 0")
    for k in range(D-1):
        e(f"v_mov_b32 v{24+k}, 0")
        e(f"buffer_atomic_or v{24+k}, v{V_FL}, {R(R_WS)}, s{S_F2} offen sc0 sc1")
        e(f"s_sleep {args.f2sleep}")
    e.lab("L_poll2")
    for k in range(D):
        nw = (k + D - 1) % D
        e(f"v_mov_b32 v{24+nw}, 0")
        e(f"buffer_atomic_or v{24+nw}, v{V_FL}, {R(R_WS)}, s{S_F2} offen sc0 sc1")
        e(f"s_waitcnt vmcnt({D-1})")
        e(f"v_cmp_ne_u32 vcc, s{S_NONCE}, v{24+k}")
        e("s_cbranch_vccz L_poll2_done")
        e(f"s_sleep {args.f2sleep}")
    e(f"s_add_u32 s{S_CNT}, s{S_CNT}, 1")
    e(f"s_cmp_lt_u32 s{S_CNT}, 50000")
    e("s_cbranch_scc1 L_poll2")
    e.lab("L_poll2_done")
    e("s_mov_b64 exec, -1")
    e.vm = []
else:
    sv = args.sleep; args.sleep = args.f2sleep
    poll("L_poll2", S_F2)
    args.sleep = sv
stamp()
e(f"s_lshl_b32 s{S_T1}, s{S_J}, 13")
e(f"s_add_u32 s{S_T1}, s{S_T1}, s{S_PB}")
e(f"s_add_u32 s{S_T2}, s{S_T1}, 4096")
for jj in range(8):
    e.vmem(f"buffer_load_dwordx4 {vr(64+4*jj,4)}, v{V_L16}, {R(R_WS)}, s{S_T1 if jj < 4 else S_T2} offen offset:{(jj%4)*1024} sc1", f"pl{jj}")
e(f"s_mul_i32 s{S_OUTB}, s{S_BG2}, {48*1280}")
e(f"s_mul_i32 s{S_T0}, s{S_CG}, 160")
e(f"s_add_u32 s{S_OUTB}, s{S_OUTB}, s{S_T0}")
e(f"s_mov_b32 s{S_T4}, 0xffff0000")
for jj in range(8):
    e.vmwait(f"pl{jj}")
    dst = 100 if jj == 0 else 108
    for d in range(4):
        e(f"v_lshlrev_b32 v{dst+2*d}, 16, v{64+4*jj+d}")
        e(f"v_and_b32 v{dst+2*d+1}, s{S_T4}, v{64+4*jj+d}")
    if jj:
        for d in range(4):
            e(f"v_pk_add_f32 {vr(100+2*d,2)}, {vr(100+2*d,2)}, {vr(108+2*d,2)}")
res = [100, 104]
for z in range(2):
    b = res[z]
    e(f"v_cvt_pk_bf16_f32 v{20+2*z}, v{b}, v{b+1}")
    e(f"v_cvt_pk_bf16_f32 v{21+2*z}, v{b+2}, v{b+3}")
    e(f"s_lshl_b32 s{S_T0}, s{S_J}, 1")
    e(f"s_add_u32 s{S_T0}, s{S_T0}, {z}")
    if z == 1:
        e(f"s_cmp_eq_u32 s{S_T0}, 15")
        e("s_cbranch_scc1 L_fin")
    e(f"s_mul_i32 s{S_T1}, s{S_T0}, 11")
    e(f"s_lshr_b32 s{S_T1}, s{S_T1}, 5")
    e(f"s_mul_i32 s{S_T2}, s{S_T1}, 3")
    e(f"s_sub_u32 s{S_T2}, s{S_T0}, s{S_T2}")
    e(f"s_lshl_b32 s{S_T1}, s{S_T1}, 5")
    e(f"s_mul_i32 s{S_T2}, s{S_T2}, {16*1280}")
    e(f"s_add_u32 s{S_SO}, s{S_OUTB}, s{S_T1}")
    e(f"s_add_u32 s{S_SO}, s{S_SO}, s{S_T2}")
    e(f"buffer_store_dwordx2 {vr(20+2*z,2)}, v{V_OUT}, {R(R_OUT)}, s{S_SO} offen {args.outflag}")
e.lab("L_fin")
e(f"s_or_b32 s{S_T0}, s{S_J}, s{S_CG}")
e(f"s_cmp_lg_u32 s{S_T0}, 0")
e("s_cbranch_scc1 L_noep")
e("s_barrier")
e(f"s_cmp_lg_u32 s{S_W}, 0")
e("s_cbranch_scc1 L_noep")
e(f"s_lshl_b32 s{S_T2}, s{S_RG}, 7")
e(f"s_add_u32 s{S_T2}, s{S_T2}, {WS_E}")
e("s_mov_b64 exec, 1")
e(f"buffer_store_dword v2, v3, {R(R_WS)}, s{S_T2} offen sc1")
e("s_mov_b64 exec, -1")
e.lab("L_noep")
if STAMPS:
    e("s_waitcnt vmcnt(0)")
    stamp()
if args.dbg:
    e("s_mov_b64 exec, 1")
    e("v_mov_b32 v4, 0")
    for i in range(stamp_n[0]):
        if i == 0: e(f"s_not_b32 s{S_ST}, s{S_ST}")
        e(f"v_mov_b32 v6, s{S_ST+2*i}")
        e(f"buffer_atomic_umax v6, v4, {R(R_K)}, 0 offen offset:{4*i} sc1")
        e("s_nop 1")
else:
    stamp_store()
e.lab("L_end")
e("s_endpgm")
e.lab("L_pubslow")
e("s_nop 7")
snap = stamp_n[0]
publish("sc1")
stamp_n[0] = snap
e("s_branch L_pubdone")
for n in slow:
    e.lab(f"L_slow{n}")
    e(fread(n))
    budget(f"L_cont{n}")
    e("s_waitcnt lgkmcnt(0)")
    fcmp()
    e(f"s_cbranch_vccnz L_slow{n}")
    e(f"s_branch L_cont{n}")
e.raw(".p2align 8")
e.raw(".fill 4096, 4, 0xBF810000")
hdr = ["; generated by dev/gen11.py (fused single kernel, 4 compute + 4 loader waves)",
       "; @launch grid=(256,1,1) block=(512,1,1) lds=163840",
       '.amdgcn_target "amdgcn-amd-amdhsa--gfx950"', ".text"]
desc = f""".amdhsa_kernel {NAME}
  .amdhsa_next_free_vgpr 256
  .amdhsa_next_free_sgpr 102
  .amdhsa_accum_offset 256
  .amdhsa_group_segment_fixed_size 0
  .amdhsa_kernarg_size 64
  .amdhsa_user_sgpr_count 2
  .amdhsa_user_sgpr_kernarg_segment_ptr 1
  .amdhsa_system_sgpr_workgroup_id_x 1
.end_amdhsa_kernel"""
body = hazard_pad(e.L, verbose=True)
sys.stdout.write("\n".join(hdr + body) + '\n.section .rodata,"a"\n.p2align 6\n' + desc + "\n")
```

```python
import sys, math, argparse, struct
from asmlib import *
ap = argparse.ArgumentParser()
ap.add_argument("--stamps", action="store_true")
ap.add_argument("--clk", action="store_true")
ap.add_argument("--kvflag", default="nt")
ap.add_argument("--wflag", default="")
ap.add_argument("--xflag", default="")
ap.add_argument("--outflag", default="")
ap.add_argument("--sleep", type=int, default=1)
ap.add_argument("--prio", type=int, default=2)
ap.add_argument("--st", default="2,5")
ap.add_argument("--wopf", type=int, default=1)
ap.add_argument("--wdep", type=int, default=6)
ap.add_argument("--wdep2", type=int, default=63)
ap.add_argument("--nolocal", action="store_true")
ap.add_argument("--bars", default="1:4,5;3:6,7;5:8,9;6:;8:")
ap.add_argument("--rel", default="2:6,7,8;5:9,10,11")
ap.add_argument("--f2atom", type=int, default=4)
ap.add_argument("--f2sleep", type=int, default=2)
ap.add_argument("--ackstep", type=int, default=2)
ap.add_argument("--rotkk", type=int, default=0)
ap.add_argument("--late2", type=int, default=0)
ap.add_argument("--p2st", action="store_true")
ap.add_argument("--apoll", default="")
ap.add_argument("--tlbwarm", type=int, default=0)
ap.add_argument("--otpos", type=int, default=-1)
ap.add_argument("--wppos", type=int, default=-1)
ap.add_argument("--r1n", type=int, default=3)
args = ap.parse_args()
STAMPS = args.stamps
def parse_sched(t):
    out = []
    for it in t.split(";"):
        m, l = it.split(":")
        out.append((int(m), [int(x) for x in l.split(",") if x]))
    return out
BARS = parse_sched(args.bars)
for m, l in BARS:
    for n in l: assert m >= n - 4
assert sorted(sum([l for m, l in BARS], [])) == list(range(4, 10))
assert BARS[-2][0] >= 6 and BARS[-1][0] >= 7 and not BARS[-1][1]
REL = parse_sched(args.rel)
for m, l in REL:
    for n in l: assert m >= n - 6
assert sorted(sum([l for m, l in REL], [])) == list(range(6, 12))
NAME = "standalone__mha_block_cached__near_ridge_kernel"
WS_O = 0
WS_P = 16 << 20
WS_F1 = 48 << 20
WS_E = WS_F1 + 0x20000
WS_X = WS_F1 + 0x30000
WS_F2 = WS_F1 + 0x40000
NSTEP = 0x9E3779B0
WS_ST = 0x8000000
NST = 16
e = A()

S_X, S_K, S_V, S_WQ, S_WO, S_OUT, S_DBG, S_WS = 4, 6, 8, 10, 12, 14, 16, 18
R_X, R_WQ, R_K, R_V, R_WO, R_OUT, R_WS = 20, 24, 28, 32, 36, 40, 44
S_J, S_I, S_BP, S_H, S_W = 48, 49, 50, 51, 52
S_T0, S_T1, S_T2, S_T3, S_T4 = 53, 54, 55, 56, 57
S_IDX, S_LOC, S_NONCE = 3, 58, 59
S_A = list(range(60, 70))
S_ST = 70
S_BUD = 17
BUD = 2000000
def srd(r, p, nbytes):
    e(f"s_mov_b32 s{r}, s{p}"); e(f"s_mov_b32 s{r+1}, s{p+1}"); e(f"s_mov_b32 s{r+2}, {nbytes}"); e(f"s_mov_b32 s{r+3}, 0x00020000")
def R(r): return f"s[{r}:{r+3}]"
stamp_n = [0]
def stamp(wait=True):
    if not STAMPS: return
    i = stamp_n[0]
    if i >= NST: return
    stamp_n[0] += 1
    e(f"s_mem{'time' if args.clk else 'realtime'} s[{S_ST+2*i}:{S_ST+2*i+1}]")
    if wait: e("s_waitcnt lgkmcnt(0)")
def stamp_store():
    if not STAMPS: return
    n = stamp_n[0]
    e(f"s_lshl_b32 s{S_T0}, s2, 3")
    e(f"s_add_u32 s{S_T0}, s{S_T0}, s{S_W}")
    e(f"s_mul_i32 s{S_T0}, s{S_T0}, {NST*8}")
    e(f"s_add_u32 s{S_T0}, s{S_T0}, {WS_ST}")
    e("v_mov_b32 v4, 0")
    for i in range(NST):
        k = min(i, n-1)
        e(f"v_mov_b32 v6, s{S_ST+2*k}")
        e(f"v_mov_b32 v7, s{S_ST+2*k+1}")
        e(f"buffer_store_dwordx2 v[6:7], v4, {R(R_WS)}, s{S_T0} offen offset:{8*i}")
        e("s_nop 1")
    sys.stderr.write(f"stamps: {n}\n")
def budget(done):
    e(f"s_add_u32 s{S_BUD}, s{S_BUD}, 1")
    e(f"s_cmp_gt_u32 s{S_BUD}, {BUD}")
    e(f"s_cbranch_scc1 {done}")
XB = 12288
PITCH = 40960
SY_FLG = 36864
F_K, F_V, F_LOC, F_WO = 10, 11, 12, 16
def bufof(s): return (s + 1) % 4
def wo_lds(u): return PITCH + (u % 6)*20480
def epoch_load():
    e(f"s_lshl_b32 s{S_T2}, s{S_BP}, 7")
    e(f"s_add_u32 s{S_T2}, s{S_T2}, {WS_E}")
    e(f"s_load_dword s{S_NONCE}, s[{S_WS}:{S_WS+1}], s{S_T2}")
def xval(dst):
    e(f"s_getreg_b32 s{dst}, hwreg(HW_REG_XCC_ID, 0, 4)")
    e(f"s_and_b32 s{S_T2}, s{S_NONCE}, 0xfffffff0")
    e(f"s_or_b32 s{dst}, s{dst}, s{S_T2}")
def xline(dst):
    e(f"s_lshl_b32 s{dst}, s{S_BP}, 3")
    e(f"s_add_u32 s{dst}, s{dst}, s{S_J}")
    e(f"s_lshl_b32 s{dst}, s{dst}, 7")
    e(f"s_add_u32 s{dst}, s{dst}, {WS_X}")

e.raw(f".globl {NAME}\n.p2align 8\n.type {NAME},@function\n{NAME}:")
stamp(wait=False)
e("s_load_dwordx16 s[4:19], s[0:1], 0")
e("s_cmp_ge_u32 s2, 256")
e("s_cbranch_scc1 L_end")
e("v_lshrrev_b32 v2, 6, v0")
e("v_and_b32 v1, 63, v0")
e(f"v_readfirstlane_b32 s{S_W}, v2")
e(f"s_and_b32 s{S_J}, s2, 7")
e(f"s_lshr_b32 s{S_IDX}, s2, 3")
e(f"s_and_b32 s{S_I}, s{S_IDX}, 3")
e(f"s_lshr_b32 s{S_BP}, s{S_IDX}, 2")
e(f"s_lshl_b32 s{S_H}, s{S_J}, 2")
e(f"s_add_u32 s{S_H}, s{S_H}, s{S_I}")
e(f"s_cmp_lt_u32 s{S_W}, 4")
e("s_cbranch_scc1 L_compute")

S_L, S_KX, S_KW, S_XK, S_SO, S_LX, S_LW, S_XB, S_WB, S_KVB = S_A
V_OW, V_OXA, V_OXB, V_OV, V_OKA, V_OKB, V_OOB, V_PF, LDUMMY = 10, 11, 12, 13, 14, 15, 16, 17, 18
V_OWO = 20
S_KB2, S_VB2, S_FLB, S_KD, S_VD, S_WOB = 4, 5, 6, 7, 8, 9
e(f"s_sub_u32 s{S_L}, s{S_W}, 4")
e("v_lshrrev_b32 v2, 3, v1")
e("v_and_b32 v3, 7, v1")
e("v_lshrrev_b32 v4, 1, v2")
e("v_lshlrev_b32 v5, 1, v4")
e("v_xor_b32 v5, v5, v3")
e("v_lshlrev_b32 v5, 4, v5")
e("v_lshrrev_b32 v6, 2, v2")
e("v_lshlrev_b32 v6, 3, v6")
e("v_and_b32 v7, 3, v2")
e("v_add_u32 v6, v6, v7")
e("v_mul_u32_u24 v6, 12288, v6")
e(f"v_add_u32 v{V_OW}, v6, v5")
e("v_mul_u32_u24 v6, 1280, v2")
e("v_xor_b32 v7, v3, v4")
e("v_lshlrev_b32 v8, 4, v7")
e(f"s_and_b32 s{S_T1}, s{S_L}, 1")
e(f"s_lshl_b32 s{S_T2}, s{S_T1}, 6")
e(f"v_xor_b32 v8, s{S_T2}, v8")
e(f"v_add_u32 v{V_OXA}, v6, v8")
e("v_xor_b32 v9, 64, v8")
e(f"v_add_u32 v{V_OXB}, v6, v9")
e(f"s_mul_i32 s{S_XB}, s{S_BP}, {96*1280}")
e(f"s_mul_i32 s{S_T2}, s{S_L}, {24*1280}")
e(f"s_add_u32 s{S_XB}, s{S_XB}, s{S_T2}")
e(f"s_mul_i32 s{S_WB}, s{S_H}, 384")
e(f"s_lshr_b32 s{S_T0}, s{S_L}, 1")
e(f"s_mul_i32 s{S_T2}, s{S_T0}, {16*12288}")
e(f"s_add_u32 s{S_WB}, s{S_WB}, s{S_T2}")
e(f"s_mul_i32 s{S_T2}, s{S_T1}, {4*12288}")
e(f"s_add_u32 s{S_WB}, s{S_WB}, s{S_T2}")
e(f"s_mul_i32 s{S_KX}, s{S_BP}, 5")
e(f"s_lshr_b32 s{S_KX}, s{S_KX}, 2")
e(f"s_mul_i32 s{S_T2}, s{S_I}, 5")
e(f"s_lshr_b32 s{S_T2}, s{S_T2}, 1")
e(f"s_add_u32 s{S_KX}, s{S_KX}, s{S_T2}")
e(f"s_sub_u32 s{S_T2}, s{S_KX}, 10")
e(f"s_cmp_ge_u32 s{S_KX}, 10")
e(f"s_cselect_b32 s{S_KX}, s{S_T2}, s{S_KX}")
e(f"s_lshl_b32 s{S_KX}, s{S_KX}, 7")
e(f"s_mul_i32 s{S_LX}, s{S_L}, 3072")
e(f"s_lshl_b32 s{S_LW}, s{S_L}, 10")
e("s_waitcnt lgkmcnt(0)")
srd(R_X, S_X, 16*48*640*2)
srd(R_WQ, S_WQ, 640*6144*2)
def issue(s):
    buf = bufof(s)
    e(f"s_mul_i32 s{S_KW}, s{S_KX}, 6144"); e(f"s_add_u32 s{S_KW}, s{S_KW}, s{S_WB}"); e(f"s_add_u32 s{S_XK}, s{S_KX}, s{S_XB}")
    ws = [("w", ks, cg) for ks in range(2) for cg in range(3)]
    xs = [("x", a) for a in range(3)]
    for o in [xs[0], ws[0], ws[1], xs[1], ws[2], xs[2], ws[3], ws[4], ws[5]]:
        if o[0] == "w":
            _, ks, cg = o
            e(f"s_add_u32 m0, s{S_LW}, {buf*PITCH + XB + ks*12288 + cg*4096}")
            e(f"s_add_u32 s{S_SO}, s{S_KW}, {32*ks*12288 + cg*128}")
            e(f"buffer_load_dwordx4 v{V_OW}, {R(R_WQ)}, s{S_SO} offen {args.wflag} lds")
        else:
            a = o[1]
            e(f"s_add_u32 m0, s{S_LX}, {buf*PITCH + a*1024}")
            e(f"s_add_u32 s{S_SO}, s{S_XK}, {8*a*1280}")
            e(f"buffer_load_dwordx4 v{V_OXB if a == 1 else V_OXA}, {R(R_X)}, s{S_SO} offen {args.xflag} lds")
    e(f"s_add_u32 s{S_KX}, s{S_KX}, 128"); e(f"s_cmp_eq_u32 s{S_KX}, 1280"); e(f"s_cselect_b32 s{S_KX}, 0, s{S_KX}")
def flag(n):
    e(f"s_add_u32 m0, s{S_FLB}, {16*n}")
    e("s_mov_b64 exec, 1")
    e(f"buffer_load_dword v{V_OOB}, {R(R_X)}, 0 offen lds")
    e("s_mov_b64 exec, -1")
issue(0)
srd(R_K, S_K, 16*32*48*192*2)
srd(R_V, S_V, 16*32*48*192*2)
e(f"v_mov_b32 v{V_OOB}, 0x7ffffff0")
e(f"s_lshl_b32 s{S_FLB}, s{S_L}, 2")
e(f"s_add_u32 s{S_FLB}, s{S_FLB}, {SY_FLG}")
e("s_barrier")
flag(0)
issue(1); flag(1)
epoch_load()
srd(R_WO, S_WO, 6144*640*2)
srd(R_WS, S_WS, 268435456)
e("v_mul_u32_u24 v6, 384, v2")
e(f"v_add_u32 v{V_OV}, v6, v5")
e(f"v_add_u32 v{V_OKA}, v6, v8")
e(f"v_add_u32 v{V_OKB}, v6, v9")
e(f"s_lshl_b32 s{S_T2}, s{S_BP}, 1")
e(f"s_add_u32 s{S_T2}, s{S_T2}, s{S_T0}")
e(f"s_lshl_b32 s{S_T2}, s{S_T2}, 5")
e(f"s_add_u32 s{S_T2}, s{S_T2}, s{S_H}")
e(f"s_mul_i32 s{S_KVB}, s{S_T2}, 18432")
e(f"s_mul_i32 s{S_KD}, s{S_T0}, 18432")
e(f"s_mul_i32 s{S_T3}, s{S_T1}, 3072")
e(f"s_add_u32 s{S_KD}, s{S_KD}, s{S_T3}")
e(f"s_lshl_b32 s{S_VD}, s{S_T1}, 11")
e(f"s_lshl_b32 s{S_T3}, s{S_T0}, 10")
e(f"s_add_u32 s{S_VD}, s{S_VD}, s{S_T3}")
e(f"s_mul_i32 s{S_KB2}, s{S_T1}, {24*384}")
e(f"s_add_u32 s{S_KB2}, s{S_KB2}, s{S_KVB}")
e(f"s_mul_i32 s{S_VB2}, s{S_T1}, {8*384}")
e(f"s_add_u32 s{S_VB2}, s{S_VB2}, s{S_KVB}")
e(f"s_mul_i32 s{S_WOB}, s{S_J}, {768*1280}")
e(f"s_mul_i32 s{S_T2}, s{S_T0}, {96*1280}")
e(f"s_add_u32 s{S_WOB}, s{S_WOB}, s{S_T2}")
e(f"s_mul_i32 s{S_T2}, s{S_T1}, {16*1280}")
e(f"s_add_u32 s{S_WOB}, s{S_WOB}, s{S_T2}")
e(f"s_mul_i32 s{S_T2}, s{S_I}, 320")
e(f"s_add_u32 s{S_WOB}, s{S_WOB}, s{S_T2}")
e(f"s_mov_b32 s{S_T0}, 0x0ccccccd")
for n in range(5):
    e(f"v_add_u32 v2, {64*n}, v1")
    e(f"v_mul_hi_u32 v3, v2, s{S_T0}")
    e("v_mul_u32_u24 v4, 20, v3")
    e("v_sub_u32 v4, v2, v4")
    e("v_lshrrev_b32 v5, 1, v3")
    e("v_and_b32 v5, 2, v5")
    e("v_xor_b32 v4, v4, v5")
    e("v_mul_u32_u24 v3, 1280, v3")
    e(f"v_lshl_add_u32 v{V_OWO+n}, v4, 4, v3")
e("v_min_u32 v2, 59, v1")
e(f"v_lshlrev_b32 v{V_PF}, 7, v2")
V_T1, V_T2 = 26, 27
S_OT = 10
e(f"v_lshlrev_b32 v{V_T1}, 7, v1")
e("v_and_b32 v2, 7, v1")
e(f"v_lshlrev_b32 v{V_T2}, 7, v2")
e(f"s_mul_i32 s{S_OT}, s{S_T1}, 9216")
e(f"s_add_u32 s{S_OT}, s{S_OT}, s{S_KVB}")
def wopf():
    e(f"s_lshl_b32 s{S_T2}, s{S_IDX}, 2"); e(f"s_add_u32 s{S_T2}, s{S_T2}, s{S_L}")
    e(f"s_mul_i32 s{S_T2}, s{S_T2}, 7680"); e(f"s_mul_i32 s{S_T3}, s{S_J}, {768*1280}"); e(f"s_add_u32 s{S_T2}, s{S_T2}, s{S_T3}")
    e(f"buffer_load_dword v{LDUMMY}, v{V_PF}, {R(R_WO)}, s{S_T2} offen")
def extra(n):
    if n == args.otpos:
        e(f"s_add_u32 s{S_T2}, s{S_OT}, {WS_O + 8192}")
        e(f"buffer_load_dword v{LDUMMY}, v{V_T1}, {R(R_WS)}, s{S_OT} offen sc1")
        e(f"buffer_load_dword v{LDUMMY}, v{V_T2}, {R(R_WS)}, s{S_T2} offen sc1")
    if n == args.wppos: wopf()
issue(2); flag(2); extra(2)
issue(3); flag(3); extra(3)
for bi, (m, l) in enumerate(BARS[:-1]):
    e("s_barrier")
    if bi in (0, len(BARS)-2): stamp()
    for n in l: issue(n); flag(n); extra(n)
xline(S_T2)
e(f"s_load_dwordx4 s[12:15], s[{S_WS}:{S_WS+1}], s{S_T2} glc")
for a in range(3):
    for cg in range(3):
        e(f"s_add_u32 m0, s{S_KD}, {3*PITCH + cg*6144 + a*1024}")
        e(f"s_add_u32 s{S_SO}, s{S_KB2}, {8*a*384 + cg*128}")
        e(f"buffer_load_dwordx4 v{V_OKB if a == 1 else V_OKA}, {R(R_K)}, s{S_SO} offen {args.kvflag} lds")
flag(F_K)
extra(10)
e("s_barrier")
for kt in range(3):
    for cg in range(3):
        e(f"s_add_u32 m0, s{S_VD}, {kt*12288 + cg*4096}")
        e(f"s_add_u32 s{S_SO}, s{S_VB2}, {16*kt*384 + cg*128}")
        e(f"buffer_load_dwordx4 v{V_OV}, {R(R_V)}, s{S_SO} offen {args.kvflag} lds")
e("s_waitcnt lgkmcnt(0)")
e(f"s_add_u32 s{S_NONCE}, s{S_NONCE}, {NSTEP:#x}")
xval(S_T3)
e(f"s_xor_b32 s{S_T0}, s12, s{S_T3}")
for k in range(1, 4):
    e(f"s_xor_b32 s{S_T2}, s{12+k}, s{S_T3}")
    e(f"s_or_b32 s{S_T0}, s{S_T0}, s{S_T2}")
e(f"s_cmp_lg_u32 s{S_T0}, 0")
e("s_cbranch_scc1 L_nolocal")
if not args.nolocal: flag(F_LOC)
e.lab("L_nolocal")
flag(F_V)
extra(11)
stamp()
e(f"s_mul_i32 s{S_LW}, s{S_L}, 5120")
def wopf():
    e(f"s_lshl_b32 s{S_T2}, s{S_IDX}, 2"); e(f"s_add_u32 s{S_T2}, s{S_T2}, s{S_L}")
    e(f"s_mul_i32 s{S_T2}, s{S_T2}, 7680"); e(f"s_mul_i32 s{S_T3}, s{S_J}, {768*1280}"); e(f"s_add_u32 s{S_T2}, s{S_T2}, s{S_T3}")
    e(f"buffer_load_dword v{LDUMMY}, v{V_PF}, {R(R_WO)}, s{S_T2} offen")
def wounit(u, dep):
    hd, kk = divmod(u, 3)
    if kk == 0:
        e(f"s_add_u32 s{S_T0}, s{S_I}, {hd}")
        e(f"s_and_b32 s{S_T0}, s{S_T0}, 3")
        e(f"s_mul_i32 s{S_T0}, s{S_T0}, {192*1280}")
        e(f"s_add_u32 s{S_T0}, s{S_T0}, s{S_WOB}")
    e(f"s_add_u32 s{S_SO}, s{S_T0}, {kk*32*1280}")
    for n in range(5):
        e(f"s_add_u32 m0, s{S_LW}, {wo_lds(u) + n*1024}")
        if dep < 63: e(f"s_waitcnt vmcnt({dep})")
        e(f"buffer_load_dwordx4 v{V_OWO+n}, {R(R_WO)}, s{S_SO} offen lds")
    flag(F_WO + u)
e("s_barrier")
if args.wopf == 0: wopf()
e("s_barrier")
e("s_barrier")
stamp()
for u in range(6):
    wounit(u, args.wdep)
    if args.wopf == u+1: wopf()
    if u in (2, 5): stamp()
for (m, l) in REL:
    e("s_barrier")
    stamp()
    for u in l: wounit(u, args.wdep2)
    stamp()
e("s_waitcnt vmcnt(0)")
stamp()
if STAMPS:
    e("s_barrier"); e("s_barrier")
stamp_store()
e("s_endpgm")

stamp_n[0] = 1 if STAMPS else 0
e.lab("L_compute")
S_B, S_JH, S_OB, S_SO, S_CNT, S_F1, S_OB2, S_PB, S_F2, S_OUTB = S_A
V_L16, V_FL, V_OUT, V_SR, V_RDY = 10, 11, 12, 14, 15
V_AW, V_AX = 16, 22
FR = [32, 68]
ACC = 104
V_AV, V_AK, DUMMY = 176, 182, 191
QF = 192
SUMA, ONES, RINV = 228, 240, 244
V_SXW, V_SXR, V_LOC, V_FL8 = 250, 251, 252, 255
VA2 = [8, 9, 13, 188, 189, 190, 253, 254]
def va2(st, par, hi): return VA2[st*4 + par*2 + hi]
if args.prio: e(f"s_setprio {args.prio}")
e(f"v_lshlrev_b32 v{V_L16}, 4, v1")
e("v_lshlrev_b32 v2, 2, v0")
e(f"v_add_u32 v2, {SY_FLG}, v2")
e("v_mov_b32 v4, 1")
e("ds_write_b32 v2, v4")
e("s_getpc_b64 s[60:61]")
e.lab("L_pc")
e(f"s_sub_u32 s60, s60, L_pc-{NAME}")
e("s_subb_u32 s61, s61, 0")
e(f"s_lshl_b32 s{S_T0}, s{S_IDX}, 10")
e("v_and_b32 v2, 7, v1")
e("v_lshlrev_b32 v2, 7, v2")
e(f"v_add_u32 v2, s{S_T0}, v2")
e(f"global_load_dword v{DUMMY}, v2, s[60:61]")
e("s_waitcnt lgkmcnt(0)")
e("s_barrier")
epoch_load()
srd(R_OUT, S_OUT, 16*48*640*2)
srd(R_WS, S_WS, 268435456)
e(f"s_mov_b32 s{S_BUD}, 0")
e(f"s_lshr_b32 s{S_B}, s{S_W}, 1")
e(f"s_and_b32 s{S_JH}, s{S_W}, 1")
e("v_lshrrev_b32 v2, 4, v1")
e("v_and_b32 v3, 15, v1")
e("v_mul_u32_u24 v4, 1280, v3")
e(f"v_lshl_add_u32 v{V_OUT}, v2, 3, v4")
e("v_and_b32 v4, 7, v1")
e(f"v_lshlrev_b32 v{V_FL8}, 2, v4")
e("v_and_b32 v4, 3, v1")
e(f"v_lshlrev_b32 v{V_FL}, 3, v4")
e("v_lshlrev_b32 v5, 2, v4")
e(f"v_add_u32 v{V_SR}, {SY_FLG}, v5")
e(f"s_xor_b32 s{S_T3}, s{S_W}, 1")
e(f"s_mul_i32 s{S_T2}, s{S_W}, 9216")
e(f"s_mul_i32 s{S_T1}, s{S_T3}, 9216")
e(f"v_add_u32 v{V_SXW}, s{S_T2}, v{V_L16}")
e(f"v_add_u32 v{V_SXR}, s{S_T1}, v{V_L16}")
for r in range(4): e(f"v_mov_b32 v{ONES+r}, 0x3f803f80")
e("v_lshrrev_b32 v8, 1, v3")
e("v_xor_b32 v4, v8, v2")
e("v_lshlrev_b32 v4, 4, v4")
e("v_lshl_add_u32 v4, v3, 7, v4")
e(f"s_mul_i32 s{S_T2}, s{S_B}, 6144")
e(f"v_add_u32 v{V_AX}, s{S_T2}, v4")
e(f"v_xor_b32 v{V_AX+1}, 64, v{V_AX}")
e(f"v_add_u32 v{V_AX+8}, {2*PITCH}, v{V_AX}")
e(f"v_add_u32 v{V_AX+9}, {2*PITCH}, v{V_AX+1}")
e("v_lshrrev_b32 v9, 1, v2")
e("v_xor_b32 v9, v9, v8")
e("v_and_b32 v4, 1, v2")
e("v_lshlrev_b32 v4, 3, v4")
e("v_lshl_add_u32 v4, v3, 7, v4")
e(f"s_mul_i32 s{S_T2}, s{S_JH}, 12")
e(f"s_mul_i32 s{S_T1}, s{S_B}, 18432")
e(f"s_add_u32 s{S_T1}, s{S_T1}, {3*PITCH}")
for k in range(6):
    e(f"s_add_u32 s{S_T3}, s{S_T2}, {2*k}")
    e(f"s_and_b32 s{S_T0}, s{S_T3}, 7")
    e(f"s_lshr_b32 s{S_T3}, s{S_T3}, 3")
    e(f"s_mul_i32 s{S_T3}, s{S_T3}, 6144")
    e(f"s_add_u32 s{S_T3}, s{S_T3}, s{S_T1}")
    e(f"v_xor_b32 v6, s{S_T0}, v9")
    e(f"v_lshl_add_u32 v6, v6, 4, v4")
    e(f"v_add_u32 v{V_AK+k}, s{S_T3}, v6")
e("v_lshrrev_b32 v4, 2, v1")
e("v_and_b32 v4, 7, v4")
e("v_lshrrev_b32 v5, 5, v1")
e("v_lshlrev_b32 v5, 11, v5")
e("v_lshl_add_u32 v5, v4, 7, v5")
e("v_and_b32 v6, 3, v1")
e("v_lshl_add_u32 v5, v6, 3, v5")
e("v_lshrrev_b32 v4, 1, v4")
e(f"s_mul_i32 s{S_T2}, s{S_JH}, 6")
e(f"s_lshl_b32 s{S_T1}, s{S_B}, 10")
e(f"s_sub_u32 s{S_T1}, s{S_T1}, {XB}")
for t in range(6):
    e(f"s_add_u32 s{S_T3}, s{S_T2}, {t}")
    e(f"s_and_b32 s{S_T0}, s{S_T3}, 3")
    e(f"s_lshr_b32 s{S_T3}, s{S_T3}, 2")
    e(f"s_lshl_b32 s{S_T3}, s{S_T3}, 12")
    e(f"s_add_u32 s{S_T3}, s{S_T3}, {XB}")
    e(f"v_xor_b32 v6, s{S_T0}, v4")
    e(f"v_lshl_add_u32 v6, v6, 5, v5")
    e(f"v_add_u32 v{V_AW+t}, s{S_T3}, v6")
    e(f"v_add_u32 v{V_AW+8+t}, {2*PITCH}, v{V_AW+t}")
    e(f"v_add_u32 v{V_AV+t}, s{S_T1}, v{V_AW+t}")
e(f"s_lshl_b32 s{S_T2}, s{S_BP}, 1")
e(f"s_add_u32 s{S_T2}, s{S_T2}, s{S_B}")
e(f"s_mul_i32 s{S_OUTB}, s{S_T2}, {48*1280}")
e(f"s_lshl_b32 s{S_T2}, s{S_T2}, 3")
e(f"s_add_u32 s{S_T2}, s{S_T2}, s{S_J}")
e(f"s_mul_i32 s{S_OB2}, s{S_T2}, {4*18432}")
e(f"s_mul_i32 s{S_T3}, s{S_JH}, 9216")
e(f"s_add_u32 s{S_OB2}, s{S_OB2}, s{S_T3}")
e(f"s_mul_i32 s{S_T3}, s{S_I}, 18432")
e(f"s_add_u32 s{S_OB}, s{S_OB2}, s{S_T3}")
e(f"s_lshl_b32 s{S_F1}, s{S_T2}, 7")
e(f"s_lshl_b32 s{S_T3}, s{S_JH}, 2")
e(f"s_add_u32 s{S_F1}, s{S_F1}, s{S_T3}")
e(f"s_add_u32 s{S_F1}, s{S_F1}, {WS_F1}")
e(f"s_mul_i32 s{S_T3}, s{S_I}, 320")
e(f"s_add_u32 s{S_OUTB}, s{S_OUTB}, s{S_T3}")
e(f"s_mul_i32 s{S_T3}, s{S_JH}, 160")
e(f"s_add_u32 s{S_OUTB}, s{S_OUTB}, s{S_T3}")
if args.tlbwarm:
    srd(R_K, S_K, 16*32*48*192*2)
    srd(R_V, S_V, 16*32*48*192*2)
    srd(R_WO, S_WO, 6144*640*2)
    e("v_mov_b32 v2, 0")
    e(f"s_lshl_b32 s{S_T0}, s{S_IDX}, 2")
    e(f"s_add_u32 s{S_T0}, s{S_T0}, s{S_W}")
    e(f"s_lshl_b32 s{S_T0}, s{S_T0}, 16")
    e(f"s_add_u32 s{S_T0}, s{S_T0}, {WS_P + 7*8192 + 512}")
    e(f"s_lshl_b32 s{S_T1}, s{S_J}, 2")
    e(f"s_add_u32 s{S_T1}, s{S_T1}, s{S_W}")
    e(f"s_mul_i32 s{S_T1}, s{S_T1}, {192*1280}")
    e("s_mov_b64 exec, 1")
    e(f"buffer_load_dword v{DUMMY}, v2, {R(R_K)}, s{S_OB} offen sc1")
    e(f"buffer_load_dword v{DUMMY}, v2, {R(R_V)}, s{S_OB} offen sc1")
    e(f"buffer_load_dword v{DUMMY}, v2, {R(R_WO)}, s{S_T1} offen sc1")
    e(f"buffer_load_dword v{DUMMY}, v2, {R(R_WS)}, s{S_OB} offen sc1")
    e(f"buffer_load_dword v{DUMMY}, v2, {R(R_WS)}, s{S_T0} offen sc1")
    e(f"buffer_load_dword v{DUMMY}, v2, {R(R_OUT)}, s{S_OUTB} offen sc1")
    e("s_mov_b64 exec, -1")
e("v_lshrrev_b32 v2, 2, v1")
e("v_mul_u32_u24 v2, 320, v2")
e("v_and_b32 v3, 3, v1")
e("v_lshl_add_u32 v2, v3, 3, v2")
e("v_lshrrev_b32 v3, 4, v1")
e("v_and_b32 v3, 1, v3")
e("v_lshlrev_b32 v3, 5, v3")
e("v_add_u32 v4, v2, v3")
e("v_sub_u32 v5, v2, v3")
e(f"s_mul_i32 s{S_T0}, s{S_JH}, {32*320}")
e(f"s_add_u32 s{S_T0}, s{S_T0}, {PITCH}")
e(f"s_cmp_eq_u32 s{S_JH}, 0")
e("s_cselect_b64 vcc, -1, 0")
e(f"s_cselect_b32 s{S_T1}, 160, 0")
e(f"s_cselect_b32 s{S_T2}, 0, 160")
e(f"s_add_u32 s{S_T1}, s{S_T1}, s{S_T0}")
e(f"s_add_u32 s{S_T2}, s{S_T2}, s{S_T0}")
e("v_cndmask_b32 v6, v4, v5, vcc")
e("v_cndmask_b32 v7, v5, v4, vcc")
e(f"v_add_u32 v{va2(0,0,0)}, s{S_T1}, v6")
e(f"v_add_u32 v{va2(0,1,0)}, s{S_T1}, v7")
e(f"v_add_u32 v{va2(1,0,0)}, s{S_T2}, v7")
e(f"v_add_u32 v{va2(1,1,0)}, s{S_T2}, v6")
for st in range(2):
    for par in range(2): e(f"v_add_u32 v{va2(st,par,1)}, 61440, v{va2(st,par,0)}")
cs = (192 ** -0.5) * math.log2(math.e)
cbits = struct.unpack("<I", struct.pack("<f", cs))[0]
S_SC = S_T4
e(f"s_mov_b32 s{S_SC}, {cbits:#x}")
e("s_waitcnt lgkmcnt(0)")
e(f"s_add_u32 s{S_NONCE}, s{S_NONCE}, {NSTEP:#x}")
e(f"s_cmp_lg_u32 s{S_W}, 0")
e("s_cbranch_scc1 L_nox")
xval(S_T3)
xline(S_T2)
e(f"s_lshl_b32 s{S_T1}, s{S_I}, 2")
e(f"s_add_u32 s{S_T2}, s{S_T2}, s{S_T1}")
e(f"v_mov_b32 v2, s{S_T3}")
e("v_mov_b32 v3, 0")
e("s_mov_b64 exec, 1")
e(f"buffer_store_dword v2, v3, {R(R_WS)}, s{S_T2} offen sc1")
e("s_mov_b64 exec, -1")
e.lab("L_nox")

slow = []
def fread(n): return f"ds_read_b32 v{V_RDY}, v{V_SR} offset:{16*n}"
def fcmp(): e(f"v_cmp_ne_u32 vcc, 0, v{V_RDY}")
def check(n):
    e(f"s_cbranch_vccnz L_slow{n}")
    e.lab(f"L_cont{n}")
    slow.append(n)
def fwait(n):
    e(f"s_branch L_slow{n}")
    e.lab(f"L_cont{n}")
    slow.append(n)
def read_ops(s, ks, fs):
    buf = bufof(s)
    aset = 8*(buf//2); boff = (buf % 2)*PITCH
    F = FR[fs]
    def xr(qt): return f"ds_read_b128 {vr(F+24+4*qt,4)}, v{V_AX+aset+ks} offset:{boff+qt*2048}"
    def wr(t, m): return f"ds_read_b64_tr_b16 {vr(F+4*t+2*m,2)}, v{V_AW+aset+t} offset:{boff+ks*12288+m*1024}"
    ops = [xr(0), wr(0,0), wr(0,1), xr(1), xr(2)]
    for t in range(1, 6): ops += [wr(t,0), wr(t,1)]
    return ops
def mfma_ops(fs, first):
    F = FR[fs]; ops = []
    for t in range(6):
        for qt in range(3):
            d = ACC + (t*3+qt)*4
            c = "0" if first else vr(d,4)
            ops.append(f"v_mfma_f32_16x16x32_bf16 {vr(d,4)}, {vr(F+4*t,4)}, {vr(F+24+4*qt,4)}, {c}")
    return ops
def interleave(mf, reads, dmas, first2=4):
    n = len(mf); rq = list(reads); dq = list(dmas)
    for k, m in enumerate(mf):
        e(m)
        for _ in range(2 if k < first2 else 1):
            if rq: e(rq.pop(0))
        if dq and k >= 1:
            per = max(1, math.ceil(len(dq) / max(1, n - 1 - k)))
            for _ in range(per):
                if dq: e.emit(dq.pop(0))
    assert not rq and not dq
def merge(mf, fill, per, start=0):
    fq = list(fill)
    for k, m in enumerate(mf):
        e(m)
        if k >= start:
            for _ in range(per):
                if fq: e.emit(fq.pop(0))
    return fq

fwait(0)
stamp()
KF, SA, SB, VF = 32, 68, 104, 32
for x in read_ops(0, 0, 0): e(x)
STS = [int(x) for x in args.st.split(",")]
for s in range(10):
    e.c(f"--- stage {s} kstep 0")
    e("s_waitcnt lgkmcnt(0)")
    interleave(mfma_ops(0, s == 0), read_ops(s, 1, 1) + ([fread(s+1)] if s < 9 else []), [])
    e("s_waitcnt lgkmcnt(0)")
    e.c(f"--- stage {s} kstep 1")
    mf = mfma_ops(1, False)
    if s < 9: fcmp()
    e(mf[0])
    if s in [m for m, l in BARS]: e("s_barrier")
    if s < 9: check(s+1)
    if s in STS: stamp()
    if s < 9:
        interleave(mf[1:], read_ops(s+1, 0, 0), [])
kreads = [f"ds_read_b64 {vr(KF+(kt*3+u)*4+2*ee,2)}, v{V_AK+2*u+ee} offset:{kt*2048}" for u in range(3) for kt in range(3) for ee in range(2)]
def qcvt(u):
    ops = []
    for hh in range(2):
        for qt in range(3):
            q = QF + (u*3+qt)*4
            a = ACC + ((2*u+hh)*3+qt)*4
            ops += [f"v_cvt_pk_bf16_f32 v{q+2*hh}, v{a}, v{a+1}", f"v_cvt_pk_bf16_f32 v{q+2*hh+1}, v{a+2}, v{a+3}"]
    return ops
fill = qcvt(0) + qcvt(1) + qcvt(2)
fill = merge(mf[1:], fill, 2, start=8)
for x in fill[:6]: e(x)
fill = fill[6:]
stamp()
fwait(F_K)
stamp()
for x in kreads: e(x)
for x in fill: e(x)
e("s_barrier")
def smf(u, kt, qt):
    d = SA + (kt*3+qt)*4
    c = "0" if u == 0 else vr(d,4)
    return f"v_mfma_f32_16x16x32_bf16 {vr(d,4)}, {vr(KF+(kt*3+u)*4,4)}, {vr(QF+(u*3+qt)*4,4)}, {c}"
for u in range(2):
    e(f"s_waitcnt lgkmcnt({12-6*u})")
    for kt in range(3):
        for qt in range(3): e(smf(u, kt, qt))
e("s_waitcnt lgkmcnt(0)")
for qt in range(3):
    for kt in range(3): e(smf(2, kt, qt))
e("s_nop 1")
for qt in range(3):
    for kt in range(3):
        k = kt*3+qt
        e(f"ds_write_b128 v{V_SXW}, {vr(SA+4*k,4)} offset:{PITCH + k*1024}")
e("s_waitcnt lgkmcnt(0)")
e("s_barrier")
stamp()
vreads = [f"ds_read_b64_tr_b16 {vr(VF+6*t+2*kt,2)}, v{V_AV+t} offset:{kt*12288}" for t in range(6) for kt in range(3)]
for qt in range(3):
    for kt in range(3):
        k = kt*3+qt
        e(f"ds_read_b128 {vr(SB+4*k,4)}, v{V_SXR} offset:{PITCH + k*1024}")
def sreg(kt, qt, r): return SA + (kt*3+qt)*4 + r
M = [2, 3, 4]; T = [5, 6, 7]
for qt in range(3):
    e(f"s_waitcnt lgkmcnt({6-3*qt})")
    if qt == 2: e("s_barrier")
    for kt in range(3):
        k = kt*3+qt
        for h2 in range(2):
            e(f"v_pk_add_f32 {vr(SA+4*k+2*h2,2)}, {vr(SA+4*k+2*h2,2)}, {vr(SB+4*k+2*h2,2)}")
    vals = [sreg(kt, qt, r) for kt in range(3) for r in range(4)]
    e(f"v_max3_f32 v{M[qt]}, v{vals[0]}, v{vals[1]}, v{vals[2]}")
    for k in range(3, 11, 2):
        e(f"v_max3_f32 v{M[qt]}, v{M[qt]}, v{vals[k]}, v{vals[k+1]}")
    e(f"v_max_f32 v{M[qt]}, v{M[qt]}, v{vals[11]}")
for sw in ("v_permlane32_swap_b32", "v_permlane16_swap_b32"):
    for qt in range(3): e(f"v_mov_b32 v{T[qt]}, v{M[qt]}")
    for qt in range(3): e(f"{sw} v{M[qt]}, v{T[qt]}")
    for qt in range(3): e(f"v_max_f32 v{M[qt]}, v{M[qt]}, v{T[qt]}")
for qt in range(3): e(f"v_mul_f32 v{M[qt]}, s{S_SC}, v{M[qt]}")
PF = QF
def Bops(qt):
    ops = []
    for kt in range(3):
        for r in range(4):
            x = sreg(kt, qt, r); ops.append(f"v_fma_f32 v{x}, v{x}, s{S_SC}, -v{M[qt]}")
    for kt in range(3):
        for r in range(4):
            x = sreg(kt, qt, r); ops.append(f"v_exp_f32 v{x}, v{x}")
    for kt in range(3):
        x = sreg(kt, qt, 0)
        ops += [f"v_cvt_pk_bf16_f32 v{PF+6*qt+2*kt}, v{x}, v{x+1}", f"v_cvt_pk_bf16_f32 v{PF+6*qt+2*kt+1}, v{x+2}, v{x+3}"]
    return ops
def SUMops(qt):
    d = SUMA + 4*qt
    return [f"v_mfma_f32_16x16x32_bf16 {vr(d,4)}, {vr(ONES,4)}, {vr(PF+6*qt,4)}, 0",
            f"v_mfma_f32_16x16x16_bf16 {vr(d,4)}, {vr(ONES,2)}, {vr(PF+6*qt+4,2)}, {vr(d,4)}"]
def PVops(qt):
    a = []; b = []
    for t in range(6):
        d = ACC + (t*3+qt)*4
        a.append(f"v_mfma_f32_16x16x32_bf16 {vr(d,4)}, {vr(VF+6*t,4)}, {vr(PF+6*qt,4)}, 0")
        b.append(f"v_mfma_f32_16x16x16_bf16 {vr(d,4)}, {vr(VF+6*t+4,2)}, {vr(PF+6*qt+4,2)}, {vr(d,4)}")
    return a + b
def Eops(qt, oflag):
    ops = []
    for u in range(3):
        q = SA + (u*3+qt)*4
        for hh in range(2):
            a = ACC + ((2*u+hh)*3+qt)*4
            for h2 in range(2):
                ops.append(f"v_pk_mul_f32 {vr(a+2*h2,2)}, {vr(a+2*h2,2)}, {vr(RINV+2*qt,2)} op_sel_hi:[1,0]")
        for hh in range(2):
            a = ACC + ((2*u+hh)*3+qt)*4
            ops += [f"v_cvt_pk_bf16_f32 v{q+2*hh}, v{a}, v{a+1}", f"v_cvt_pk_bf16_f32 v{q+2*hh+1}, v{a+2}, v{a+3}"]
        ops.append([f"s_add_u32 s{S_SO}, s{S_OB}, {WS_O + u*3072}",
                    f"buffer_store_dwordx4 {vr(q,4)}, v{V_L16}, {R(R_WS)}, s{S_SO} offen offset:{qt*1024} {oflag}"])
    return ops
for qt in range(3):
    b = Bops(qt)
    if qt == 0:
        for x in b: e(x)
    else:
        sm = SUMops(qt-1)
        e(sm[0])
        for x in b[:12]: e(x)
        e(sm[1])
        for x in b[12:]: e(x)
sm = SUMops(2)
e(f"v_rcp_f32 v{RINV}, v{SUMA}")
e(f"v_rcp_f32 v{RINV+2}, v{SUMA+4}")
e(sm[0])
stamp()
fwait(F_V)
e(f"ds_read_b32 v{V_LOC}, v{V_SR} offset:{16*F_LOC}")
for x in vreads: e(x)
e(sm[1])
stamp(wait=False)
e(f"v_mov_b32 v2, s{S_NONCE}")
e(f"s_lshl_b32 s{S_T0}, s{S_I}, 3")
e(f"v_mov_b32 v3, s{S_T0}")
e("s_waitcnt lgkmcnt(0)")
e(f"v_cmp_ne_u32 vcc, 0, v{V_LOC}")
pv0 = PVops(0); pv1 = PVops(1); pv2 = PVops(2)
for x in pv0[:6]: e(x)
e(f"v_rcp_f32 v{RINV+4}, v{SUMA+8}")
for x in pv1[:3]: e(x)
e(f"s_or_b32 s{S_LOC}, vcc_lo, vcc_hi")
for x in pv0[6:]: e(x)
for x in pv1[3:6]: e(x)
e("s_cbranch_vccnz L_pubslow")
def publish(oflag):
    rest = pv2[:3] + pv1[6:] + pv2[3:6]
    f = merge(rest, Eops(0, oflag), 2, start=2)
    f = merge(pv2[6:], f + Eops(1, oflag), 2)
    for x in f: e.emit(x)
    for x in Eops(2, oflag): e.emit(x)
publish("")
e.lab("L_pubdone")
if args.p2st: stamp_n[0] = 1
stamp()
AF = [16, 36]; ACC2 = [104, 192]
def ofr(u, qt):
    hd, kk = divmod(u, 3)
    if hd % 2 == 0: b = SA + 12*kk
    else: b = [56, 164, 176][kk]
    return vr(b + 4*qt, 4)
def rd(step):
    u, st = divmod(step, 2); fs = step % 2
    ops = []
    for tt in range(5):
        for m in range(2):
            off = wo_lds(u) - PITCH + m*5120 + tt*32
            hi = 0
            if off >= 61440: off -= 61440; hi = 1
            ops.append(f"ds_read_b64_tr_b16 {vr(AF[fs]+4*tt+2*m,2)}, v{va2(st, tt % 2, hi)} offset:{off}")
    return ops
def p2mf(step):
    u, st = divmod(step, 2); fs = step % 2
    out = []
    for tt in range(5):
        for qt in range(3):
            d = ACC2[st] + (tt*3+qt)*4
            c = "0" if u == 0 else vr(d, 4)
            out.append(f"v_mfma_f32_16x16x32_bf16 {vr(d,4)}, {vr(AF[fs]+4*tt,4)}, {ofr(u,qt)}, {c}")
    return out
def oload(u):
    hd, kk = divmod(u, 3)
    ops = []
    if kk == 0:
        ops += [f"s_add_u32 s{S_T1}, s{S_I}, {hd}", f"s_and_b32 s{S_T1}, s{S_T1}, 3", f"s_mul_i32 s{S_T1}, s{S_T1}, 18432", f"s_add_u32 s{S_T1}, s{S_T1}, s{S_OB2}"]
    ops.append(f"s_add_u32 s{S_SO}, s{S_T1}, {WS_O + kk*3072}")
    for qt in range(3):
        ops.append((f"buffer_load_dwordx4 {ofr(u,qt)}, v{V_L16}, {R(R_WS)}, s{S_SO} offen offset:{qt*1024} sc1", f"o{u}"))
    return ops
def poll(lab, soff, vfl):
    e(f"s_mov_b32 s{S_CNT}, 0")
    e.lab(lab)
    e(f"buffer_load_dword v4, v{vfl}, {R(R_WS)}, s{soff} offen sc1")
    e(f"s_add_u32 s{S_CNT}, s{S_CNT}, 1")
    e(f"s_cmp_ge_u32 s{S_CNT}, 100000")
    e(f"s_cbranch_scc1 {lab}_done")
    e("s_waitcnt vmcnt(0)")
    e(f"v_cmp_ne_u32 vcc, s{S_NONCE}, v4")
    e(f"s_cbranch_vccz {lab}_done")
    if args.sleep: e(f"s_sleep {args.sleep}")
    e(f"s_branch {lab}")
    e.lab(lab + "_done")
    e("s_waitcnt vmcnt(0)")
    e.vm = []
fwait(F_WO)
for x in rd(0): e(x)
RELM = [m for m, l in REL]
APOLL = [int(x) for x in args.apoll.split(",") if x]
S_GOT = 16
if APOLL: assert args.r1n == 3
YREG = PITCH + 0
for step in range(24):
    u, st = divmod(step, 2)
    if step == 6:
        stamp()
        if APOLL:
            e(f"s_cmp_lg_u32 s{S_GOT}, 0")
            e("s_cbranch_scc1 L_got6")
        poll("L_poll1", S_F1, V_FL)
        for uu in range(3, 3 + args.r1n): e.emit(oload(uu))
        e.lab("L_got6")
        stamp()
        if args.late2 and 2 in RELM: e("s_barrier")
    if st == 0 and u >= 3: e.vmwait(f"o{u}", extra=" lgkmcnt(0)")
    else: e("s_waitcnt lgkmcnt(0)")
    if step == 6 or (args.p2st and st == 0 and u > 3): stamp()
    mf = p2mf(step)
    rq = rd(step+1) if step < 23 else []
    dm = []
    if st == 0 and u < 11: rq = rq + [fread(F_WO + u + 1)]
    if st == 1:
        if u < 11: fcmp()
        e(mf[0]); mf = mf[1:]
        if (u in RELM and not (u == 2 and args.late2)) or u == 9: e("s_barrier")
        if u < 11: check(F_WO + u + 1)
    if step == args.ackstep:
        e(mf[0]); mf = mf[1:]
        e("s_waitcnt vmcnt(0)")
        e(f"s_cmp_lg_u32 s{S_LOC}, 0")
        e("s_cbranch_scc1 L_fslow")
        e(f"buffer_store_dword v2, v3, {R(R_WS)}, s{S_F1} offen")
        e.lab("L_fdone")
        if APOLL:
            e(f"s_mov_b32 s{S_GOT}, 0")
            e(f"buffer_load_dword v4, v{V_FL}, {R(R_WS)}, s{S_F1} offen sc1")
    if step in APOLL:
        k = 3
        for x in mf[:k]:
            e(x)
            if rq: e(rq.pop(0))
            if rq: e(rq.pop(0))
        mf = mf[k:]
        e(f"s_cmp_lg_u32 s{S_GOT}, 0")
        e(f"s_cbranch_scc1 L_ap{step}_d")
        e("s_waitcnt vmcnt(0)")
        e(f"v_cmp_ne_u32 vcc, s{S_NONCE}, v4")
        e(f"s_cbranch_vccz L_ap{step}_g")
        if step != APOLL[-1]: e(f"buffer_load_dword v4, v{V_FL}, {R(R_WS)}, s{S_F1} offen sc1")
        e.lab(f"L_ap{step}_d")
    nxt = None
    if st == 0 and 6 <= u <= 8: nxt = u + 3
    if st == 0 and 3 <= u <= 5 and u + 3 >= 3 + args.r1n: nxt = u + 3
    if nxt is not None:
        o = oload(nxt)
        dm = [o[:-2], o[-2:-1], o[-1:]]
    if step == 22:
        e(f"s_mul_i32 s{S_T0}, s{S_W}, 15360")
        e(f"s_xor_b32 s{S_T2}, s{S_W}, 1")
        e(f"s_mul_i32 s{S_T2}, s{S_T2}, 15360")
        e(f"v_add_u32 v5, s{S_T0}, v{V_L16}")
        e(f"v_add_u32 v6, s{S_T2}, v{V_L16}")
    if step < 23:
        interleave(mf, rq, dm, first2=2)
    else:
        w = [f"ds_write_b128 v5, {vr(ACC2[0]+4*k,4)} offset:{YREG + k*1024}" for k in range(15)]
        for x in merge(mf, w, 1): e(x)
e("s_waitcnt lgkmcnt(0)")
e("s_barrier")
for k in range(15):
    e(f"ds_read_b128 {vr(ACC2[0]+4*k,4)}, v6 offset:{YREG + k*1024}")
stamp(wait=False)
e(f"s_lshl_b32 s{S_T0}, s{S_IDX}, 2")
e(f"s_add_u32 s{S_T0}, s{S_T0}, s{S_W}")
e(f"s_lshl_b32 s{S_F2}, s{S_T0}, 10")
e(f"s_add_u32 s{S_F2}, s{S_F2}, {WS_F2}")
e(f"s_lshl_b32 s{S_PB}, s{S_T0}, 16")
e(f"s_add_u32 s{S_PB}, s{S_PB}, {WS_P}")
e(f"s_lshl_b32 s{S_T1}, s{S_J}, 10")
e(f"s_add_u32 s{S_T1}, s{S_T1}, s{S_PB}")
if STAMPS: e("s_waitcnt lgkmcnt(0)")
for p in range(8):
    q = 16 + 4*p
    for z in range(2):
        k = 2*p+z
        if k < 15:
            e(f"s_waitcnt lgkmcnt({14-k})")
            a = ACC2[1] + 4*k; b = ACC2[0] + 4*k
            for h2 in range(2):
                e(f"v_pk_add_f32 {vr(a+2*h2,2)}, {vr(a+2*h2,2)}, {vr(b+2*h2,2)}")
        a = ACC2[1] + min(k, 14)*4
        e(f"v_cvt_pk_bf16_f32 v{q+2*z}, v{a}, v{a+1}")
        e(f"v_cvt_pk_bf16_f32 v{q+2*z+1}, v{a+2}, v{a+3}")
    e(f"s_add_u32 s{S_SO}, s{S_T1}, {p*8192}")
    e(f"buffer_store_dwordx4 {vr(q,4)}, v{V_L16}, {R(R_WS)}, s{S_SO} offen sc1")
e(f"s_lshl_b32 s{S_T1}, s{S_J}, 2")
e(f"s_add_u32 s{S_T1}, s{S_T1}, s{S_F2}")
e(f"v_lshlrev_b32 v5, 5, v{V_FL8}")
e(f"s_lshl_b32 s{S_T2}, s{S_J}, 7")
e(f"s_add_u32 s{S_F2}, s{S_F2}, s{S_T2}")
e("s_mov_b64 exec, 0xff")
e("s_waitcnt vmcnt(0)")
e(f"buffer_store_dword v2, v5, {R(R_WS)}, s{S_T1} offen sc1")
D = args.f2atom
e(f"s_mov_b32 s{S_CNT}, 0")
for k in range(D-1):
    e(f"v_mov_b32 v{24+k}, 0")
    e(f"buffer_atomic_or v{24+k}, v{V_FL8}, {R(R_WS)}, s{S_F2} offen sc0 sc1")
    e(f"s_sleep {args.f2sleep}")
e.lab("L_poll2")
for k in range(D):
    nw = (k + D - 1) % D
    e(f"v_mov_b32 v{24+nw}, 0")
    e(f"buffer_atomic_or v{24+nw}, v{V_FL8}, {R(R_WS)}, s{S_F2} offen sc0 sc1")
    e(f"s_waitcnt vmcnt({D-1})")
    e(f"v_cmp_ne_u32 vcc, s{S_NONCE}, v{24+k}")
    e("s_cbranch_vccz L_poll2_done")
    e(f"s_sleep {args.f2sleep}")
e(f"s_add_u32 s{S_CNT}, s{S_CNT}, 1")
e(f"s_cmp_lt_u32 s{S_CNT}, 50000")
e("s_cbranch_scc1 L_poll2")
e.lab("L_poll2_done")
e("s_mov_b64 exec, -1")
stamp()
e(f"s_lshl_b32 s{S_T1}, s{S_J}, 13")
e(f"s_add_u32 s{S_T1}, s{S_T1}, s{S_PB}")
e(f"s_add_u32 s{S_T2}, s{S_T1}, 4096")
for jj in range(8):
    e(f"buffer_load_dwordx4 {vr(64+4*jj,4)}, v{V_L16}, {R(R_WS)}, s{S_T1 if jj < 4 else S_T2} offen offset:{(jj%4)*1024} sc1")
e(f"s_mov_b32 s{S_T4}, 0xffff0000")
for jj in range(8):
    e(f"s_waitcnt vmcnt({7-jj})")
    dst = 100 if jj == 0 else 108
    for d in range(4):
        e(f"v_lshlrev_b32 v{dst+2*d}, 16, v{64+4*jj+d}")
        e(f"v_and_b32 v{dst+2*d+1}, s{S_T4}, v{64+4*jj+d}")
    if jj:
        for d in range(4):
            e(f"v_pk_add_f32 {vr(100+2*d,2)}, {vr(100+2*d,2)}, {vr(108+2*d,2)}")
res = [100, 104]
for z in range(2):
    b = res[z]
    e(f"v_cvt_pk_bf16_f32 v{20+2*z}, v{b}, v{b+1}")
    e(f"v_cvt_pk_bf16_f32 v{21+2*z}, v{b+2}, v{b+3}")
    e(f"s_lshl_b32 s{S_T0}, s{S_J}, 1")
    e(f"s_add_u32 s{S_T0}, s{S_T0}, {z}")
    if z == 1:
        e(f"s_cmp_eq_u32 s{S_T0}, 15")
        e("s_cbranch_scc1 L_fin")
    e(f"s_mul_i32 s{S_T1}, s{S_T0}, 11")
    e(f"s_lshr_b32 s{S_T1}, s{S_T1}, 5")
    e(f"s_mul_i32 s{S_T2}, s{S_T1}, 3")
    e(f"s_sub_u32 s{S_T2}, s{S_T0}, s{S_T2}")
    e(f"s_lshl_b32 s{S_T1}, s{S_T1}, 5")
    e(f"s_mul_i32 s{S_T2}, s{S_T2}, {16*1280}")
    e(f"s_add_u32 s{S_SO}, s{S_OUTB}, s{S_T1}")
    e(f"s_add_u32 s{S_SO}, s{S_SO}, s{S_T2}")
    e(f"buffer_store_dwordx2 {vr(20+2*z,2)}, v{V_OUT}, {R(R_OUT)}, s{S_SO} offen {args.outflag}")
e.lab("L_fin")
e(f"s_or_b32 s{S_T0}, s{S_J}, s{S_I}")
e(f"s_cmp_lg_u32 s{S_T0}, 0")
e("s_cbranch_scc1 L_noep")
e("s_barrier")
e(f"s_cmp_lg_u32 s{S_W}, 0")
e("s_cbranch_scc1 L_noep")
e(f"s_lshl_b32 s{S_T2}, s{S_BP}, 7")
e(f"s_add_u32 s{S_T2}, s{S_T2}, {WS_E}")
e("s_mov_b64 exec, 1")
e(f"buffer_store_dword v2, v3, {R(R_WS)}, s{S_T2} offen sc1")
e("s_mov_b64 exec, -1")
e.lab("L_noep")
if STAMPS:
    e("s_waitcnt vmcnt(0)")
    stamp()
stamp_store()
e.lab("L_end")
e("s_endpgm")
e.lab("L_pubslow")
e("s_nop 7")
publish("sc1")
e("s_branch L_pubdone")
e.lab("L_fslow")
e(f"buffer_store_dword v2, v3, {R(R_WS)}, s{S_F1} offen sc1")
e("s_branch L_fdone")
for st_ in APOLL:
    e.lab(f"L_ap{st_}_g")
    for uu in range(3, 6):
        for x in oload(uu): e(x[0] if isinstance(x, tuple) else x)
    e(f"s_mov_b32 s{S_GOT}, 1")
    e(f"s_branch L_ap{st_}_d")
for n in slow:
    e.lab(f"L_slow{n}")
    e(fread(n))
    budget(f"L_cont{n}")
    e("s_waitcnt lgkmcnt(0)")
    fcmp()
    e(f"s_cbranch_vccnz L_slow{n}")
    e(f"s_branch L_cont{n}")
e.raw(".p2align 8")
e.raw(".fill 4096, 4, 0xBF810000")
hdr = ["; generated by dev/gen12.py (fused single kernel, 4 compute + 4 loader waves)",
       "; @launch grid=(256,1,1) block=(512,1,1) lds=163840",
       '.amdgcn_target "amdgcn-amd-amdhsa--gfx950"', ".text"]
desc = f""".amdhsa_kernel {NAME}
  .amdhsa_next_free_vgpr 256
  .amdhsa_next_free_sgpr 102
  .amdhsa_accum_offset 256
  .amdhsa_group_segment_fixed_size 0
  .amdhsa_kernarg_size 64
  .amdhsa_user_sgpr_count 2
  .amdhsa_user_sgpr_kernarg_segment_ptr 1
  .amdhsa_system_sgpr_workgroup_id_x 1
.end_amdhsa_kernel"""
body = hazard_pad(e.L, verbose=True)
sys.stdout.write("\n".join(hdr + body) + '\n.section .rodata,"a"\n.p2align 6\n' + desc + "\n")
```

```python
import sys, math, argparse, struct
from asmlib import *
ap = argparse.ArgumentParser()
ap.add_argument("--stamps", action="store_true")
ap.add_argument("--clk", action="store_true")
ap.add_argument("--kflag", default="nt")
ap.add_argument("--vflag", default="")
ap.add_argument("--sleep", type=int, default=1)
ap.add_argument("--prio", type=int, default=2)
ap.add_argument("--st", default="2,5")
ap.add_argument("--bars", default="1:4,5;3:6,7;5:8,9;6:;8:")
ap.add_argument("--bars2", default="1:4,5;3:6,7;5:8,9;7:10,11;8:")
ap.add_argument("--wppos", type=int, default=-1)
ap.add_argument("--early", type=int, default=1)
ap.add_argument("--v2pf", type=int, default=-1)
ap.add_argument("--wstag", default="3,4,5,6")
ap.add_argument("--vstag", default="")
ap.add_argument("--rot2", type=int, default=1)
ap.add_argument("--vnt", type=int, default=0)
ap.add_argument("--wont", type=int, default=0)
ap.add_argument("--wnt", type=int, default=0)
ap.add_argument("--xnt", type=int, default=0)
ap.add_argument("--vper", type=int, default=3)
ap.add_argument("--ackdelay", type=int, default=3)
ap.add_argument("--f2atom", type=int, default=2)
ap.add_argument("--f2sleep", type=int, default=2)
ap.add_argument("--ackstep", type=int, default=1)
ap.add_argument("--pollstep", type=int, default=9)
ap.add_argument("--smpre", type=int, default=40)
ap.add_argument("--p2st", action="store_true")
ap.add_argument("--vppos", type=int, default=-1)
ap.add_argument("--vfirst", type=int, default=1)
ap.add_argument("--pburst", type=int, default=1)
ap.add_argument("--t1early", type=int, default=1)
ap.add_argument("--pl2", type=int, default=12)
ap.add_argument("--pl3", type=int, default=18)
args = ap.parse_args()
STAMPS = args.stamps
def parse_sched(t):
    out = []
    for it in t.split(";"):
        m, l = it.split(":")
        out.append((int(m), [int(x) for x in l.split(",") if x]))
    return out
BARS = parse_sched(args.bars)
for m, l in BARS:
    for n in l: assert m >= n - 4
assert sorted(sum([l for m, l in BARS], [])) == list(range(4, 10))
assert BARS[-2][0] >= 6 and BARS[-1][0] == 8 and not BARS[-1][1]
BARS2 = parse_sched(args.bars2)
for m, l in BARS2:
    for n in l: assert m >= n - 4
assert sorted(sum([l for m, l in BARS2], [])) == list(range(4, 12))
assert BARS2[-1][0] >= 8 and not BARS2[-1][1]
NAME = "standalone__mha_block_cached__near_ridge_kernel"
WS_PX = 0
WS_F1 = 3 << 20
WS_E = WS_F1 + 0x20000
WS_F2 = WS_F1 + 0x40000
WS_P = 4 << 20
NSTEP = 0x9E3779B1
WS_ST = 0x8000000
NST = 16
e = A()

S_X, S_K, S_V, S_WQ, S_WO, S_OUT, S_DBG, S_WS = 4, 6, 8, 10, 12, 14, 16, 18
R_X, R_WQ, R_K, R_V, R_WO, R_OUT, R_WS = 20, 24, 28, 32, 36, 40, 44
S_J, S_I, S_BP, S_H, S_W = 48, 49, 50, 51, 52
S_T0, S_T1, S_T2, S_T3, S_T4 = 53, 54, 55, 56, 57
S_IDX, S_NONCE = 3, 59
S_A = list(range(60, 70))
S_ST = 70
S_BUD = 17
BUD = 2000000
def srd(r, p, nbytes):
    e(f"s_mov_b32 s{r}, s{p}"); e(f"s_mov_b32 s{r+1}, s{p+1}"); e(f"s_mov_b32 s{r+2}, {nbytes}"); e(f"s_mov_b32 s{r+3}, 0x00020000")
def R(r): return f"s[{r}:{r+3}]"
stamp_n = [0]
def stamp(wait=True):
    if not STAMPS: return
    i = stamp_n[0]
    if i >= NST: return
    stamp_n[0] += 1
    e(f"s_mem{'time' if args.clk else 'realtime'} s[{S_ST+2*i}:{S_ST+2*i+1}]")
    if wait: e("s_waitcnt lgkmcnt(0)")
def stamp_store():
    if not STAMPS: return
    n = stamp_n[0]
    e(f"s_lshl_b32 s{S_T0}, s2, 3")
    e(f"s_add_u32 s{S_T0}, s{S_T0}, s{S_W}")
    e(f"s_mul_i32 s{S_T0}, s{S_T0}, {NST*8}")
    e(f"s_add_u32 s{S_T0}, s{S_T0}, {WS_ST}")
    e("v_mov_b32 v4, 0")
    for i in range(NST):
        k = min(i, n-1)
        e(f"v_mov_b32 v6, s{S_ST+2*k}")
        e(f"v_mov_b32 v7, s{S_ST+2*k+1}")
        e(f"buffer_store_dwordx2 v[6:7], v4, {R(R_WS)}, s{S_T0} offen offset:{8*i}")
        e("s_nop 1")
    sys.stderr.write(f"stamps: {n}\n")
def budget(done):
    e(f"s_add_u32 s{S_BUD}, s{S_BUD}, 1")
    e(f"s_cmp_gt_u32 s{S_BUD}, {BUD}")
    e(f"s_cbranch_scc1 {done}")
XB = 12288
PITCH = 40960
SY_FLG = 36864
F_K, F_T, F_P = 10, 16, 30
def bufof(s): return (s + 1) % 4
def buf2(t): return [0, 2, 3, 1][t % 4]

e.raw(f".globl {NAME}\n.p2align 8\n.type {NAME},@function\n{NAME}:")
stamp(wait=False)
e("s_load_dwordx16 s[4:19], s[0:1], 0")
e("s_cmp_ge_u32 s2, 256")
e("s_cbranch_scc1 L_end")
e("v_lshrrev_b32 v2, 6, v0")
e("v_and_b32 v1, 63, v0")
e(f"v_readfirstlane_b32 s{S_W}, v2")
e(f"s_and_b32 s{S_J}, s2, 7")
e(f"s_lshr_b32 s{S_IDX}, s2, 3")
e(f"s_and_b32 s{S_I}, s{S_IDX}, 3")
e(f"s_lshr_b32 s{S_BP}, s{S_IDX}, 2")
e(f"s_lshl_b32 s{S_H}, s{S_J}, 2")
e(f"s_add_u32 s{S_H}, s{S_H}, s{S_I}")
e(f"s_cmp_lt_u32 s{S_W}, 4")
e("s_cbranch_scc1 L_compute")

S_L, S_KX, S_KW, S_XK, S_SO, S_LX, S_LW, S_XB, S_WB, S_KVB = S_A
V_OW, V_OXA, V_OXB, V_OKA, V_OKB, V_OOB, V_PF, LDUMMY = 10, 11, 12, 14, 15, 16, 17, 18
V_OWO = 20
S_KB2, S_VB2, S_FLB, S_KD, S_LO, S_WOB = 4, 5, 6, 7, 8, 9
e(f"s_sub_u32 s{S_L}, s{S_W}, 4")
e("v_lshrrev_b32 v2, 3, v1")
e("v_and_b32 v3, 7, v1")
e("v_lshrrev_b32 v4, 1, v2")
e("v_lshlrev_b32 v5, 1, v4")
e("v_xor_b32 v5, v5, v3")
e("v_lshlrev_b32 v5, 4, v5")
e("v_lshrrev_b32 v6, 2, v2")
e("v_lshlrev_b32 v6, 3, v6")
e("v_and_b32 v7, 3, v2")
e("v_add_u32 v6, v6, v7")
e("v_mul_u32_u24 v6, 12288, v6")
e(f"v_add_u32 v{V_OW}, v6, v5")
e("v_mul_u32_u24 v6, 1280, v2")
e("v_xor_b32 v7, v3, v4")
e("v_lshlrev_b32 v8, 4, v7")
e(f"s_and_b32 s{S_T1}, s{S_L}, 1")
e(f"s_lshl_b32 s{S_T2}, s{S_T1}, 6")
e(f"v_xor_b32 v8, s{S_T2}, v8")
e(f"v_add_u32 v{V_OXA}, v6, v8")
e("v_xor_b32 v9, 64, v8")
e(f"v_add_u32 v{V_OXB}, v6, v9")
e(f"s_mul_i32 s{S_XB}, s{S_BP}, {96*1280}")
e(f"s_mul_i32 s{S_T2}, s{S_L}, {24*1280}")
e(f"s_add_u32 s{S_XB}, s{S_XB}, s{S_T2}")
e(f"s_mul_i32 s{S_WB}, s{S_H}, 384")
e(f"s_lshr_b32 s{S_T0}, s{S_L}, 1")
e(f"s_mul_i32 s{S_T2}, s{S_T0}, {16*12288}")
e(f"s_add_u32 s{S_WB}, s{S_WB}, s{S_T2}")
e(f"s_mul_i32 s{S_T2}, s{S_T1}, {4*12288}")
e(f"s_add_u32 s{S_WB}, s{S_WB}, s{S_T2}")
e(f"s_mul_i32 s{S_KX}, s{S_BP}, 5")
e(f"s_lshr_b32 s{S_KX}, s{S_KX}, 2")
e(f"s_mul_i32 s{S_T2}, s{S_I}, 5")
e(f"s_lshr_b32 s{S_T2}, s{S_T2}, 1")
e(f"s_add_u32 s{S_KX}, s{S_KX}, s{S_T2}")
e(f"s_sub_u32 s{S_T2}, s{S_KX}, 10")
e(f"s_cmp_ge_u32 s{S_KX}, 10")
e(f"s_cselect_b32 s{S_KX}, s{S_T2}, s{S_KX}")
e(f"s_lshl_b32 s{S_KX}, s{S_KX}, 7")
e(f"s_mul_i32 s{S_LX}, s{S_L}, 3072")
e(f"s_lshl_b32 s{S_LW}, s{S_L}, 10")
e("s_waitcnt lgkmcnt(0)")
srd(R_X, S_X, 16*48*640*2)
srd(R_WQ, S_WQ, 640*6144*2)
def issue(s):
    buf = bufof(s)
    e(f"s_mul_i32 s{S_KW}, s{S_KX}, 6144"); e(f"s_add_u32 s{S_KW}, s{S_KW}, s{S_WB}"); e(f"s_add_u32 s{S_XK}, s{S_KX}, s{S_XB}")
    ws = [("w", ks, cg) for ks in range(2) for cg in range(3)]
    xs = [("x", a) for a in range(3)]
    for o in [xs[0], ws[0], ws[1], xs[1], ws[2], xs[2], ws[3], ws[4], ws[5]]:
        if o[0] == "w":
            _, ks, cg = o
            e(f"s_add_u32 m0, s{S_LW}, {buf*PITCH + XB + ks*12288 + cg*4096}")
            e(f"s_add_u32 s{S_SO}, s{S_KW}, {32*ks*12288 + cg*128}")
            e(f"buffer_load_dwordx4 v{V_OW}, {R(R_WQ)}, s{S_SO} offen {'nt' if s < args.wnt else ''} lds")
        else:
            a = o[1]
            e(f"s_add_u32 m0, s{S_LX}, {buf*PITCH + a*1024}")
            e(f"s_add_u32 s{S_SO}, s{S_XK}, {8*a*1280}")
            e(f"buffer_load_dwordx4 v{V_OXB if a == 1 else V_OXA}, {R(R_X)}, s{S_SO} offen {'nt' if s < args.xnt else ''} lds")
    e(f"s_add_u32 s{S_KX}, s{S_KX}, 128"); e(f"s_cmp_eq_u32 s{S_KX}, 1280"); e(f"s_cselect_b32 s{S_KX}, 0, s{S_KX}")
def flag(n):
    e(f"s_add_u32 m0, s{S_FLB}, {16*n}")
    e("s_mov_b64 exec, 1")
    e(f"buffer_load_dword v{V_OOB}, {R(R_X)}, 0 offen lds")
    e("s_mov_b64 exec, -1")
issue(0)
srd(R_K, S_K, 16*32*48*192*2)
srd(R_V, S_V, 16*32*48*192*2)
e(f"v_mov_b32 v{V_OOB}, 0x7ffffff0")
e(f"s_lshl_b32 s{S_FLB}, s{S_L}, 2")
e(f"s_add_u32 s{S_FLB}, s{S_FLB}, {SY_FLG}")
e("s_barrier")
flag(0)
issue(1); flag(1)
e(f"s_lshl_b32 s{S_T2}, s{S_BP}, 7")
e(f"s_add_u32 s{S_T2}, s{S_T2}, {WS_E}")
e(f"s_load_dword s{S_NONCE}, s[{S_WS}:{S_WS+1}], s{S_T2}")
srd(R_WO, S_WO, 6144*640*2)
srd(R_WS, S_WS, 268435456)
S_H0, S_RK, S_LF1, S_LPX = 10, 11, 12, 13
if args.rot2:
    e(f"s_add_u32 s{S_H0}, s{S_I}, s{S_BP}")
    e(f"s_lshr_b32 s{S_RK}, s{S_BP}, 2")
else:
    e(f"s_mov_b32 s{S_H0}, s{S_I}")
    e(f"s_mov_b32 s{S_RK}, 0")
e("v_mul_u32_u24 v6, 384, v2")
e(f"v_add_u32 v{V_OKA}, v6, v8")
e(f"v_add_u32 v{V_OKB}, v6, v9")
e(f"s_lshl_b32 s{S_T2}, s{S_BP}, 1")
e(f"s_add_u32 s{S_T2}, s{S_T2}, s{S_T0}")
e(f"s_lshl_b32 s{S_T2}, s{S_T2}, 3")
e(f"s_add_u32 s{S_T2}, s{S_T2}, s{S_J}")
e(f"s_mul_i32 s{S_VB2}, s{S_T2}, {4*18432}")
e(f"s_lshl_b32 s{S_LF1}, s{S_T2}, 7")
e(f"s_add_u32 s{S_LF1}, s{S_LF1}, {WS_F1}")
e(f"s_mul_i32 s{S_LPX}, s{S_T2}, {4*5120}")
e(f"s_mul_i32 s{S_T3}, s{S_T1}, {24*384}")
e(f"s_add_u32 s{S_VB2}, s{S_VB2}, s{S_T3}")
e(f"s_mul_i32 s{S_T3}, s{S_I}, 18432")
e(f"s_add_u32 s{S_KB2}, s{S_VB2}, s{S_T3}")
e(f"s_mul_i32 s{S_KD}, s{S_T0}, 18432")
e(f"s_mul_i32 s{S_T3}, s{S_T1}, 3072")
e(f"s_add_u32 s{S_KD}, s{S_KD}, s{S_T3}")
e(f"s_mul_i32 s{S_WOB}, s{S_J}, {768*1280}")
e(f"s_mul_i32 s{S_T2}, s{S_L}, {16*1280}")
e(f"s_add_u32 s{S_WOB}, s{S_WOB}, s{S_T2}")
e(f"s_mul_i32 s{S_T2}, s{S_I}, 320")
e(f"s_add_u32 s{S_WOB}, s{S_WOB}, s{S_T2}")
e(f"s_mul_i32 s{S_LO}, s{S_L}, 5120")
e(f"s_mov_b32 s{S_T0}, 0x0ccccccd")
for n in range(5):
    e(f"v_add_u32 v2, {64*n}, v1")
    e(f"v_mul_hi_u32 v3, v2, s{S_T0}")
    e("v_mul_u32_u24 v4, 20, v3")
    e("v_sub_u32 v4, v2, v4")
    e("v_lshrrev_b32 v5, 2, v3")
    e("v_and_b32 v5, 2, v5")
    e("v_xor_b32 v4, v4, v5")
    e("v_mul_u32_u24 v3, 1280, v3")
    e(f"v_lshl_add_u32 v{V_OWO+n}, v4, 4, v3")
e("v_min_u32 v2, 59, v1")
e(f"v_lshlrev_b32 v{V_PF}, 7, v2")
V_T1, V_T2 = 26, 27
e(f"v_lshlrev_b32 v{V_T1}, 7, v1")
e("v_and_b32 v2, 7, v1")
e(f"v_lshlrev_b32 v{V_T2}, 7, v2")
def vpf():
    e(f"s_and_b32 s{S_SO}, s{S_H0}, 3")
    e(f"s_mul_i32 s{S_SO}, s{S_SO}, 18432")
    e(f"s_add_u32 s{S_SO}, s{S_SO}, s{S_VB2}")
    e(f"s_add_u32 s{S_T2}, s{S_SO}, 8192")
    e(f"buffer_load_dword v{LDUMMY}, v{V_T1}, {R(R_V)}, s{S_SO} offen")
    e(f"buffer_load_dword v{LDUMMY}, v{V_T2}, {R(R_V)}, s{S_T2} offen")
WST = [int(x) for x in args.wstag.split(",")] if args.wstag else []
VST = [int(x) for x in args.vstag.split(",")] if args.vstag else []
S_WP, S_VP = 14, 15
def stagsel(dst, lst):
    packed = sum(v << (4*k) for k, v in enumerate(lst))
    e(f"s_and_b32 s{S_T2}, s{S_IDX}, {len(lst)-1}")
    e(f"s_lshl_b32 s{S_T2}, s{S_T2}, 2")
    e(f"s_lshr_b32 s{dst}, {packed:#x}, s{S_T2}")
    e(f"s_and_b32 s{dst}, s{dst}, 15")
if WST: stagsel(S_WP, WST)
if VST: stagsel(S_VP, VST)
def wpf():
    e(f"s_lshl_b32 s{S_T2}, s{S_IDX}, 2"); e(f"s_add_u32 s{S_T2}, s{S_T2}, s{S_L}")
    e(f"s_mul_i32 s{S_T2}, s{S_T2}, 7680"); e(f"s_mul_i32 s{S_T3}, s{S_J}, {768*1280}"); e(f"s_add_u32 s{S_T2}, s{S_T2}, s{S_T3}")
    e(f"buffer_load_dword v{LDUMMY}, v{V_PF}, {R(R_WO)}, s{S_T2} offen")
V_T3 = 28
e("v_min_u32 v2, 23, v1")
e(f"v_mul_u32_u24 v{V_T3}, 384, v2")
def v2pf():
    e(f"s_and_b32 s{S_SO}, s{S_H0}, 3")
    e(f"s_mul_i32 s{S_SO}, s{S_SO}, 18432")
    e(f"s_add_u32 s{S_SO}, s{S_SO}, s{S_VB2}")
    e(f"s_cmp_eq_u32 s{S_RK}, 0")
    e(f"s_cselect_b32 s{S_T2}, 256, 0")
    e(f"s_add_u32 s{S_SO}, s{S_SO}, s{S_T2}")
    e(f"buffer_load_dword v{LDUMMY}, v{V_T3}, {R(R_V)}, s{S_SO} offen")
def extra(n):
    if n == args.v2pf: v2pf()
    if n in WST:
        e(f"s_cmp_lg_u32 s{S_WP}, {n}"); e(f"s_cbranch_scc1 L_nw{n}"); wpf(); e.lab(f"L_nw{n}")
    if n in VST:
        e(f"s_cmp_lg_u32 s{S_VP}, {n}"); e(f"s_cbranch_scc1 L_nv{n}"); vpf(); e.lab(f"L_nv{n}")
    if n == args.vppos and args.vfirst: vpf()
    extra2(n)
    if n == args.vppos and not args.vfirst: vpf()
def extra2(n):
    if n == args.wppos:
        e(f"s_lshl_b32 s{S_T2}, s{S_IDX}, 2"); e(f"s_add_u32 s{S_T2}, s{S_T2}, s{S_L}")
        e(f"s_mul_i32 s{S_T2}, s{S_T2}, 7680"); e(f"s_mul_i32 s{S_T3}, s{S_J}, {768*1280}"); e(f"s_add_u32 s{S_T2}, s{S_T2}, s{S_T3}")
        e(f"buffer_load_dword v{LDUMMY}, v{V_PF}, {R(R_WO)}, s{S_T2} offen")
issue(2); flag(2); extra(2)
issue(3); flag(3); extra(3)
for bi, (m, l) in enumerate(BARS[:-1]):
    e("s_barrier")
    if bi in (0, len(BARS)-2): stamp()
    for n in l: issue(n); flag(n); extra(n)
for a in range(3):
    for cg in range(3):
        e(f"s_add_u32 m0, s{S_KD}, {3*PITCH + cg*6144 + a*1024}")
        e(f"s_add_u32 s{S_SO}, s{S_KB2}, {8*a*384 + cg*128}")
        e(f"buffer_load_dwordx4 v{V_OKB if a == 1 else V_OKA}, {R(R_K)}, s{S_SO} offen {args.kflag} lds")
flag(F_K)
extra(10)
def issue2(t):
    hd, kk = divmod(t, 3); buf = buf2(t)
    if kk == 0:
        e(f"s_add_u32 s{S_T0}, s{S_H0}, {hd}")
        e(f"s_and_b32 s{S_T0}, s{S_T0}, 3")
        e(f"s_mul_i32 s{S_KW}, s{S_T0}, {192*1280}")
        e(f"s_add_u32 s{S_KW}, s{S_KW}, s{S_WOB}")
        e(f"s_mul_i32 s{S_XK}, s{S_T0}, 18432")
        e(f"s_add_u32 s{S_XK}, s{S_XK}, s{S_VB2}")
    e(f"s_add_u32 s{S_T3}, s{S_RK}, {kk}")
    e(f"s_cmp_eq_u32 s{S_T3}, 3")
    e(f"s_cselect_b32 s{S_T3}, 0, s{S_T3}")
    e(f"s_mul_i32 s{S_KX}, s{S_T3}, {64*1280}")
    e(f"s_add_u32 s{S_KX}, s{S_KX}, s{S_KW}")
    e(f"s_lshl_b32 s{S_T3}, s{S_T3}, 7")
    e(f"s_add_u32 s{S_T3}, s{S_T3}, s{S_XK}")
    for o in ["v0", "w0", "w1", "v1", "w2", "w3", "v2", "w4"]:
        n = int(o[1])
        if o[0] == "w":
            e(f"s_add_u32 m0, s{S_LO}, {buf*PITCH + XB + n*1024}")
            e(f"buffer_load_dwordx4 v{V_OWO+n}, {R(R_WO)}, s{S_KX} offen {'nt' if t < args.wont else ''} lds")
        else:
            e(f"s_add_u32 m0, s{S_LX}, {buf*PITCH + n*1024}")
            e(f"s_add_u32 s{S_SO}, s{S_T3}, {8*n*384}")
            e(f"buffer_load_dwordx4 v{V_OKB if n == 1 else V_OKA}, {R(R_V)}, s{S_SO} offen {'nt' if t < args.vnt else ''} lds")
    flag(F_T + t)
    extra(11 + t)
e("s_waitcnt lgkmcnt(0)")
e(f"s_add_u32 s{S_NONCE}, s{S_NONCE}, {NSTEP:#x}")
e("s_barrier")
issue2(0)
stamp()
if args.t1early:
    e("s_barrier")
    issue2(1)
e("s_barrier")
e("s_barrier")
stamp()
for t in range(1 + args.t1early, 4): issue2(t)
stamp()
for bi, (m, l) in enumerate(BARS2):
    e("s_barrier")
    stamp()
    for t in l: issue2(t)
    if bi == len(BARS2) - 1:
        e("v_and_b32 v2, 7, v1")
        e("v_lshlrev_b32 v2, 2, v2")
        e("v_lshlrev_b32 v3, 4, v1")
        e(f"s_mov_b32 s{S_T2}, 0")
        e.lab("L_lpoll")
        e(f"buffer_load_dword v4, v2, {R(R_WS)}, s{S_LF1} offen sc1")
        e(f"s_add_u32 s{S_T2}, s{S_T2}, 1")
        e(f"s_cmp_ge_u32 s{S_T2}, 100000")
        e("s_cbranch_scc1 L_lpolld")
        e("s_waitcnt vmcnt(0)")
        e(f"v_cmp_ne_u32 vcc, s{S_NONCE}, v4")
        e("s_cbranch_vccz L_lpolld")
        e(f"s_sleep {args.sleep}")
        e("s_branch L_lpoll")
        e.lab("L_lpolld")
PBUF = buf2(8)*PITCH
e(f"s_mul_i32 s{S_T3}, s{S_L}, 9216")
for pp in range(2):
    e(f"s_lshl_b32 s{S_T0}, s{S_T1}, 1")
    e(f"s_add_u32 s{S_T0}, s{S_T0}, s{S_H0}")
    e(f"s_add_u32 s{S_T0}, s{S_T0}, {pp}")
    e(f"s_and_b32 s{S_T0}, s{S_T0}, 3")
    e(f"s_mul_i32 s{S_T0}, s{S_T0}, 5120")
    e(f"s_add_u32 s{S_T0}, s{S_T0}, s{S_LPX}")
    for n in range(5):
        if n == 4: e("s_mov_b32 exec_hi, 0")
        e(f"s_add_u32 m0, s{S_T3}, {PBUF + pp*4608 + n*1024}")
        e(f"s_add_u32 s{S_SO}, s{S_T0}, {WS_PX + n*1024}")
        e(f"buffer_load_dwordx4 v3, {R(R_WS)}, s{S_SO} offen sc1 lds")
        if n == 4: e("s_mov_b64 exec, -1")
flag(F_P)
e("s_waitcnt vmcnt(0)")
stamp()
stamp_store()
e("s_endpgm")

stamp_n[0] = 1 if STAMPS else 0
e.lab("L_compute")
S_B, S_JH, S_PXB, S_SO, S_CNT, S_F1, S_PXO, S_PB, S_F2, S_OUTB = S_A
V_L16, V_FL8, V_OUT, V_L12, V_SR, V_RDY = 10, 11, 12, 13, 14, 15
V_AW, V_AX = 16, 22
FR = [32, 68]
ACC = 104
V_AK, DUMMY = 182, 191
VA2 = [176, 177, 178, 179]
V_SXW, V_SXR, V_PL = 180, 181, 188
QF = 192
if args.prio: e(f"s_setprio {args.prio}")
e(f"v_lshlrev_b32 v{V_L16}, 4, v1")
e("v_lshlrev_b32 v2, 2, v0")
e(f"v_add_u32 v2, {SY_FLG}, v2")
e("v_mov_b32 v4, 1")
e("ds_write_b32 v2, v4")
e("s_getpc_b64 s[60:61]")
e.lab("L_pc")
e(f"s_sub_u32 s60, s60, L_pc-{NAME}")
e("s_subb_u32 s61, s61, 0")
e(f"s_lshl_b32 s{S_T0}, s{S_IDX}, 10")
e("v_and_b32 v2, 7, v1")
e("v_lshlrev_b32 v2, 7, v2")
e(f"v_add_u32 v2, s{S_T0}, v2")
e(f"global_load_dword v{DUMMY}, v2, s[60:61]")
e("s_waitcnt lgkmcnt(0)")
e("s_barrier")
e(f"s_lshl_b32 s{S_T2}, s{S_BP}, 7")
e(f"s_add_u32 s{S_T2}, s{S_T2}, {WS_E}")
e(f"s_load_dword s{S_NONCE}, s[{S_WS}:{S_WS+1}], s{S_T2}")
srd(R_OUT, S_OUT, 16*48*640*2)
srd(R_WS, S_WS, 268435456)
e(f"s_mov_b32 s{S_BUD}, 0")
e(f"s_lshr_b32 s{S_B}, s{S_W}, 1")
e(f"s_and_b32 s{S_JH}, s{S_W}, 1")
e(f"v_lshlrev_b32 v{V_L12}, 3, v1")
e(f"v_add_u32 v{V_L12}, 512, v{V_L12}")
e("v_lshrrev_b32 v2, 4, v1")
e("v_and_b32 v3, 15, v1")
e("v_mul_u32_u24 v4, 1280, v3")
e(f"v_lshl_add_u32 v{V_OUT}, v2, 3, v4")
e("v_and_b32 v4, 7, v1")
e(f"v_lshlrev_b32 v{V_FL8}, 2, v4")
e("v_and_b32 v4, 3, v1")
e("v_lshlrev_b32 v5, 2, v4")
e(f"v_add_u32 v{V_SR}, {SY_FLG}, v5")
e(f"s_xor_b32 s{S_T3}, s{S_W}, 1")
e(f"s_mul_i32 s{S_T2}, s{S_W}, 9216")
e(f"s_mul_i32 s{S_T1}, s{S_T3}, 9216")
e(f"v_add_u32 v{V_SXW}, s{S_T2}, v{V_L16}")
e(f"v_add_u32 v{V_SXR}, s{S_T1}, v{V_L16}")
e("v_lshrrev_b32 v8, 1, v3")
e("v_xor_b32 v4, v8, v2")
e("v_lshlrev_b32 v4, 4, v4")
e("v_lshl_add_u32 v4, v3, 7, v4")
e(f"s_mul_i32 s{S_T2}, s{S_B}, 6144")
e(f"v_add_u32 v{V_AX}, s{S_T2}, v4")
e(f"v_xor_b32 v{V_AX+1}, 64, v{V_AX}")
e(f"v_add_u32 v{V_AX+8}, {2*PITCH}, v{V_AX}")
e(f"v_add_u32 v{V_AX+9}, {2*PITCH}, v{V_AX+1}")
e("v_lshrrev_b32 v9, 1, v2")
e("v_xor_b32 v9, v9, v8")
e("v_and_b32 v4, 1, v2")
e("v_lshlrev_b32 v4, 3, v4")
e("v_lshl_add_u32 v4, v3, 7, v4")
e(f"s_mul_i32 s{S_T2}, s{S_JH}, 12")
e(f"s_mul_i32 s{S_T1}, s{S_B}, 18432")
e(f"s_add_u32 s{S_T1}, s{S_T1}, {3*PITCH}")
for k in range(6):
    e(f"s_add_u32 s{S_T3}, s{S_T2}, {2*k}")
    e(f"s_and_b32 s{S_T0}, s{S_T3}, 7")
    e(f"s_lshr_b32 s{S_T3}, s{S_T3}, 3")
    e(f"s_mul_i32 s{S_T3}, s{S_T3}, 6144")
    e(f"s_add_u32 s{S_T3}, s{S_T3}, s{S_T1}")
    e(f"v_xor_b32 v6, s{S_T0}, v9")
    e(f"v_lshl_add_u32 v6, v6, 4, v4")
    e(f"v_add_u32 v{V_AK+k}, s{S_T3}, v6")
e("v_lshrrev_b32 v4, 2, v1")
e("v_and_b32 v4, 7, v4")
e("v_lshrrev_b32 v5, 5, v1")
e("v_lshlrev_b32 v5, 11, v5")
e("v_lshl_add_u32 v5, v4, 7, v5")
e("v_and_b32 v6, 3, v1")
e("v_lshl_add_u32 v5, v6, 3, v5")
e("v_lshrrev_b32 v4, 1, v4")
e(f"s_mul_i32 s{S_T2}, s{S_JH}, 6")
for t in range(6):
    e(f"s_add_u32 s{S_T3}, s{S_T2}, {t}")
    e(f"s_and_b32 s{S_T0}, s{S_T3}, 3")
    e(f"s_lshr_b32 s{S_T3}, s{S_T3}, 2")
    e(f"s_lshl_b32 s{S_T3}, s{S_T3}, 12")
    e(f"s_add_u32 s{S_T3}, s{S_T3}, {XB}")
    e(f"v_xor_b32 v6, s{S_T0}, v4")
    e(f"v_lshl_add_u32 v6, v6, 5, v5")
    e(f"v_add_u32 v{V_AW+t}, s{S_T3}, v6")
    e(f"v_add_u32 v{V_AW+8+t}, {2*PITCH}, v{V_AW+t}")
e(f"s_lshl_b32 s{S_T2}, s{S_BP}, 1")
e(f"s_add_u32 s{S_T2}, s{S_T2}, s{S_B}")
e(f"s_mul_i32 s{S_OUTB}, s{S_T2}, {48*1280}")
e(f"s_lshl_b32 s{S_T2}, s{S_T2}, 3")
e(f"s_add_u32 s{S_T2}, s{S_T2}, s{S_J}")
e(f"s_mul_i32 s{S_PXB}, s{S_T2}, {4*5120}")
e(f"s_mul_i32 s{S_T3}, s{S_I}, 5120")
e(f"s_add_u32 s{S_PXO}, s{S_PXB}, s{S_T3}")
e(f"s_lshl_b32 s{S_F1}, s{S_T2}, 7")
e(f"s_add_u32 s{S_F1}, s{S_F1}, {WS_F1}")
e(f"s_mul_i32 s{S_T3}, s{S_I}, 320")
e(f"s_add_u32 s{S_OUTB}, s{S_OUTB}, s{S_T3}")
e(f"s_mul_i32 s{S_T3}, s{S_JH}, 160")
e(f"s_add_u32 s{S_OUTB}, s{S_OUTB}, s{S_T3}")
e("v_lshrrev_b32 v2, 4, v1")
e("v_lshrrev_b32 v3, 2, v1")
e("v_and_b32 v3, 3, v3")
e("v_lshl_add_u32 v3, v2, 3, v3")
e("v_mul_u32_u24 v3, 320, v3")
e("v_and_b32 v4, 3, v1")
e("v_lshl_add_u32 v3, v4, 3, v3")
e("v_and_b32 v2, 1, v2")
e("v_lshlrev_b32 v2, 5, v2")
e("v_add_u32 v4, v3, v2")
e("v_sub_u32 v5, v3, v2")
e(f"s_add_u32 s{S_T3}, s{S_T3}, {XB}")
e(f"s_cmp_eq_u32 s{S_JH}, 0")
e("s_cselect_b64 vcc, -1, 0")
e("v_cndmask_b32 v6, v5, v4, vcc")
e("v_cndmask_b32 v7, v4, v5, vcc")
e(f"v_add_u32 v{VA2[0]}, s{S_T3}, v6")
e(f"v_add_u32 v{VA2[2]}, s{S_T3}, v7")
e(f"v_add_u32 v{VA2[1]}, {2*PITCH}, v{VA2[0]}")
e(f"v_add_u32 v{VA2[3]}, {2*PITCH}, v{VA2[2]}")
cs = (192 ** -0.5) * math.log2(math.e)
cbits = struct.unpack("<I", struct.pack("<f", cs))[0]
S_SC = S_T4
e(f"s_mov_b32 s{S_SC}, {cbits:#x}")
e("s_waitcnt lgkmcnt(0)")
e(f"s_add_u32 s{S_NONCE}, s{S_NONCE}, {NSTEP:#x}")
V_NON, V_FO = 189, 190
e(f"v_mov_b32 v{V_NON}, s{S_NONCE}")
e(f"s_lshl_b32 s{S_T0}, s{S_I}, 1")
e(f"s_add_u32 s{S_T0}, s{S_T0}, s{S_JH}")
e(f"s_lshl_b32 s{S_T0}, s{S_T0}, 2")
e(f"v_mov_b32 v{V_FO}, s{S_T0}")

slow = []
def fread(n): return f"ds_read_b32 v{V_RDY}, v{V_SR} offset:{16*n}"
def fcmp(): e(f"v_cmp_ne_u32 vcc, 0, v{V_RDY}")
def check(n):
    e(f"s_cbranch_vccnz L_slow{n}")
    e.lab(f"L_cont{n}")
    slow.append(n)
def fwait(n):
    e(f"s_branch L_slow{n}")
    e.lab(f"L_cont{n}")
    slow.append(n)
def read_ops(s, ks, fs):
    buf = bufof(s)
    aset = 8*(buf//2); boff = (buf % 2)*PITCH
    F = FR[fs]
    def xr(qt): return f"ds_read_b128 {vr(F+24+4*qt,4)}, v{V_AX+aset+ks} offset:{boff+qt*2048}"
    def wr(t, m): return f"ds_read_b64_tr_b16 {vr(F+4*t+2*m,2)}, v{V_AW+aset+t} offset:{boff+ks*12288+m*1024}"
    ops = [xr(0), wr(0,0), wr(0,1), xr(1), xr(2)]
    for t in range(1, 6): ops += [wr(t,0), wr(t,1)]
    return ops
def mfma_ops(fs, first):
    F = FR[fs]; ops = []
    for t in range(6):
        for qt in range(3):
            d = ACC + (t*3+qt)*4
            c = "0" if first else vr(d,4)
            ops.append(f"v_mfma_f32_16x16x32_bf16 {vr(d,4)}, {vr(F+4*t,4)}, {vr(F+24+4*qt,4)}, {c}")
    return ops
def interleave(mf, reads, first2=4, valu=None, vper=0, vstart=0):
    rq = list(reads)
    for k, m in enumerate(mf):
        e(m)
        for _ in range(2 if k < first2 else 1):
            if rq: e(rq.pop(0))
        if valu is not None and k >= vstart:
            n = vper
            while n > 0 and valu:
                x = valu.pop(0); e.emit(x)
                n -= 2 if (isinstance(x, str) and x.startswith(("v_exp", "v_rcp"))) else 1
    assert not rq
def merge(mf, fill, per, start=0):
    fq = list(fill)
    for k, m in enumerate(mf):
        e(m)
        if k >= start:
            for _ in range(per):
                if fq: e.emit(fq.pop(0))
    return fq

fwait(0)
stamp()
for x in read_ops(0, 0, 0): e(x)
STS = [int(x) for x in args.st.split(",")]
for s in range(10):
    e.c(f"--- stage {s} kstep 0")
    e("s_waitcnt lgkmcnt(0)")
    interleave(mfma_ops(0, s == 0), read_ops(s, 1, 1) + ([fread(s+1)] if s < 9 else []))
    e("s_waitcnt lgkmcnt(0)")
    e.c(f"--- stage {s} kstep 1")
    mf = mfma_ops(1, False)
    if s < 9: fcmp()
    e(mf[0])
    if s in [m for m, l in BARS]: e("s_barrier")
    if s < 9: check(s+1)
    if s in STS: stamp()
    if s < 9:
        interleave(mf[1:], read_ops(s+1, 0, 0))
def Z1(tt): return 104 + 12*tt
def G(tt): return 164 + 18*tt
def VWA(tt, kt): return G(tt) + 6 + 4*kt
def vwb(hd, tt): return [Z1(tt), Z1(tt)+6, G(tt), G(tt)+6][hd]
KF = 32
SB = 68
SAQ = [Z1(tt)+6 for tt in range(5)] + [G(0), G(4), Z1(3), Z1(4)]
kreads = [f"ds_read_b64 {vr(KF+(kt*3+u)*4+2*ee,2)}, v{V_AK+2*u+ee} offset:{kt*2048}" for u in range(3) for kt in range(3) for ee in range(2)]
def qcvt(u):
    ops = []
    for hh in range(2):
        for qt in range(3):
            q = QF + (u*3+qt)*4
            a = ACC + ((2*u+hh)*3+qt)*4
            ops += [f"v_cvt_pk_bf16_f32 v{q+2*hh}, v{a}, v{a+1}", f"v_cvt_pk_bf16_f32 v{q+2*hh+1}, v{a+2}, v{a+3}"]
    return ops
fill = qcvt(0) + qcvt(1) + qcvt(2)
fill = merge(mf[1:], fill, 2, start=8)
for x in fill[:6]: e(x)
fill = fill[6:]
stamp()
if args.t1early: e("s_barrier")
fwait(F_K)
stamp()
for x in kreads: e(x)
for x in fill: e(x)
REMAP = {}
for k, r in enumerate(VA2 + [V_NON, V_FO]):
    n = [16, 17, 18, 19, 20, 21][k]
    e(f"v_mov_b32 v{n}, v{r}")
    REMAP[r] = n
VA2 = [REMAP[r] for r in VA2]; V_NON = REMAP[V_NON]; V_FO = REMAP[V_FO]
def smf(u, kt, qt):
    d = SAQ[kt*3+qt]
    c = "0" if u == 0 else vr(d,4)
    return f"v_mfma_f32_16x16x32_bf16 {vr(d,4)}, {vr(KF+(kt*3+u)*4,4)}, {vr(QF+(u*3+qt)*4,4)}, {c}"
for u in range(2):
    e(f"s_waitcnt lgkmcnt({12-6*u})")
    for kt in range(3):
        for qt in range(3): e(smf(u, kt, qt))
e("s_waitcnt lgkmcnt(0)")
for qt in range(3):
    for kt in range(3): e(smf(2, kt, qt))
e("s_nop 1")
for qt in range(3):
    for kt in range(3):
        k = kt*3+qt
        e(f"ds_write_b128 v{V_SXW}, {vr(SAQ[k],4)} offset:{PITCH + k*1024}")
e("s_waitcnt lgkmcnt(0) vmcnt(0)")
e("s_barrier")
stamp()
for qt in range(3):
    for kt in range(3):
        k = kt*3+qt
        e(f"ds_read_b128 {vr(SB+4*k,4)}, v{V_SXR} offset:{PITCH + k*1024}")
def sreg(kt, qt, r): return SAQ[kt*3+qt] + r
for qt in range(3):
    e(f"s_waitcnt lgkmcnt({6-3*qt})")
    if qt == 2: e("s_barrier")
    for kt in range(3):
        k = kt*3+qt
        for h2 in range(2):
            e(f"v_pk_add_f32 {vr(SAQ[k]+2*h2,2)}, {vr(SAQ[k]+2*h2,2)}, {vr(SB+4*k+2*h2,2)}")
M = [2, 4, 6]; T = [3, 5, 7]
SM = []
for qt in range(3):
    vals = [sreg(kt, qt, r) for kt in range(3) for r in range(4)]
    SM.append(f"v_max3_f32 v{M[qt]}, v{vals[0]}, v{vals[1]}, v{vals[2]}")
    for k in range(3, 11, 2): SM.append(f"v_max3_f32 v{M[qt]}, v{M[qt]}, v{vals[k]}, v{vals[k+1]}")
    SM.append(f"v_max_f32 v{M[qt]}, v{M[qt]}, v{vals[11]}")
def xl(op):
    for sw in ("v_permlane32_swap_b32", "v_permlane16_swap_b32"):
        for qt in range(3): SM.append(f"v_mov_b32 v{T[qt]}, v{M[qt]}")
        for qt in range(3): SM.append(f"{sw} v{M[qt]}, v{T[qt]}")
        for qt in range(3): SM.append(f"{op} v{M[qt]}, v{M[qt]}, v{T[qt]}")
xl("v_max_f32")
for qt in range(3): SM.append(f"v_mul_f32 v{M[qt]}, s{S_SC}, v{M[qt]}")
for qt in range(3):
    for kt in range(3):
        for r in range(4):
            x = sreg(kt, qt, r); SM.append(f"v_fma_f32 v{x}, v{x}, s{S_SC}, -v{M[qt]}")
for qt in range(3):
    for kt in range(3):
        for r in range(4):
            x = sreg(kt, qt, r); SM.append(f"v_exp_f32 v{x}, v{x}")
for qt in range(3):
    vals = [sreg(kt, qt, r) for kt in range(3) for r in range(4)]
    SM.append(f"v_add_f32 v{M[qt]}, v{vals[0]}, v{vals[1]}")
    for k in range(2, 12): SM.append(f"v_add_f32 v{M[qt]}, v{M[qt]}, v{vals[k]}")
xl("v_add_f32")
for qt in range(3): SM.append(f"v_rcp_f32 v{M[qt]}, v{M[qt]}")
for qt in range(3):
    for kt in range(3):
        for r in range(4):
            x = sreg(kt, qt, r); SM.append(f"v_mul_f32 v{x}, v{x}, v{M[qt]}")
    for kt in range(3):
        x = sreg(kt, qt, 0)
        d = sreg(0, qt, 2*kt) if kt < 2 else sreg(1, qt, 0)
        SM += [f"v_cvt_pk_bf16_f32 v{d}, v{x}, v{x+1}", f"v_cvt_pk_bf16_f32 v{d+1}, v{x+2}, v{x+3}"]
def pst(k):
    if k < 3: return f"buffer_store_dwordx4 {vr(sreg(0,k,0),4)}, v{V_L16}, {R(R_WS)}, s{S_PXO} offen offset:{k*1024} sc1"
    return f"buffer_store_dwordx2 {vr(sreg(1,k-3,0),2)}, v{V_L12}, {R(R_WS)}, s{S_PXO} offen offset:{2560+(k-3)*512} sc1"
def ppublish():
    e(f"s_cmp_lg_u32 s{S_JH}, 0")
    e("s_cbranch_scc1 L_pp1")
    for k in range(2): e(pst(k))
    e.lab("L_ppd")
for x in SM[:args.smpre]: e(x)
SM = SM[args.smpre:]
pubstep = None
if not SM: ppublish(); pubstep = -1
stamp()
def read2(t, ks, fs):
    buf = buf2(t)
    hi = buf // 2; boff = (buf % 2)*PITCH
    F = FR[fs]
    def vrd(kt): return f"ds_read_b128 {vr(F+24+4*kt,4)}, v{V_AX+8*hi+ks} offset:{boff+kt*2048}"
    def wr(tt, m): return f"ds_read_b64_tr_b16 {vr(F+4*tt+2*m,2)}, v{VA2[2*(tt%2)+hi]} offset:{boff+ks*10240+m*1280+tt*32}"
    ops = [vrd(0), wr(0,0), wr(0,1), vrd(1), vrd(2)]
    for tt in range(1, 5): ops += [wr(tt,0), wr(tt,1)]
    return ops
def mf2(fs, first):
    F = FR[fs]; ops = []
    for tt in range(5):
        for kt in range(3):
            d = VWA(tt, kt)
            c = "0" if first else vr(d,4)
            ops.append(f"v_mfma_f32_16x16x32_bf16 {vr(d,4)}, {vr(F+24+4*kt,4)}, {vr(F+4*tt,4)}, {c}")
    return ops
def vwcvt(hd, tt):
    b = vwb(hd, tt); ops = []
    for kt in range(3):
        a = VWA(tt, kt)
        ops += [f"v_cvt_pk_bf16_f32 v{b+2*kt}, v{a}, v{a+1}", f"v_cvt_pk_bf16_f32 v{b+2*kt+1}, v{a+2}, v{a+3}"]
    return ops
V_PA16, V_PA8 = 24, 25
e(f"s_mul_i32 s{S_T0}, s{S_B}, 18432")
e(f"s_add_u32 s{S_T0}, s{S_T0}, {buf2(8)*PITCH}")
e(f"v_add_u32 v{V_PA16}, s{S_T0}, v{V_L16}")
e(f"v_add_u32 v{V_PA8}, s{S_T0}, v{V_L12}")
def pread(dst, pos, qt, kt):
    if kt < 2: return f"ds_read_b64 {vr(dst,2)}, v{V_PA16} offset:{pos*4608 + qt*1024 + kt*8}"
    return f"ds_read_b64 {vr(dst,2)}, v{V_PA8} offset:{pos*4608 + 2560 + qt*512}"
def pfrag(dst, ks, qt):
    if ks % 3 == 0:
        return [f"ds_read_b128 {vr(dst,4)}, v{V_PA16} offset:{(2*ks//3)*4608 + qt*1024}"]
    return [pread(dst + 2*h, (2*ks+h)//3, qt, (2*ks+h) % 3) for h in range(2)]
fwait(F_T)
if args.p2st: stamp_n[0] = 1
stamp()
for x in read2(0, 0, 0): e(x)
B2M = [m for m, l in BARS2]
carry = []
PQ_ = [FR[0] + 4*k for k in range(9)]
for t in range(12):
    hd, kk = divmod(t, 3)
    for ks in range(2):
        step = 2*t + ks
        e.c(f"--- ring2 stage {t} kstep {ks}")
        e("s_waitcnt lgkmcnt(0)")
        mf = mf2(ks, kk == 0 and ks == 0)
        nf = F_T+t+1 if t < 11 else F_P
        if ks == 0:
            rq = read2(t, 1, 1) + [fread(nf)]
        else:
            fcmp()
            e(mf[0]); mf = mf[1:]
            if t in B2M: e("s_barrier")
            check(nf)
            if args.p2st or t in (2, 5, 8): stamp()
            rq = read2(t+1, 0, 0) if t < 11 else sum([pfrag(PQ_[k], k, 0) for k in range(6)], [])
        if pubstep is not None and step == pubstep + args.ackdelay:
            e(mf[0]); mf = mf[1:]
            e("s_waitcnt vmcnt(0)")
            e(f"buffer_store_dword v{V_NON}, v{V_FO}, {R(R_WS)}, s{S_F1} offen sc1")
        last = (kk == 2 and ks == 1)
        if carry:
            interleave(mf, rq, first2=3, valu=carry, vper=2)
            assert not carry
        elif last:
            assert not (hd == 0 and SM), "softmax must finish within head 0"
            carry = sum([vwcvt(hd, tt) for tt in range(5)], [])
            interleave(mf, rq, first2=3, valu=carry, vper=2, vstart=5)
        elif SM:
            interleave(mf, rq, first2=3, valu=SM, vper=args.vper)
            if not SM:
                ppublish(); pubstep = step
        else:
            interleave(mf, rq, first2=3)
sys.stderr.write(f"pubstep {pubstep}\n")
def afr(tt, ks): return (Z1(tt) + 4*ks) if ks < 3 else (G(tt) + 4*(ks-3))
OUTQ = [FR[1] + 4*k for k in range(9)] + [G(tt) + 12 for tt in range(5)] + [26]
def OUTR_(tt, qt): return OUTQ[qt*5 + tt]
OUTR = list(OUTQ)
e(f"s_lshl_b32 s{S_T0}, s{S_IDX}, 2")
e(f"s_add_u32 s{S_T0}, s{S_T0}, s{S_W}")
e(f"s_lshl_b32 s{S_F2}, s{S_T0}, 10")
e(f"s_add_u32 s{S_F2}, s{S_F2}, {WS_F2}")
e(f"s_lshl_b32 s{S_PB}, s{S_T0}, 16")
e(f"s_add_u32 s{S_PB}, s{S_PB}, {WS_P}")
e(f"s_lshl_b32 s{S_T1}, s{S_J}, 10")
e(f"s_add_u32 s{S_T1}, s{S_T1}, s{S_PB}")
OWN = 2
def pstore(p):
    a0 = OUTR[2*p]; a1 = OUTR[min(2*p+1, 14)]
    ops = [[f"s_cmp_eq_u32 s{S_J}, {p}", f"s_cbranch_scc1 L_own{p}",
            f"v_cvt_pk_bf16_f32 v{a0}, v{a0}, v{a0+1}", f"v_cvt_pk_bf16_f32 v{a0+1}, v{a0+2}, v{a0+3}"]]
    if p < 7:
        ops[0] += [f"v_cvt_pk_bf16_f32 v{a0+2}, v{a1}, v{a1+1}", f"v_cvt_pk_bf16_f32 v{a0+3}, v{a1+2}, v{a1+3}"]
    ops[0] += [f"s_add_u32 s{S_SO}, s{S_T1}, {p*8192}",
               f"buffer_store_dwordx4 {vr(a0,4)}, v{V_L16}, {R(R_WS)}, s{S_SO} offen sc1", f"L_ownr{p}:"]
    return ops
nq = 6
pend = list(range(8))
for qt in range(3):
    for ks in range(6):
        idx = qt*6 + ks
        pq = PQ_[idx % 9]
        fm = [f"v_mfma_f32_16x16x32_bf16 {vr(OUTR_(tt,qt),4)}, {vr(afr(tt,ks),4)}, {vr(pq,4)}, {'0' if ks == 0 else vr(OUTR_(tt,qt),4)}" for tt in range(5)]
        if ks % 3 == 0: e("s_waitcnt lgkmcnt(0)")
        rq = []
        if ks % 3 == 0:
            for _ in range(3):
                if nq < 18:
                    rq += pfrag(PQ_[nq % 9], nq % 6, nq // 6); nq += 1
        interleave(fm, rq, first2=5, valu=carry, vper=3)
        if args.early and ks >= 1 and pend and 2*pend[0]+1 < 5*qt:
            e.emit(pstore(pend.pop(0)))
assert not carry
stamp()
for p in pend: e.emit(pstore(p))
e(f"s_lshl_b32 s{S_T1}, s{S_J}, 2")
e(f"s_add_u32 s{S_T1}, s{S_T1}, s{S_F2}")
e(f"v_lshlrev_b32 v22, 5, v{V_FL8}")
e(f"s_lshl_b32 s{S_T2}, s{S_J}, 7")
e(f"s_add_u32 s{S_F2}, s{S_F2}, s{S_T2}")
e(f"s_lshl_b32 s{S_T0}, s{S_J}, 13")
e(f"s_add_u32 s{S_T0}, s{S_T0}, s{S_PB}")
for k in range(1, 8):
    e(f"s_add_u32 s{S_T2}, s{S_J}, {k}")
    e(f"s_and_b32 s{S_T2}, s{S_T2}, 7")
    e(f"s_lshl_b32 s{S_T2}, s{S_T2}, 10")
    e(f"s_add_u32 s{3+k}, s{S_T2}, s{S_T0}")
e("s_mov_b64 exec, 0xff")
e("s_waitcnt vmcnt(0)")
e(f"buffer_store_dword v{V_NON}, v22, {R(R_WS)}, s{S_T1} offen sc1")
D = args.f2atom
e(f"s_mov_b32 s{S_CNT}, 0")
for k in range(D-1):
    e(f"v_mov_b32 v{140+k}, 0")
    e(f"buffer_atomic_or v{140+k}, v{V_FL8}, {R(R_WS)}, s{S_F2} offen sc0 sc1")
    e(f"s_sleep {args.f2sleep}")
e.lab("L_poll2")
for k in range(D):
    nw = (k + D - 1) % D
    e(f"v_mov_b32 v{140+nw}, 0")
    e(f"buffer_atomic_or v{140+nw}, v{V_FL8}, {R(R_WS)}, s{S_F2} offen sc0 sc1")
    e(f"s_waitcnt vmcnt({D-1})")
    e(f"v_cmp_ne_u32 vcc, s{S_NONCE}, v{140+k}")
    e("s_cbranch_vccz L_poll2_done")
    e(f"s_sleep {args.f2sleep}")
e(f"s_add_u32 s{S_CNT}, s{S_CNT}, 1")
e(f"s_cmp_lt_u32 s{S_CNT}, 50000")
e("s_cbranch_scc1 L_poll2")
e.lab("L_poll2_done")
e("s_mov_b64 exec, -1")
stamp()
for k in range(1, 8):
    e(f"buffer_load_dwordx4 {vr(192+4*k,4)}, v{V_L16}, {R(R_WS)}, s{3+k} offen sc1")
e(f"s_mov_b32 s{S_T4}, 0xffff0000")
for k in range(1, 8):
    e(f"s_waitcnt vmcnt({7-k})")
    for d in range(4):
        e(f"v_lshlrev_b32 v{148+2*d}, 16, v{192+4*k+d}")
        e(f"v_and_b32 v{148+2*d+1}, s{S_T4}, v{192+4*k+d}")
    for d in range(4):
        e(f"v_pk_add_f32 {vr(OWN+2*d,2)}, {vr(OWN+2*d,2)}, {vr(148+2*d,2)}")
res = [OWN, OWN+4]
for z in range(2):
    b = res[z]
    e(f"v_cvt_pk_bf16_f32 v{32+2*z}, v{b}, v{b+1}")
    e(f"v_cvt_pk_bf16_f32 v{33+2*z}, v{b+2}, v{b+3}")
    e(f"s_lshl_b32 s{S_T0}, s{S_J}, 1")
    e(f"s_add_u32 s{S_T0}, s{S_T0}, {z}")
    if z == 1:
        e(f"s_cmp_eq_u32 s{S_T0}, 15")
        e("s_cbranch_scc1 L_fin")
    e(f"s_mul_i32 s{S_T2}, s{S_T0}, 13")
    e(f"s_lshr_b32 s{S_T2}, s{S_T2}, 6")
    e(f"s_mul_i32 s{S_T1}, s{S_T2}, 5")
    e(f"s_sub_u32 s{S_T1}, s{S_T0}, s{S_T1}")
    e(f"s_lshl_b32 s{S_T1}, s{S_T1}, 5")
    e(f"s_mul_i32 s{S_T2}, s{S_T2}, {16*1280}")
    e(f"s_add_u32 s{S_SO}, s{S_OUTB}, s{S_T1}")
    e(f"s_add_u32 s{S_SO}, s{S_SO}, s{S_T2}")
    e(f"buffer_store_dwordx2 {vr(32+2*z,2)}, v{V_OUT}, {R(R_OUT)}, s{S_SO} offen")
e.lab("L_fin")
e(f"s_or_b32 s{S_T0}, s{S_J}, s{S_I}")
e(f"s_or_b32 s{S_T0}, s{S_T0}, s{S_JH}")
e(f"s_cmp_lg_u32 s{S_T0}, 0")
e("s_cbranch_scc1 L_noep")
e("s_barrier")
e(f"s_cmp_lg_u32 s{S_W}, 0")
e("s_cbranch_scc1 L_noep")
e(f"s_lshl_b32 s{S_T2}, s{S_BP}, 7")
e(f"s_add_u32 s{S_T2}, s{S_T2}, {WS_E}")
e("s_mov_b64 exec, 1")
e(f"buffer_store_dword v{V_NON}, v{V_FO}, {R(R_WS)}, s{S_T2} offen sc1")
e("s_mov_b64 exec, -1")
e.lab("L_noep")
if STAMPS:
    e("s_waitcnt vmcnt(0)")
    stamp()
stamp_store()
e.lab("L_end")
e("s_endpgm")
e.lab("L_pp1")
for k in range(2, 6): e(pst(k))
e("s_branch L_ppd")
for p in range(8):
    e.lab(f"L_own{p}")
    e("s_nop 7")
    for z in range(2):
        a = OUTR[min(2*p+z, 14)]
        for r in range(4): e(f"v_mov_b32 v{OWN+4*z+r}, v{a+r}")
    e(f"s_branch L_ownr{p}")
for n in slow:
    e.lab(f"L_slow{n}")
    e(fread(n))
    budget(f"L_cont{n}")
    e("s_waitcnt lgkmcnt(0)")
    fcmp()
    e(f"s_cbranch_vccnz L_slow{n}")
    e(f"s_branch L_cont{n}")
e.raw(".p2align 8")
e.raw(".fill 4096, 4, 0xBF810000")
hdr = ["; generated by dev/gen14.py (fused single kernel, 4 compute + 4 loader waves)",
       "; @launch grid=(256,1,1) block=(512,1,1) lds=163840",
       '.amdgcn_target "amdgcn-amd-amdhsa--gfx950"', ".text"]
desc = f""".amdhsa_kernel {NAME}
  .amdhsa_next_free_vgpr 256
  .amdhsa_next_free_sgpr 102
  .amdhsa_accum_offset 256
  .amdhsa_group_segment_fixed_size 0
  .amdhsa_kernarg_size 64
  .amdhsa_user_sgpr_count 2
  .amdhsa_user_sgpr_kernarg_segment_ptr 1
  .amdhsa_system_sgpr_workgroup_id_x 1
.end_amdhsa_kernel"""
body = hazard_pad(e.L, verbose=True)
sys.stdout.write("\n".join(hdr + body) + '\n.section .rodata,"a"\n.p2align 6\n' + desc + "\n")
```

```python
import sys, math, argparse, struct
from asmlib import *
ap = argparse.ArgumentParser()
ap.add_argument("--stamps", action="store_true")
ap.add_argument("--clk", action="store_true")
ap.add_argument("--kflag", default="nt")
ap.add_argument("--vflag", default="")
ap.add_argument("--sleep", type=int, default=1)
ap.add_argument("--prio", type=int, default=2)
ap.add_argument("--st", default="2,5")
ap.add_argument("--bars", default="1:4,5;3:6;4:7;5:8;6:9")
ap.add_argument("--bars2", default="1:4,5;3:6,7;5:8,9;6:10;7:11;8:")
ap.add_argument("--wppos", type=int, default=-1)
ap.add_argument("--early", type=int, default=1)
ap.add_argument("--v2pf", type=int, default=12)
ap.add_argument("--apoll", type=int, default=1)
ap.add_argument("--smstart", type=int, default=0)
ap.add_argument("--vord", type=int, default=0)
ap.add_argument("--st0", action="store_true")
ap.add_argument("--wp2", type=int, default=0)
ap.add_argument("--kfast", type=int, default=1)
ap.add_argument("--kstag", default="8,9,6,7")
ap.add_argument("--t0bar", type=int, default=7)
ap.add_argument("--gw", type=int, default=4)
ap.add_argument("--gx", type=int, default=4)
ap.add_argument("--noflag", default="")
ap.add_argument("--v8pf", type=int, default=-1)
ap.add_argument("--psf", default="sc1")
ap.add_argument("--plf", default="sc1")
ap.add_argument("--outf", default="")
ap.add_argument("--wsp", type=lambda x: int(x, 0), default=4 << 20)
ap.add_argument("--wstag", default="3,4,8,9")
ap.add_argument("--vstag", default="")
ap.add_argument("--rot2", type=int, default=1)
ap.add_argument("--vnt", type=int, default=0)
ap.add_argument("--wont", type=int, default=0)
ap.add_argument("--wnt", type=int, default=0)
ap.add_argument("--xnt", type=int, default=0)
ap.add_argument("--vper", type=int, default=3)
ap.add_argument("--ackdelay", type=int, default=3)
ap.add_argument("--f2atom", type=int, default=2)
ap.add_argument("--f2sleep", type=int, default=2)
ap.add_argument("--ackstep", type=int, default=1)
ap.add_argument("--pollstep", type=int, default=9)
ap.add_argument("--smpre", type=int, default=26)
ap.add_argument("--p2st", action="store_true")
ap.add_argument("--vppos", type=int, default=-1)
ap.add_argument("--vfirst", type=int, default=1)
ap.add_argument("--pburst", type=int, default=1)
ap.add_argument("--t1early", type=int, default=1)
ap.add_argument("--pl2", type=int, default=12)
ap.add_argument("--pl3", type=int, default=18)
args = ap.parse_args()
STAMPS = args.stamps
def parse_sched(t):
    out = []
    for it in t.split(";"):
        m, l = it.split(":")
        out.append((int(m), [int(x) for x in l.split(",") if x]))
    return out
BARS = parse_sched(args.bars)
for m, l in BARS:
    for n in l: assert m >= (n - 4 if n < 6 else n - 3)
assert sorted(sum([l for m, l in BARS], [])) == list(range(4, 10))
KST = [int(x) for x in args.kstag.split(",")]
for n in KST: assert [m for m, l in BARS if n in l][0] >= 2
CB = [m for m, l in BARS] + ([7, 8] if args.t0bar == 7 else [8])
BARS2 = parse_sched(args.bars2)
for m, l in BARS2:
    for n in l: assert m >= n - 4
assert sorted(sum([l for m, l in BARS2], [])) == list(range(4, 12))
assert BARS2[-1][0] >= 8
NAME = "standalone__mha_block_cached__near_ridge_kernel"
WS_PX = 0
WS_F1 = 3 << 20
WS_E = WS_F1 + 0x20000
WS_F2 = WS_F1 + 0x40000
WS_P = args.wsp
NSTEP = 0x9E3779B1
WS_ST = 0x8000000
NST = 16
e = A()

S_X, S_K, S_V, S_WQ, S_WO, S_OUT, S_DBG, S_WS = 4, 6, 8, 10, 12, 14, 16, 18
R_X, R_WQ, R_K, R_V, R_WO, R_OUT, R_WS = 20, 24, 28, 32, 36, 40, 44
S_J, S_I, S_BP, S_H, S_W = 48, 49, 50, 51, 52
S_T0, S_T1, S_T2, S_T3, S_T4 = 53, 54, 55, 56, 57
S_IDX, S_NONCE = 3, 59
S_A = list(range(60, 70))
S_ST = 70
S_BUD = 17
BUD = 2000000
def srd(r, p, nbytes):
    e(f"s_mov_b32 s{r}, s{p}"); e(f"s_mov_b32 s{r+1}, s{p+1}"); e(f"s_mov_b32 s{r+2}, {nbytes}"); e(f"s_mov_b32 s{r+3}, 0x00020000")
def R(r): return f"s[{r}:{r+3}]"
stamp_n = [0]
def stamp(wait=True):
    if not STAMPS: return
    i = stamp_n[0]
    if i >= NST: return
    stamp_n[0] += 1
    e(f"s_mem{'time' if args.clk else 'realtime'} s[{S_ST+2*i}:{S_ST+2*i+1}]")
    if wait: e("s_waitcnt lgkmcnt(0)")
def stamp_store():
    if not STAMPS: return
    n = stamp_n[0]
    e(f"s_lshl_b32 s{S_T0}, s2, 3")
    e(f"s_add_u32 s{S_T0}, s{S_T0}, s{S_W}")
    e(f"s_mul_i32 s{S_T0}, s{S_T0}, {NST*8}")
    e(f"s_add_u32 s{S_T0}, s{S_T0}, {WS_ST}")
    e("v_mov_b32 v4, 0")
    for i in range(NST):
        k = min(i, n-1)
        e(f"v_mov_b32 v6, s{S_ST+2*k}")
        e(f"v_mov_b32 v7, s{S_ST+2*k+1}")
        e(f"buffer_store_dwordx2 v[6:7], v4, {R(R_WS)}, s{S_T0} offen offset:{8*i}")
        e("s_nop 1")
    sys.stderr.write(f"stamps: {n}\n")
def budget(done):
    e(f"s_add_u32 s{S_BUD}, s{S_BUD}, 1")
    e(f"s_cmp_gt_u32 s{S_BUD}, {BUD}")
    e(f"s_cbranch_scc1 {done}")
XB = 12288
PITCH = 40960
SY_FLG = 36864
F_K, F_T, F_P = 10, 16, 30
def bufof(s): return [1, 2, 3, 0, 1, 2, 0, 1, 2, 0][s]
def buf2(t): return [1, 0, 3, 2][t % 4]
SXB = 2*PITCH

e.raw(f".globl {NAME}\n.p2align 8\n.type {NAME},@function\n{NAME}:")
stamp(wait=False)
e("s_load_dwordx16 s[4:19], s[0:1], 0")
e("s_cmp_ge_u32 s2, 256")
e("s_cbranch_scc1 L_end")
e("v_lshrrev_b32 v2, 6, v0")
e("v_and_b32 v1, 63, v0")
e(f"v_readfirstlane_b32 s{S_W}, v2")
e(f"s_and_b32 s{S_J}, s2, 7")
e(f"s_lshr_b32 s{S_IDX}, s2, 3")
e(f"s_and_b32 s{S_I}, s{S_IDX}, 3")
e(f"s_lshr_b32 s{S_BP}, s{S_IDX}, 2")
e(f"s_lshl_b32 s{S_H}, s{S_J}, 2")
e(f"s_add_u32 s{S_H}, s{S_H}, s{S_I}")
e(f"s_cmp_lt_u32 s{S_W}, 4")
e("s_cbranch_scc1 L_compute")

S_L, S_KX, S_KW, S_XK, S_SO, S_LX, S_LW, S_XB, S_WB, S_KVB = S_A
V_OW, V_OXA, V_OXB, V_OKA, V_OKB, V_OOB, V_PF, LDUMMY = 10, 11, 12, 14, 15, 16, 17, 18
V_OWO = 20
S_KB2, S_VB2, S_FLB, S_KD, S_LO, S_WOB = 4, 5, 6, 7, 8, 9
e(f"s_sub_u32 s{S_L}, s{S_W}, 4")
e("v_lshrrev_b32 v2, 3, v1")
e("v_and_b32 v3, 7, v1")
e("v_lshrrev_b32 v4, 1, v2")
e("v_lshlrev_b32 v5, 1, v4")
e("v_xor_b32 v5, v5, v3")
e("v_lshlrev_b32 v5, 4, v5")
e("v_lshrrev_b32 v6, 2, v2")
e("v_lshlrev_b32 v6, 3, v6")
e("v_and_b32 v7, 3, v2")
e("v_add_u32 v6, v6, v7")
e("v_mul_u32_u24 v6, 12288, v6")
e(f"v_add_u32 v{V_OW}, v6, v5")
e("v_mul_u32_u24 v6, 1280, v2")
e("v_xor_b32 v7, v3, v4")
e("v_lshlrev_b32 v8, 4, v7")
e(f"s_and_b32 s{S_T1}, s{S_L}, 1")
e(f"s_lshl_b32 s{S_T2}, s{S_T1}, 6")
e(f"v_xor_b32 v8, s{S_T2}, v8")
e(f"v_add_u32 v{V_OXA}, v6, v8")
e("v_xor_b32 v9, 64, v8")
e(f"v_add_u32 v{V_OXB}, v6, v9")
e(f"s_mul_i32 s{S_XB}, s{S_BP}, {96*1280}")
e(f"s_mul_i32 s{S_T2}, s{S_L}, {24*1280}")
e(f"s_add_u32 s{S_XB}, s{S_XB}, s{S_T2}")
e(f"s_mul_i32 s{S_WB}, s{S_H}, 384")
e(f"s_lshr_b32 s{S_T0}, s{S_L}, 1")
e(f"s_mul_i32 s{S_T2}, s{S_T0}, {16*12288}")
e(f"s_add_u32 s{S_WB}, s{S_WB}, s{S_T2}")
e(f"s_mul_i32 s{S_T2}, s{S_T1}, {4*12288}")
e(f"s_add_u32 s{S_WB}, s{S_WB}, s{S_T2}")
e(f"s_and_b32 s{S_KX}, s{S_BP}, {args.gw-1}")
e(f"s_mul_i32 s{S_KX}, s{S_KX}, {80//args.gw}")
e(f"s_lshr_b32 s{S_KX}, s{S_KX}, 3")
e(f"s_and_b32 s{S_T2}, s{S_I}, {args.gx-1}")
e(f"s_mul_i32 s{S_T2}, s{S_T2}, {80//args.gx}")
e(f"s_lshr_b32 s{S_T2}, s{S_T2}, 3")
e(f"s_add_u32 s{S_KX}, s{S_KX}, s{S_T2}")
e(f"s_sub_u32 s{S_T2}, s{S_KX}, 10")
e(f"s_cmp_ge_u32 s{S_KX}, 10")
e(f"s_cselect_b32 s{S_KX}, s{S_T2}, s{S_KX}")
e(f"s_lshl_b32 s{S_KX}, s{S_KX}, 7")
e(f"s_mul_i32 s{S_LX}, s{S_L}, 3072")
e(f"s_lshl_b32 s{S_LW}, s{S_L}, 10")
V_WPR, V_XPR = 13, 19
if args.wnt:
    e("v_lshrrev_b32 v24, 2, v1")
    e("v_and_b32 v25, 3, v24")
    e("v_lshrrev_b32 v26, 2, v24")
    e("v_and_b32 v27, 1, v26")
    e("v_lshl_add_u32 v25, v27, 3, v25")
    e("v_lshrrev_b32 v26, 1, v26")
    e("v_lshl_add_u32 v25, v26, 5, v25")
    e("v_mul_u32_u24 v25, 12288, v25")
    e("v_and_b32 v26, 3, v1")
    e("v_min_u32 v26, 2, v26")
    e(f"v_lshl_add_u32 v{V_WPR}, v26, 7, v25")
if args.xnt:
    e("v_min_u32 v24, 23, v1")
    e(f"v_mul_u32_u24 v{V_XPR}, 1280, v24")
if args.st0: stamp(wait=False)
e("s_waitcnt lgkmcnt(0)")
if args.st0: stamp()
srd(R_X, S_X, 16*48*640*2)
srd(R_WQ, S_WQ, 640*6144*2)
def issue(s):
    buf = bufof(s)
    e(f"s_mul_i32 s{S_KW}, s{S_KX}, 6144"); e(f"s_add_u32 s{S_KW}, s{S_KW}, s{S_WB}"); e(f"s_add_u32 s{S_XK}, s{S_KX}, s{S_XB}")
    ws = [("w", ks, cg) for ks in range(2) for cg in range(3)]
    xs = [("x", a) for a in range(3)]
    for o in [xs[0], ws[0], ws[1], xs[1], ws[2], xs[2], ws[3], ws[4], ws[5]]:
        if o[0] == "w":
            _, ks, cg = o
            e(f"s_add_u32 m0, s{S_LW}, {buf*PITCH + XB + ks*12288 + cg*4096}")
            e(f"s_add_u32 s{S_SO}, s{S_KW}, {32*ks*12288 + cg*128}")
            e(f"buffer_load_dwordx4 v{V_OW}, {R(R_WQ)}, s{S_SO} offen {'nt' if s < args.wnt else ''} lds")
        else:
            a = o[1]
            e(f"s_add_u32 m0, s{S_LX}, {buf*PITCH + a*1024}")
            e(f"s_add_u32 s{S_SO}, s{S_XK}, {8*a*1280}")
            e(f"buffer_load_dwordx4 v{V_OXB if a == 1 else V_OXA}, {R(R_X)}, s{S_SO} offen {'nt' if s < args.xnt else ''} lds")
    if s < args.wnt: e(f"buffer_load_dword v{LDUMMY}, v{V_WPR}, {R(R_WQ)}, s{S_KW} offen sc1")
    if s < args.xnt: e(f"buffer_load_dword v{LDUMMY}, v{V_XPR}, {R(R_X)}, s{S_XK} offen sc1")
    e(f"s_add_u32 s{S_KX}, s{S_KX}, 128"); e(f"s_cmp_eq_u32 s{S_KX}, 1280"); e(f"s_cselect_b32 s{S_KX}, 0, s{S_KX}")
NOFLAG = [int(x) for x in args.noflag.split(",") if x]
def flag(n):
    if n in NOFLAG: return
    e(f"s_add_u32 m0, s{S_FLB}, {16*n}")
    e("s_mov_b64 exec, 1")
    e(f"buffer_load_dword v{V_OOB}, {R(R_X)}, 0 offen lds")
    e("s_mov_b64 exec, -1")
issue(0)
if args.st0: stamp()
srd(R_K, S_K, 16*32*48*192*2)
srd(R_V, S_V, 16*32*48*192*2)
e(f"v_mov_b32 v{V_OOB}, 0x7ffffff0")
e(f"s_lshl_b32 s{S_FLB}, s{S_L}, 2")
e(f"s_add_u32 s{S_FLB}, s{S_FLB}, {SY_FLG}")
e("s_barrier")
if args.st0: stamp()
flag(0)
issue(1); flag(1)
if args.st0: stamp()
e(f"s_lshl_b32 s{S_T2}, s{S_BP}, 7")
e(f"s_add_u32 s{S_T2}, s{S_T2}, {WS_E}")
e(f"s_load_dword s{S_NONCE}, s[{S_WS}:{S_WS+1}], s{S_T2}")
srd(R_WO, S_WO, 6144*640*2)
srd(R_WS, S_WS, 268435456)
S_H0, S_RK, S_LF1, S_LPX = 10, 11, 12, 13
if args.rot2:
    if args.vord:
        e(f"s_and_b32 s{S_H0}, s{S_I}, 1")
        e(f"s_and_b32 s{S_RK}, s{S_BP}, 1")
        e(f"s_lshl_b32 s{S_RK}, s{S_RK}, 1")
        e(f"s_or_b32 s{S_H0}, s{S_H0}, s{S_RK}")
        e(f"s_lshr_b32 s{S_RK}, s{S_I}, 1")
    else:
        e(f"s_add_u32 s{S_H0}, s{S_I}, s{S_BP}")
        e(f"s_lshr_b32 s{S_RK}, s{S_BP}, 2")
else:
    e(f"s_mov_b32 s{S_H0}, s{S_I}")
    e(f"s_mov_b32 s{S_RK}, 0")
e("v_mul_u32_u24 v6, 384, v2")
e(f"v_add_u32 v{V_OKA}, v6, v8")
e(f"v_add_u32 v{V_OKB}, v6, v9")
e(f"s_lshl_b32 s{S_T2}, s{S_BP}, 1")
e(f"s_add_u32 s{S_T2}, s{S_T2}, s{S_T0}")
e(f"s_lshl_b32 s{S_T2}, s{S_T2}, 3")
e(f"s_add_u32 s{S_T2}, s{S_T2}, s{S_J}")
e(f"s_mul_i32 s{S_VB2}, s{S_T2}, {4*18432}")
e(f"s_lshl_b32 s{S_LF1}, s{S_T2}, 7")
e(f"s_add_u32 s{S_LF1}, s{S_LF1}, {WS_F1}")
e(f"s_mul_i32 s{S_LPX}, s{S_T2}, {4*5120}")
e(f"s_mul_i32 s{S_T3}, s{S_T1}, {24*384}")
e(f"s_add_u32 s{S_VB2}, s{S_VB2}, s{S_T3}")
e(f"s_mul_i32 s{S_T3}, s{S_I}, 18432")
e(f"s_add_u32 s{S_KB2}, s{S_VB2}, s{S_T3}")
e(f"s_mul_i32 s{S_KD}, s{S_T0}, 18432")
e(f"s_mul_i32 s{S_T3}, s{S_T1}, 3072")
e(f"s_add_u32 s{S_KD}, s{S_KD}, s{S_T3}")
e(f"s_mul_i32 s{S_WOB}, s{S_J}, {768*1280}")
e(f"s_mul_i32 s{S_T2}, s{S_L}, {16*1280}")
e(f"s_add_u32 s{S_WOB}, s{S_WOB}, s{S_T2}")
e(f"s_mul_i32 s{S_T2}, s{S_I}, 320")
e(f"s_add_u32 s{S_WOB}, s{S_WOB}, s{S_T2}")
e(f"s_mul_i32 s{S_LO}, s{S_L}, 5120")
e(f"s_mov_b32 s{S_T0}, 0x0ccccccd")
for n in range(5):
    e(f"v_add_u32 v2, {64*n}, v1")
    e(f"v_mul_hi_u32 v3, v2, s{S_T0}")
    e("v_mul_u32_u24 v4, 20, v3")
    e("v_sub_u32 v4, v2, v4")
    e("v_lshrrev_b32 v5, 2, v3")
    e("v_and_b32 v5, 2, v5")
    e("v_xor_b32 v4, v4, v5")
    e("v_mul_u32_u24 v3, 1280, v3")
    e(f"v_lshl_add_u32 v{V_OWO+n}, v4, 4, v3")
e("v_min_u32 v2, 59, v1")
e(f"v_lshlrev_b32 v{V_PF}, 7, v2")
V_T1, V_T2 = 26, 27
e(f"v_lshlrev_b32 v{V_T1}, 7, v1")
e("v_and_b32 v2, 7, v1")
e(f"v_lshlrev_b32 v{V_T2}, 7, v2")
def vpf():
    e(f"s_and_b32 s{S_SO}, s{S_H0}, 3")
    e(f"s_mul_i32 s{S_SO}, s{S_SO}, 18432")
    e(f"s_add_u32 s{S_SO}, s{S_SO}, s{S_VB2}")
    e(f"s_add_u32 s{S_T2}, s{S_SO}, 8192")
    e(f"buffer_load_dword v{LDUMMY}, v{V_T1}, {R(R_V)}, s{S_SO} offen")
    e(f"buffer_load_dword v{LDUMMY}, v{V_T2}, {R(R_V)}, s{S_T2} offen")
WST = [int(x) for x in args.wstag.split(",")] if args.wstag else []
VST = [int(x) for x in args.vstag.split(",")] if args.vstag else []
S_WP, S_VP = 14, 15
def stagsel(dst, lst):
    packed = sum(v << (4*k) for k, v in enumerate(lst))
    e(f"s_and_b32 s{S_T2}, s{S_IDX}, {len(lst)-1}")
    e(f"s_lshl_b32 s{S_T2}, s{S_T2}, 2")
    e(f"s_lshr_b32 s{dst}, {packed:#x}, s{S_T2}")
    e(f"s_and_b32 s{dst}, s{dst}, 15")
if WST: stagsel(S_WP, WST)
assert not VST
stagsel(S_VP, KST)
def kdma():
    for a in range(3):
        for cg in range(3):
            e(f"s_add_u32 m0, s{S_KD}, {3*PITCH + cg*6144 + a*1024}")
            e(f"s_add_u32 s{S_SO}, s{S_KB2}, {8*a*384 + cg*128}")
            e(f"buffer_load_dwordx4 v{V_OKB if a == 1 else V_OKA}, {R(R_K)}, s{S_SO} offen {args.kflag} lds")
    flag(F_K)
def wpf():
    e(f"s_lshl_b32 s{S_T2}, s{S_IDX}, 2"); e(f"s_add_u32 s{S_T2}, s{S_T2}, s{S_L}")
    e(f"s_mul_i32 s{S_T2}, s{S_T2}, 7680"); e(f"s_mul_i32 s{S_T3}, s{S_J}, {768*1280}"); e(f"s_add_u32 s{S_T2}, s{S_T2}, s{S_T3}")
    if args.wp2:
        e(f"buffer_load_dword v{LDUMMY}, v{V_PF}, {R(R_WO)}, s{S_T2} offen nt")
        e(f"buffer_load_dword v{LDUMMY}, v{V_PF}, {R(R_WO)}, s{S_T2} offen sc1")
    else:
        e(f"buffer_load_dword v{LDUMMY}, v{V_PF}, {R(R_WO)}, s{S_T2} offen")
V_T3 = 28
e("v_min_u32 v2, 23, v1")
e(f"v_mul_u32_u24 v{V_T3}, 384, v2")
def v2pf():
    e(f"s_and_b32 s{S_SO}, s{S_H0}, 3")
    e(f"s_mul_i32 s{S_SO}, s{S_SO}, 18432")
    e(f"s_add_u32 s{S_SO}, s{S_SO}, s{S_VB2}")
    e(f"s_cmp_eq_u32 s{S_RK}, 0")
    e(f"s_cselect_b32 s{S_T2}, 256, 0")
    e(f"s_add_u32 s{S_SO}, s{S_SO}, s{S_T2}")
    if args.vnt:
        e(f"buffer_load_dword v{LDUMMY}, v{V_T3}, {R(R_V)}, s{S_SO} offen nt")
        e(f"buffer_load_dword v{LDUMMY}, v{V_T3}, {R(R_V)}, s{S_SO} offen sc1")
    else:
        e(f"buffer_load_dword v{LDUMMY}, v{V_T3}, {R(R_V)}, s{S_SO} offen")
def extra(n):
    if n == args.v2pf: v2pf()
    if n in WST:
        e(f"s_cmp_lg_u32 s{S_WP}, {n}"); e(f"s_cbranch_scc1 L_nw{n}"); wpf(); e.lab(f"L_nw{n}")
    if n in KST:
        e(f"s_cmp_lg_u32 s{S_VP}, {n}"); e(f"s_cbranch_scc1 L_nv{n}"); kdma(); e.lab(f"L_nv{n}")
    if n == args.vppos and args.vfirst: vpf()
    extra2(n)
    if n == args.vppos and not args.vfirst: vpf()
def extra2(n):
    if n == args.wppos:
        e(f"s_lshl_b32 s{S_T2}, s{S_IDX}, 2"); e(f"s_add_u32 s{S_T2}, s{S_T2}, s{S_L}")
        e(f"s_mul_i32 s{S_T2}, s{S_T2}, 7680"); e(f"s_mul_i32 s{S_T3}, s{S_J}, {768*1280}"); e(f"s_add_u32 s{S_T2}, s{S_T2}, s{S_T3}")
        e(f"buffer_load_dword v{LDUMMY}, v{V_PF}, {R(R_WO)}, s{S_T2} offen")
issue(2); flag(2); extra(2)
issue(3); flag(3); extra(3)
for bi, (m, l) in enumerate(BARS):
    e("s_barrier")
    if bi in (0, len(BARS)-1): stamp()
    for n in l: issue(n); flag(n); extra(n)
def issue2(t):
    hd, kk = divmod(t, 3); buf = buf2(t)
    if kk == 0:
        e(f"s_{'xor_b32' if args.vord else 'add_u32'} s{S_T0}, s{S_H0}, {hd}")
        e(f"s_and_b32 s{S_T0}, s{S_T0}, 3")
        e(f"s_mul_i32 s{S_KW}, s{S_T0}, {192*1280}")
        e(f"s_add_u32 s{S_KW}, s{S_KW}, s{S_WOB}")
        e(f"s_mul_i32 s{S_XK}, s{S_T0}, 18432")
        e(f"s_add_u32 s{S_XK}, s{S_XK}, s{S_VB2}")
    e(f"s_add_u32 s{S_T3}, s{S_RK}, {kk}")
    e(f"s_cmp_eq_u32 s{S_T3}, 3")
    e(f"s_cselect_b32 s{S_T3}, 0, s{S_T3}")
    e(f"s_mul_i32 s{S_KX}, s{S_T3}, {64*1280}")
    e(f"s_add_u32 s{S_KX}, s{S_KX}, s{S_KW}")
    e(f"s_lshl_b32 s{S_T3}, s{S_T3}, 7")
    e(f"s_add_u32 s{S_T3}, s{S_T3}, s{S_XK}")
    for o in ["v0", "w0", "w1", "v1", "w2", "w3", "v2", "w4"]:
        n = int(o[1])
        if o[0] == "w":
            e(f"s_add_u32 m0, s{S_LO}, {buf*PITCH + XB + n*1024}")
            e(f"buffer_load_dwordx4 v{V_OWO+n}, {R(R_WO)}, s{S_KX} offen {'nt' if t < args.wont else ''} lds")
        else:
            e(f"s_add_u32 m0, s{S_LX}, {buf*PITCH + n*1024}")
            e(f"s_add_u32 s{S_SO}, s{S_T3}, {8*n*384}")
            e(f"buffer_load_dwordx4 v{V_OKB if n == 1 else V_OKA}, {R(R_V)}, s{S_SO} offen {'nt' if t < args.vnt else ''} lds")
    flag(F_T + t)
    if t < args.vnt: e(f"buffer_load_dword v{LDUMMY}, v{V_T3}, {R(R_V)}, s{S_T3} offen sc1")
    extra(11 + t)
e("s_waitcnt lgkmcnt(0)")
e(f"s_add_u32 s{S_NONCE}, s{S_NONCE}, {NSTEP:#x}")
e("s_barrier")
issue2(0)
stamp()
if args.t0bar == 7: e("s_barrier")
if args.t1early:
    e("s_barrier")
    issue2(1)
e("s_barrier")
e("s_barrier")
stamp()
for t in range(1 + args.t1early, 4): issue2(t)
stamp()
e("v_and_b32 v2, 7, v1")
e("v_lshlrev_b32 v2, 2, v2")
e("v_lshlrev_b32 v3, 4, v1")
for bi, (m, l) in enumerate(BARS2):
    e("s_barrier")
    stamp()
    if bi == len(BARS2) - 2 and args.apoll:
        e(f"buffer_load_dword v4, v2, {R(R_WS)}, s{S_LF1} offen sc1")
        napoll = 9*len(l)
    for t in l: issue2(t)
    if bi == len(BARS2) - 1:
        e(f"s_mov_b32 s{S_T2}, 0")
        if args.apoll:
            e(f"s_waitcnt vmcnt({napoll + 9*len(l)})")
            e(f"v_cmp_ne_u32 vcc, s{S_NONCE}, v4")
            e("s_cbranch_vccz L_lpolld")
        e.lab("L_lpoll")
        e(f"buffer_load_dword v4, v2, {R(R_WS)}, s{S_LF1} offen sc1")
        e(f"s_add_u32 s{S_T2}, s{S_T2}, 1")
        e(f"s_cmp_ge_u32 s{S_T2}, 100000")
        e("s_cbranch_scc1 L_lpolld")
        e("s_waitcnt vmcnt(0)")
        e(f"v_cmp_ne_u32 vcc, s{S_NONCE}, v4")
        e("s_cbranch_vccz L_lpolld")
        e(f"s_sleep {args.sleep}")
        e("s_branch L_lpoll")
        e.lab("L_lpolld")
PBUF = buf2(8)*PITCH
e(f"s_mul_i32 s{S_T3}, s{S_L}, 9216")
for pp in range(2):
    e(f"s_lshl_b32 s{S_T0}, s{S_T1}, 1")
    e(f"s_add_u32 s{S_T0}, s{S_T0}, {pp}")
    e(f"s_{'xor_b32' if args.vord else 'add_u32'} s{S_T0}, s{S_T0}, s{S_H0}")
    e(f"s_and_b32 s{S_T0}, s{S_T0}, 3")
    e(f"s_mul_i32 s{S_T0}, s{S_T0}, 5120")
    e(f"s_add_u32 s{S_T0}, s{S_T0}, s{S_LPX}")
    for n in range(5):
        if n == 4: e("s_mov_b32 exec_hi, 0")
        e(f"s_add_u32 m0, s{S_T3}, {PBUF + pp*4608 + n*1024}")
        e(f"s_add_u32 s{S_SO}, s{S_T0}, {WS_PX + n*1024}")
        e(f"buffer_load_dwordx4 v3, {R(R_WS)}, s{S_SO} offen sc1 lds")
        if n == 4: e("s_mov_b64 exec, -1")
flag(F_P)
e("s_waitcnt vmcnt(0)")
stamp()
stamp_store()
e("s_endpgm")

stamp_n[0] = 1 if STAMPS else 0
e.lab("L_compute")
S_B, S_JH, S_PXB, S_SO, S_CNT, S_F1, S_PXO, S_PB, S_F2, S_OUTB = S_A
V_L16, V_FL8, V_OUT, V_L12, V_SR, V_RDY = 10, 11, 12, 13, 14, 15
V_AW, V_AX = 16, 22
FR = [32, 68]
ACC = 104
V_AK, DUMMY = 182, 191
VA2 = [176, 177, 178, 179]
V_SXW, V_SXR, V_PL = 180, 181, 188
QF = 192
if args.prio: e(f"s_setprio {args.prio}")
e(f"v_lshlrev_b32 v{V_L16}, 4, v1")
e("v_lshlrev_b32 v2, 2, v0")
e(f"v_add_u32 v2, {SY_FLG}, v2")
e("v_mov_b32 v4, 1")
e("ds_write_b32 v2, v4")
e("s_getpc_b64 s[60:61]")
e.lab("L_pc")
e(f"s_sub_u32 s60, s60, L_pc-{NAME}")
e("s_subb_u32 s61, s61, 0")
e(f"s_lshl_b32 s{S_T0}, s{S_IDX}, 10")
e("v_and_b32 v2, 7, v1")
e("v_lshlrev_b32 v2, 7, v2")
e(f"v_add_u32 v2, s{S_T0}, v2")
e(f"global_load_dword v{DUMMY}, v2, s[60:61]")
e("s_waitcnt lgkmcnt(0)")
e("s_barrier")
e(f"s_lshl_b32 s{S_T2}, s{S_BP}, 7")
e(f"s_add_u32 s{S_T2}, s{S_T2}, {WS_E}")
e(f"s_load_dword s{S_NONCE}, s[{S_WS}:{S_WS+1}], s{S_T2}")
srd(R_OUT, S_OUT, 16*48*640*2)
srd(R_WS, S_WS, 268435456)
e(f"s_mov_b32 s{S_BUD}, 0")
e(f"s_lshr_b32 s{S_B}, s{S_W}, 1")
e(f"s_and_b32 s{S_JH}, s{S_W}, 1")
e(f"v_lshlrev_b32 v{V_L12}, 3, v1")
e(f"v_add_u32 v{V_L12}, 512, v{V_L12}")
e("v_lshrrev_b32 v2, 4, v1")
e("v_and_b32 v3, 15, v1")
e("v_mul_u32_u24 v4, 1280, v3")
e(f"v_lshl_add_u32 v{V_OUT}, v2, 3, v4")
e("v_and_b32 v4, 7, v1")
e(f"v_lshlrev_b32 v{V_FL8}, 2, v4")
e("v_and_b32 v4, 3, v1")
e("v_lshlrev_b32 v5, 2, v4")
e(f"v_add_u32 v{V_SR}, {SY_FLG}, v5")
e(f"s_xor_b32 s{S_T3}, s{S_W}, 1")
e(f"s_mul_i32 s{S_T2}, s{S_W}, 9216")
e(f"s_mul_i32 s{S_T1}, s{S_T3}, 9216")
e(f"s_add_u32 s{S_T2}, s{S_T2}, {SXB}")
e(f"s_add_u32 s{S_T1}, s{S_T1}, {SXB}")
e(f"v_add_u32 v{V_SXW}, s{S_T2}, v{V_L16}")
e(f"v_add_u32 v{V_SXR}, s{S_T1}, v{V_L16}")
e("v_lshrrev_b32 v8, 1, v3")
e("v_xor_b32 v4, v8, v2")
e("v_lshlrev_b32 v4, 4, v4")
e("v_lshl_add_u32 v4, v3, 7, v4")
e(f"s_mul_i32 s{S_T2}, s{S_B}, 6144")
e(f"v_add_u32 v{V_AX}, s{S_T2}, v4")
e(f"v_xor_b32 v{V_AX+1}, 64, v{V_AX}")
e(f"v_add_u32 v{V_AX+8}, {2*PITCH}, v{V_AX}")
e(f"v_add_u32 v{V_AX+9}, {2*PITCH}, v{V_AX+1}")
e("v_lshrrev_b32 v9, 1, v2")
e("v_xor_b32 v9, v9, v8")
e("v_and_b32 v4, 1, v2")
e("v_lshlrev_b32 v4, 3, v4")
e("v_lshl_add_u32 v4, v3, 7, v4")
e(f"s_mul_i32 s{S_T2}, s{S_JH}, 12")
e(f"s_mul_i32 s{S_T1}, s{S_B}, 18432")
e(f"s_add_u32 s{S_T1}, s{S_T1}, {3*PITCH}")
for k in range(6):
    e(f"s_add_u32 s{S_T3}, s{S_T2}, {2*k}")
    e(f"s_and_b32 s{S_T0}, s{S_T3}, 7")
    e(f"s_lshr_b32 s{S_T3}, s{S_T3}, 3")
    e(f"s_mul_i32 s{S_T3}, s{S_T3}, 6144")
    e(f"s_add_u32 s{S_T3}, s{S_T3}, s{S_T1}")
    e(f"v_xor_b32 v6, s{S_T0}, v9")
    e(f"v_lshl_add_u32 v6, v6, 4, v4")
    e(f"v_add_u32 v{V_AK+k}, s{S_T3}, v6")
e("v_lshrrev_b32 v4, 2, v1")
e("v_and_b32 v4, 7, v4")
e("v_lshrrev_b32 v5, 5, v1")
e("v_lshlrev_b32 v5, 11, v5")
e("v_lshl_add_u32 v5, v4, 7, v5")
e("v_and_b32 v6, 3, v1")
e("v_lshl_add_u32 v5, v6, 3, v5")
e("v_lshrrev_b32 v4, 1, v4")
e(f"s_mul_i32 s{S_T2}, s{S_JH}, 6")
for t in range(6):
    e(f"s_add_u32 s{S_T3}, s{S_T2}, {t}")
    e(f"s_and_b32 s{S_T0}, s{S_T3}, 3")
    e(f"s_lshr_b32 s{S_T3}, s{S_T3}, 2")
    e(f"s_lshl_b32 s{S_T3}, s{S_T3}, 12")
    e(f"s_add_u32 s{S_T3}, s{S_T3}, {XB}")
    e(f"v_xor_b32 v6, s{S_T0}, v4")
    e(f"v_lshl_add_u32 v6, v6, 5, v5")
    e(f"v_add_u32 v{V_AW+t}, s{S_T3}, v6")
    e(f"v_add_u32 v{V_AW+8+t}, {2*PITCH}, v{V_AW+t}")
e(f"s_lshl_b32 s{S_T2}, s{S_BP}, 1")
e(f"s_add_u32 s{S_T2}, s{S_T2}, s{S_B}")
e(f"s_mul_i32 s{S_OUTB}, s{S_T2}, {48*1280}")
e(f"s_lshl_b32 s{S_T2}, s{S_T2}, 3")
e(f"s_add_u32 s{S_T2}, s{S_T2}, s{S_J}")
e(f"s_mul_i32 s{S_PXB}, s{S_T2}, {4*5120}")
e(f"s_mul_i32 s{S_T3}, s{S_I}, 5120")
e(f"s_add_u32 s{S_PXO}, s{S_PXB}, s{S_T3}")
e(f"s_lshl_b32 s{S_F1}, s{S_T2}, 7")
e(f"s_add_u32 s{S_F1}, s{S_F1}, {WS_F1}")
e(f"s_mul_i32 s{S_T3}, s{S_I}, 320")
e(f"s_add_u32 s{S_OUTB}, s{S_OUTB}, s{S_T3}")
e(f"s_mul_i32 s{S_T3}, s{S_JH}, 160")
e(f"s_add_u32 s{S_OUTB}, s{S_OUTB}, s{S_T3}")
e("v_lshrrev_b32 v2, 4, v1")
e("v_lshrrev_b32 v3, 2, v1")
e("v_and_b32 v3, 3, v3")
e("v_lshl_add_u32 v3, v2, 3, v3")
e("v_mul_u32_u24 v3, 320, v3")
e("v_and_b32 v4, 3, v1")
e("v_lshl_add_u32 v3, v4, 3, v3")
e("v_and_b32 v2, 1, v2")
e("v_lshlrev_b32 v2, 5, v2")
e("v_add_u32 v4, v3, v2")
e("v_sub_u32 v5, v3, v2")
e(f"s_add_u32 s{S_T3}, s{S_T3}, {XB}")
e(f"s_cmp_eq_u32 s{S_JH}, 0")
e("s_cselect_b64 vcc, -1, 0")
e("v_cndmask_b32 v6, v5, v4, vcc")
e("v_cndmask_b32 v7, v4, v5, vcc")
e(f"v_add_u32 v{VA2[0]}, s{S_T3}, v6")
e(f"v_add_u32 v{VA2[2]}, s{S_T3}, v7")
e(f"v_add_u32 v{VA2[1]}, {2*PITCH}, v{VA2[0]}")
e(f"v_add_u32 v{VA2[3]}, {2*PITCH}, v{VA2[2]}")
cs = (192 ** -0.5) * math.log2(math.e)
cbits = struct.unpack("<I", struct.pack("<f", cs))[0]
S_SC = S_T4
e(f"s_mov_b32 s{S_SC}, {cbits:#x}")
e("s_waitcnt lgkmcnt(0)")
e(f"s_add_u32 s{S_NONCE}, s{S_NONCE}, {NSTEP:#x}")
V_NON, V_FO = 189, 190
e(f"v_mov_b32 v{V_NON}, s{S_NONCE}")
e(f"s_lshl_b32 s{S_T0}, s{S_I}, 1")
e(f"s_add_u32 s{S_T0}, s{S_T0}, s{S_JH}")
e(f"s_lshl_b32 s{S_T0}, s{S_T0}, 2")
e(f"v_mov_b32 v{V_FO}, s{S_T0}")

slow = []
def fread(n):
    while n in NOFLAG: n += 1
    return f"ds_read_b32 v{V_RDY}, v{V_SR} offset:{16*n}"
def fcmp(): e(f"v_cmp_ne_u32 vcc, 0, v{V_RDY}")
def check(n):
    e(f"s_cbranch_vccnz L_slow{n}")
    e.lab(f"L_cont{n}")
    slow.append(n)
def fwait(n):
    e(f"s_branch L_slow{n}")
    e.lab(f"L_cont{n}")
    slow.append(n)
def read_ops(s, ks, fs):
    buf = bufof(s)
    aset = 8*(buf//2); boff = (buf % 2)*PITCH
    F = FR[fs]
    def xr(qt): return f"ds_read_b128 {vr(F+24+4*qt,4)}, v{V_AX+aset+ks} offset:{boff+qt*2048}"
    def wr(t, m): return f"ds_read_b64_tr_b16 {vr(F+4*t+2*m,2)}, v{V_AW+aset+t} offset:{boff+ks*12288+m*1024}"
    ops = [xr(0), wr(0,0), wr(0,1), xr(1), xr(2)]
    for t in range(1, 6): ops += [wr(t,0), wr(t,1)]
    return ops
def mfma_ops(fs, first):
    F = FR[fs]; ops = []
    for t in range(6):
        for qt in range(3):
            d = ACC + (t*3+qt)*4
            c = "0" if first else vr(d,4)
            ops.append(f"v_mfma_f32_16x16x32_bf16 {vr(d,4)}, {vr(F+4*t,4)}, {vr(F+24+4*qt,4)}, {c}")
    return ops
def interleave(mf, reads, first2=4, valu=None, vper=0, vstart=0):
    rq = list(reads)
    for k, m in enumerate(mf):
        e(m)
        for _ in range(2 if k < first2 else 1):
            if rq: e(rq.pop(0))
        if valu is not None and k >= vstart:
            n = vper
            while n > 0 and valu:
                x = valu.pop(0); e.emit(x)
                n -= 2 if (isinstance(x, str) and x.startswith(("v_exp", "v_rcp"))) else 1
    assert not rq
def merge(mf, fill, per, start=0):
    fq = list(fill)
    for k, m in enumerate(mf):
        e(m)
        if k >= start:
            for _ in range(per):
                if fq: e.emit(fq.pop(0))
    return fq

fwait(0)
stamp()
for x in read_ops(0, 0, 0): e(x)
STS = [int(x) for x in args.st.split(",")]
for s in range(10):
    e.c(f"--- stage {s} kstep 0")
    e("s_waitcnt lgkmcnt(0)")
    interleave(mfma_ops(0, s == 0), read_ops(s, 1, 1) + ([fread(s+1)] if (s < 9 or args.kfast) else []))
    e("s_waitcnt lgkmcnt(0)")
    e.c(f"--- stage {s} kstep 1")
    mf = mfma_ops(1, False)
    if s < 9 or args.kfast: fcmp()
    e(mf[0])
    if s in CB or (s == 9 and args.kfast): e("s_barrier")
    if s < 9 or args.kfast: check(s+1)
    if s in STS: stamp()
    if s < 9:
        interleave(mf[1:], read_ops(s+1, 0, 0))
def Z1(tt): return 104 + 12*tt
def G(tt): return 164 + 18*tt
def VWA(tt, kt): return G(tt) + 6 + 4*kt
def vwb(hd, tt): return [Z1(tt), Z1(tt)+6, G(tt), G(tt)+6][hd]
KF = 32
SB = 68
SAQ = [Z1(tt)+6 for tt in range(5)] + [G(0), G(4), 26, G(1)]
kreads = [f"ds_read_b64 {vr(KF+(kt*3+u)*4+2*ee,2)}, v{V_AK+2*u+ee} offset:{kt*2048}" for u in range(3) for kt in range(3) for ee in range(2)]
def qcvt(u):
    ops = []
    for hh in range(2):
        for qt in range(3):
            q = QF + (u*3+qt)*4
            a = ACC + ((2*u+hh)*3+qt)*4
            ops += [f"v_cvt_pk_bf16_f32 v{q+2*hh}, v{a}, v{a+1}", f"v_cvt_pk_bf16_f32 v{q+2*hh+1}, v{a+2}, v{a+3}"]
    return ops
REMAP = {}
mv = []
for k, r in enumerate(VA2 + [V_NON, V_FO]):
    n = [16, 17, 18, 19, 20, 21][k]
    mv.append(f"v_mov_b32 v{n}, v{r}")
    REMAP[r] = n
VA2 = [REMAP[r] for r in VA2]; V_NON = REMAP[V_NON]; V_FO = REMAP[V_FO]
def smf(u, kt, qt):
    d = SAQ[kt*3+qt]
    c = "0" if u == 0 else vr(d,4)
    return f"v_mfma_f32_16x16x32_bf16 {vr(d,4)}, {vr(KF+(kt*3+u)*4,4)}, {vr(QF+(u*3+qt)*4,4)}, {c}"
if args.kfast:
    assert F_K == 10 and args.t1early
    fill = kreads + qcvt(0) + qcvt(1) + qcvt(2)
    fill = merge(mf[1:], fill, 2)
    stamp()
    stamp()
    def accsrc(reg): return (reg - ACC) // 24 if ACC <= reg < ACC + 72 else -1
    order = sorted(range(9), key=lambda k: max(accsrc(SAQ[k]), accsrc(SAQ[k]+3)))
    e("s_waitcnt lgkmcnt(0)")
    done = 36 - len(fill)
    for k in order:
        need = 12*(max(accsrc(SAQ[k]), accsrc(SAQ[k]+3)) + 1)
        need = max(need, 12)
        while done < need:
            e(fill.pop(0)); done += 1
        e(smf(0, k // 3, k % 3))
        for _ in range(2):
            if fill: e(fill.pop(0)); done += 1
    assert not fill
    merge([smf(1, kt, qt) for kt in range(3) for qt in range(3)], mv, 1)
else:
    fill = qcvt(0) + qcvt(1) + qcvt(2)
    fill = merge(mf[1:], fill, 2, start=8)
    for x in fill[:6]: e(x)
    fill = fill[6:]
    stamp()
    if args.t1early: e("s_barrier")
    fwait(F_K)
    stamp()
    for x in kreads: e(x)
    for x in fill: e(x)
    for x in mv: e(x)
    for u in range(2):
        e(f"s_waitcnt lgkmcnt({12-6*u})")
        for kt in range(3):
            for qt in range(3): e(smf(u, kt, qt))
    e("s_waitcnt lgkmcnt(0)")
TMPQ = [68, 72, 76]
SB = 80
def slast(jh):
    def m(kt, qt, d): return f"v_mfma_f32_16x16x32_bf16 {vr(d,4)}, {vr(KF+(kt*3+2)*4,4)}, {vr(QF+(6+qt)*4,4)}, {vr(SAQ[kt*3+qt],4)}"
    snd = 2 - 2*jh; keep = 2*jh
    for kt in range(3): e(m(kt, snd, TMPQ[kt]))
    for kt in range(3): e(m(kt, 1, SAQ[kt*3+1]))
    for kt in range(3): e(m(kt, keep, SAQ[kt*3]))
    for kt in range(3): e(f"ds_write_b128 v{V_SXW}, {vr(TMPQ[kt],4)} offset:{kt*1024}")
    for kt in range(3): e(f"ds_write_b128 v{V_SXW}, {vr(SAQ[kt*3+1],4)} offset:{(3+kt)*1024}")
e(f"s_cmp_lg_u32 s{S_JH}, 0")
e("s_cbranch_scc1 L_sl1")
slast(0)
e.lab("L_sld")
e("s_waitcnt lgkmcnt(0) vmcnt(0)")
e("s_barrier")
stamp()
for k in range(6): e(f"ds_read_b128 {vr(SB+4*k,4)}, v{V_SXR} offset:{k*1024}")
def sreg(kt, qt, r): return SAQ[kt*3+qt] + r
NQ = 2
for qt in range(NQ):
    e(f"s_waitcnt lgkmcnt({3-3*qt})")
    if qt == NQ-1: e("s_barrier")
    for kt in range(3):
        for h2 in range(2):
            e(f"v_pk_add_f32 {vr(sreg(kt,qt,2*h2),2)}, {vr(sreg(kt,qt,2*h2),2)}, {vr(SB+4*(qt*3+kt)+2*h2,2)}")
M = [2, 4, 6]; T = [3, 5, 7]
SM = []
for qt in range(NQ):
    vals = [sreg(kt, qt, r) for kt in range(3) for r in range(4)]
    SM.append(f"v_max3_f32 v{M[qt]}, v{vals[0]}, v{vals[1]}, v{vals[2]}")
    for k in range(3, 11, 2): SM.append(f"v_max3_f32 v{M[qt]}, v{M[qt]}, v{vals[k]}, v{vals[k+1]}")
    SM.append(f"v_max_f32 v{M[qt]}, v{M[qt]}, v{vals[11]}")
def xl(op):
    for sw in ("v_permlane32_swap_b32", "v_permlane16_swap_b32"):
        for qt in range(NQ): SM.append(f"v_mov_b32 v{T[qt]}, v{M[qt]}")
        for qt in range(NQ): SM.append(f"{sw} v{M[qt]}, v{T[qt]}")
        for qt in range(NQ): SM.append(f"{op} v{M[qt]}, v{M[qt]}, v{T[qt]}")
xl("v_max_f32")
for qt in range(NQ): SM.append(f"v_mul_f32 v{M[qt]}, s{S_SC}, v{M[qt]}")
for qt in range(NQ):
    for kt in range(3):
        for r in range(4):
            x = sreg(kt, qt, r); SM.append(f"v_fma_f32 v{x}, v{x}, s{S_SC}, -v{M[qt]}")
for qt in range(NQ):
    for kt in range(3):
        for r in range(4):
            x = sreg(kt, qt, r); SM.append(f"v_exp_f32 v{x}, v{x}")
for qt in range(NQ):
    vals = [sreg(kt, qt, r) for kt in range(3) for r in range(4)]
    SM.append(f"v_add_f32 v{M[qt]}, v{vals[0]}, v{vals[1]}")
    for k in range(2, 12): SM.append(f"v_add_f32 v{M[qt]}, v{M[qt]}, v{vals[k]}")
xl("v_add_f32")
for qt in range(NQ): SM.append(f"v_rcp_f32 v{M[qt]}, v{M[qt]}")
for qt in range(NQ):
    for kt in range(3):
        for r in range(4):
            x = sreg(kt, qt, r); SM.append(f"v_mul_f32 v{x}, v{x}, v{M[qt]}")
    for kt in range(3):
        x = sreg(kt, qt, 0)
        d = sreg(0, qt, 2*kt) if kt < 2 else sreg(1, qt, 0)
        SM += [f"v_cvt_pk_bf16_f32 v{d}, v{x}, v{x+1}", f"v_cvt_pk_bf16_f32 v{d+1}, v{x+2}, v{x+3}"]
def ppublish():
    e(f"s_lshl_b32 s{S_T0}, s{S_JH}, 10")
    e(f"s_add_u32 s{S_T1}, s{S_T0}, s{S_PXO}")
    e(f"s_add_u32 s{S_T0}, s{S_T0}, s{S_T1}")
    e(f"buffer_store_dwordx4 {vr(sreg(0,0,0),4)}, v{V_L16}, {R(R_WS)}, s{S_T0} offen sc1")
    e(f"buffer_store_dwordx2 {vr(sreg(1,0,0),2)}, v{V_L12}, {R(R_WS)}, s{S_T1} offen offset:2560 sc1")
    e(f"s_cmp_lg_u32 s{S_JH}, 0")
    e("s_cbranch_scc1 L_pp1")
    e(f"buffer_store_dwordx4 {vr(sreg(0,1,0),4)}, v{V_L16}, {R(R_WS)}, s{S_PXO} offen offset:1024 sc1")
    e.lab("L_ppd")
for x in SM[:args.smpre]: e(x)
SM = SM[args.smpre:]
pubstep = None
if not SM: ppublish(); pubstep = -1
stamp()
def read2(t, ks, fs):
    buf = buf2(t)
    hi = buf // 2; boff = (buf % 2)*PITCH
    F = FR[fs]
    def vrd(kt): return f"ds_read_b128 {vr(F+24+4*kt,4)}, v{V_AX+8*hi+ks} offset:{boff+kt*2048}"
    def wr(tt, m): return f"ds_read_b64_tr_b16 {vr(F+4*tt+2*m,2)}, v{VA2[2*(tt%2)+hi]} offset:{boff+ks*10240+m*1280+tt*32}"
    ops = [vrd(0), wr(0,0), wr(0,1), vrd(1), vrd(2)]
    for tt in range(1, 5): ops += [wr(tt,0), wr(tt,1)]
    return ops
def mf2(fs, first):
    F = FR[fs]; ops = []
    for tt in range(5):
        for kt in range(3):
            d = VWA(tt, kt)
            c = "0" if first else vr(d,4)
            ops.append(f"v_mfma_f32_16x16x32_bf16 {vr(d,4)}, {vr(F+24+4*kt,4)}, {vr(F+4*tt,4)}, {c}")
    return ops
def vwcvt(hd, tt):
    b = vwb(hd, tt); ops = []
    for kt in range(3):
        a = VWA(tt, kt)
        ops += [f"v_cvt_pk_bf16_f32 v{b+2*kt}, v{a}, v{a+1}", f"v_cvt_pk_bf16_f32 v{b+2*kt+1}, v{a+2}, v{a+3}"]
    return ops
V_PA16, V_PA8 = 24, 25
e(f"s_mul_i32 s{S_T0}, s{S_B}, 18432")
e(f"s_add_u32 s{S_T0}, s{S_T0}, {buf2(8)*PITCH}")
e(f"v_add_u32 v{V_PA16}, s{S_T0}, v{V_L16}")
e(f"v_add_u32 v{V_PA8}, s{S_T0}, v{V_L12}")
def pread(dst, pos, qt, kt):
    if kt < 2: return f"ds_read_b64 {vr(dst,2)}, v{V_PA16} offset:{pos*4608 + qt*1024 + kt*8}"
    return f"ds_read_b64 {vr(dst,2)}, v{V_PA8} offset:{pos*4608 + 2560 + qt*512}"
def pfrag(dst, ks, qt):
    if ks % 3 == 0:
        return [f"ds_read_b128 {vr(dst,4)}, v{V_PA16} offset:{(2*ks//3)*4608 + qt*1024}"]
    return [pread(dst + 2*h, (2*ks+h)//3, qt, (2*ks+h) % 3) for h in range(2)]
fwait(F_T)
if args.p2st: stamp_n[0] = 1
stamp()
for x in read2(0, 0, 0): e(x)
B2M = [m for m, l in BARS2]
carry = []
PQ_ = [FR[0] + 4*k for k in range(9)]
for t in range(12):
    hd, kk = divmod(t, 3)
    for ks in range(2):
        step = 2*t + ks
        e.c(f"--- ring2 stage {t} kstep {ks}")
        e("s_waitcnt lgkmcnt(0)")
        mf = mf2(ks, kk == 0 and ks == 0)
        nf = F_T+t+1 if t < 11 else F_P
        if ks == 0:
            rq = read2(t, 1, 1) + [fread(nf)]
        else:
            fcmp()
            e(mf[0]); mf = mf[1:]
            if t in B2M: e("s_barrier")
            check(nf)
            if args.p2st or t in (2, 5, 8): stamp()
            rq = read2(t+1, 0, 0) if t < 11 else sum([pfrag(PQ_[k], k, 0) for k in range(6)], [])
        if pubstep is not None and step == pubstep + args.ackdelay:
            e(mf[0]); mf = mf[1:]
            e("s_waitcnt vmcnt(0)")
            e(f"buffer_store_dword v{V_NON}, v{V_FO}, {R(R_WS)}, s{S_F1} offen sc1")
        last = (kk == 2 and ks == 1)
        if carry:
            interleave(mf, rq, first2=3, valu=carry, vper=2)
            assert not carry
        elif last:
            assert not (hd == 1 and (SM or pubstep is None)), "softmax must finish within head 1"
            carry = sum([vwcvt(hd, tt) for tt in range(5)], [])
            interleave(mf, rq, first2=3, valu=carry, vper=2, vstart=5)
        elif SM and step >= args.smstart:
            interleave(mf, rq, first2=3, valu=SM, vper=args.vper)
            if not SM:
                ppublish(); pubstep = step
        else:
            interleave(mf, rq, first2=3)
sys.stderr.write(f"pubstep {pubstep}\n")
def afr(tt, ks): return (Z1(tt) + 4*ks) if ks < 3 else (G(tt) + 4*(ks-3))
OUTQ = [FR[1] + 4*k for k in range(9)] + [G(tt) + 12 for tt in range(5)] + [26]
def OUTR_(tt, qt): return OUTQ[qt*5 + tt]
OUTR = list(OUTQ)
e(f"s_lshl_b32 s{S_T0}, s{S_IDX}, 2")
e(f"s_add_u32 s{S_T0}, s{S_T0}, s{S_W}")
e(f"s_lshl_b32 s{S_F2}, s{S_T0}, 10")
e(f"s_add_u32 s{S_F2}, s{S_F2}, {WS_F2}")
e(f"s_lshl_b32 s{S_PB}, s{S_T0}, 16")
e(f"s_add_u32 s{S_PB}, s{S_PB}, {WS_P}")
e(f"s_lshl_b32 s{S_T1}, s{S_J}, 10")
e(f"s_add_u32 s{S_T1}, s{S_T1}, s{S_PB}")
OWN = 2
def pstore(p):
    a0 = OUTR[2*p]; a1 = OUTR[min(2*p+1, 14)]
    ops = [[f"s_cmp_eq_u32 s{S_J}, {p}", f"s_cbranch_scc1 L_own{p}",
            f"v_cvt_pk_bf16_f32 v{a0}, v{a0}, v{a0+1}", f"v_cvt_pk_bf16_f32 v{a0+1}, v{a0+2}, v{a0+3}"]]
    if p < 7:
        ops[0] += [f"v_cvt_pk_bf16_f32 v{a0+2}, v{a1}, v{a1+1}", f"v_cvt_pk_bf16_f32 v{a0+3}, v{a1+2}, v{a1+3}"]
    ops[0] += [f"s_add_u32 s{S_SO}, s{S_T1}, {p*8192}",
               f"buffer_store_dwordx4 {vr(a0,4)}, v{V_L16}, {R(R_WS)}, s{S_SO} offen {args.psf}", f"L_ownr{p}:"]
    return ops
nq = 6
pend = list(range(8))
for qt in range(3):
    for ks in range(6):
        idx = qt*6 + ks
        pq = PQ_[idx % 9]
        fm = [f"v_mfma_f32_16x16x32_bf16 {vr(OUTR_(tt,qt),4)}, {vr(afr(tt,ks),4)}, {vr(pq,4)}, {'0' if ks == 0 else vr(OUTR_(tt,qt),4)}" for tt in range(5)]
        if ks % 3 == 0: e("s_waitcnt lgkmcnt(0)")
        rq = []
        if ks % 3 == 0:
            for _ in range(3):
                if nq < 18:
                    rq += pfrag(PQ_[nq % 9], nq % 6, nq // 6); nq += 1
        interleave(fm, rq, first2=5, valu=carry, vper=3)
        if args.early and ks >= 1 and pend and 2*pend[0]+1 < 5*qt:
            e.emit(pstore(pend.pop(0)))
assert not carry
stamp()
for p in pend: e.emit(pstore(p))
e(f"s_lshl_b32 s{S_T1}, s{S_J}, 2")
e(f"s_add_u32 s{S_T1}, s{S_T1}, s{S_F2}")
e(f"v_lshlrev_b32 v22, 5, v{V_FL8}")
e(f"s_lshl_b32 s{S_T2}, s{S_J}, 7")
e(f"s_add_u32 s{S_F2}, s{S_F2}, s{S_T2}")
e(f"s_lshl_b32 s{S_T0}, s{S_J}, 13")
e(f"s_add_u32 s{S_T0}, s{S_T0}, s{S_PB}")
for k in range(1, 8):
    e(f"s_add_u32 s{S_T2}, s{S_J}, {k}")
    e(f"s_and_b32 s{S_T2}, s{S_T2}, 7")
    e(f"s_lshl_b32 s{S_T2}, s{S_T2}, 10")
    e(f"s_add_u32 s{3+k}, s{S_T2}, s{S_T0}")
e("s_mov_b64 exec, 0xff")
e("s_waitcnt vmcnt(0)")
e(f"buffer_store_dword v{V_NON}, v22, {R(R_WS)}, s{S_T1} offen sc1")
D = args.f2atom
e(f"s_mov_b32 s{S_CNT}, 0")
for k in range(D-1):
    e(f"v_mov_b32 v{140+k}, 0")
    e(f"buffer_atomic_or v{140+k}, v{V_FL8}, {R(R_WS)}, s{S_F2} offen sc0 sc1")
    e(f"s_sleep {args.f2sleep}")
e.lab("L_poll2")
for k in range(D):
    nw = (k + D - 1) % D
    e(f"v_mov_b32 v{140+nw}, 0")
    e(f"buffer_atomic_or v{140+nw}, v{V_FL8}, {R(R_WS)}, s{S_F2} offen sc0 sc1")
    e(f"s_waitcnt vmcnt({D-1})")
    e(f"v_cmp_ne_u32 vcc, s{S_NONCE}, v{140+k}")
    e("s_cbranch_vccz L_poll2_done")
    e(f"s_sleep {args.f2sleep}")
e(f"s_add_u32 s{S_CNT}, s{S_CNT}, 1")
e(f"s_cmp_lt_u32 s{S_CNT}, 50000")
e("s_cbranch_scc1 L_poll2")
e.lab("L_poll2_done")
e("s_mov_b64 exec, -1")
stamp()
for k in range(1, 8):
    e(f"buffer_load_dwordx4 {vr(192+4*k,4)}, v{V_L16}, {R(R_WS)}, s{3+k} offen {args.plf}")
e(f"s_mov_b32 s{S_T4}, 0xffff0000")
for k in range(1, 8):
    e(f"s_waitcnt vmcnt({7-k})")
    for d in range(4):
        e(f"v_lshlrev_b32 v{148+2*d}, 16, v{192+4*k+d}")
        e(f"v_and_b32 v{148+2*d+1}, s{S_T4}, v{192+4*k+d}")
    for d in range(4):
        e(f"v_pk_add_f32 {vr(OWN+2*d,2)}, {vr(OWN+2*d,2)}, {vr(148+2*d,2)}")
res = [OWN, OWN+4]
for z in range(2):
    b = res[z]
    e(f"v_cvt_pk_bf16_f32 v{32+2*z}, v{b}, v{b+1}")
    e(f"v_cvt_pk_bf16_f32 v{33+2*z}, v{b+2}, v{b+3}")
    e(f"s_lshl_b32 s{S_T0}, s{S_J}, 1")
    e(f"s_add_u32 s{S_T0}, s{S_T0}, {z}")
    if z == 1:
        e(f"s_cmp_eq_u32 s{S_T0}, 15")
        e("s_cbranch_scc1 L_fin")
    e(f"s_mul_i32 s{S_T2}, s{S_T0}, 13")
    e(f"s_lshr_b32 s{S_T2}, s{S_T2}, 6")
    e(f"s_mul_i32 s{S_T1}, s{S_T2}, 5")
    e(f"s_sub_u32 s{S_T1}, s{S_T0}, s{S_T1}")
    e(f"s_lshl_b32 s{S_T1}, s{S_T1}, 5")
    e(f"s_mul_i32 s{S_T2}, s{S_T2}, {16*1280}")
    e(f"s_add_u32 s{S_SO}, s{S_OUTB}, s{S_T1}")
    e(f"s_add_u32 s{S_SO}, s{S_SO}, s{S_T2}")
    e(f"buffer_store_dwordx2 {vr(32+2*z,2)}, v{V_OUT}, {R(R_OUT)}, s{S_SO} offen {args.outf}")
e.lab("L_fin")
e(f"s_or_b32 s{S_T0}, s{S_J}, s{S_I}")
e(f"s_or_b32 s{S_T0}, s{S_T0}, s{S_JH}")
e(f"s_cmp_lg_u32 s{S_T0}, 0")
e("s_cbranch_scc1 L_noep")
e("s_barrier")
e(f"s_cmp_lg_u32 s{S_W}, 0")
e("s_cbranch_scc1 L_noep")
e(f"s_lshl_b32 s{S_T2}, s{S_BP}, 7")
e(f"s_add_u32 s{S_T2}, s{S_T2}, {WS_E}")
e("s_mov_b64 exec, 1")
e(f"buffer_store_dword v{V_NON}, v{V_FO}, {R(R_WS)}, s{S_T2} offen sc1")
e("s_mov_b64 exec, -1")
e.lab("L_noep")
if STAMPS:
    e("s_waitcnt vmcnt(0)")
    stamp()
stamp_store()
e.lab("L_end")
e("s_endpgm")
e.lab("L_sl1")
e("s_nop 7")
slast(1)
e("s_branch L_sld")
e.lab("L_pp1")
e(f"buffer_store_dwordx2 {vr(sreg(1,1,0),2)}, v{V_L12}, {R(R_WS)}, s{S_PXO} offen offset:3072 sc1")
e("s_branch L_ppd")
for p in range(8):
    e.lab(f"L_own{p}")
    e("s_nop 7")
    for z in range(2):
        a = OUTR[min(2*p+z, 14)]
        for r in range(4): e(f"v_mov_b32 v{OWN+4*z+r}, v{a+r}")
    e(f"s_branch L_ownr{p}")
for n in slow:
    e.lab(f"L_slow{n}")
    e(fread(n))
    budget(f"L_cont{n}")
    e("s_waitcnt lgkmcnt(0)")
    fcmp()
    e(f"s_cbranch_vccnz L_slow{n}")
    e(f"s_branch L_cont{n}")
e.raw(".p2align 8")
e.raw(".fill 4096, 4, 0xBF810000")
hdr = ["; generated by dev/gen17.py (fused single kernel, 4 compute + 4 loader waves)",
       "; @launch grid=(256,1,1) block=(512,1,1) lds=163840",
       '.amdgcn_target "amdgcn-amd-amdhsa--gfx950"', ".text"]
desc = f""".amdhsa_kernel {NAME}
  .amdhsa_next_free_vgpr 256
  .amdhsa_next_free_sgpr 102
  .amdhsa_accum_offset 256
  .amdhsa_group_segment_fixed_size 0
  .amdhsa_kernarg_size 64
  .amdhsa_user_sgpr_count 2
  .amdhsa_user_sgpr_kernarg_segment_ptr 1
  .amdhsa_system_sgpr_workgroup_id_x 1
.end_amdhsa_kernel"""
body = hazard_pad(e.L, verbose=True)
sys.stdout.write("\n".join(hdr + body) + '\n.section .rodata,"a"\n.p2align 6\n' + desc + "\n")
```

```python
import sys, math, argparse, struct
from asmlib import *
ap = argparse.ArgumentParser()
ap.add_argument("--stamps", action="store_true")
ap.add_argument("--clk", action="store_true")
ap.add_argument("--kflag", default="nt")
ap.add_argument("--vflag", default="")
ap.add_argument("--sleep", type=int, default=1)
ap.add_argument("--prio", type=int, default=2)
ap.add_argument("--st", default="2,5")
ap.add_argument("--bars", default="1:4,5;3:6;4:7;5:8;6:9")
ap.add_argument("--bars2", default="1:4,5;3:6,7;5:8,9;6:10;7:11;8:")
ap.add_argument("--wppos", type=int, default=-1)
ap.add_argument("--early", type=int, default=1)
ap.add_argument("--v2pf", type=int, default=-1)
ap.add_argument("--apoll", type=int, default=1)
ap.add_argument("--smstart", type=int, default=0)
ap.add_argument("--vord", type=int, default=2)
ap.add_argument("--st0", action="store_true")
ap.add_argument("--wp2", type=int, default=0)
ap.add_argument("--kfast", type=int, default=1)
ap.add_argument("--tlbw", type=int, default=-1)
ap.add_argument("--r2idle", type=int, default=0)
ap.add_argument("--lstag", default="12,13,14,15")
ap.add_argument("--lnt", type=int, default=1)
ap.add_argument("--kstag", default="8,9,6,7")
ap.add_argument("--t0bar", type=int, default=7)
ap.add_argument("--gw", type=int, default=4)
ap.add_argument("--gx", type=int, default=4)
ap.add_argument("--noflag", default="")
ap.add_argument("--v8pf", type=int, default=-1)
ap.add_argument("--psf", default="sc1")
ap.add_argument("--plf", default="sc1")
ap.add_argument("--outf", default="")
ap.add_argument("--wsp", type=lambda x: int(x, 0), default=4 << 20)
ap.add_argument("--wstag", default="3,4,8,9")
ap.add_argument("--vstag", default="")
ap.add_argument("--rot2", type=int, default=1)
ap.add_argument("--vnt", type=int, default=0)
ap.add_argument("--wont", type=int, default=0)
ap.add_argument("--wnt", type=int, default=0)
ap.add_argument("--xnt", type=int, default=0)
ap.add_argument("--vper", type=int, default=3)
ap.add_argument("--ackdelay", type=int, default=3)
ap.add_argument("--f2atom", type=int, default=2)
ap.add_argument("--f2sleep", type=int, default=2)
ap.add_argument("--ackstep", type=int, default=1)
ap.add_argument("--pollstep", type=int, default=9)
ap.add_argument("--smpre", type=int, default=26)
ap.add_argument("--p2st", action="store_true")
ap.add_argument("--vppos", type=int, default=-1)
ap.add_argument("--vfirst", type=int, default=1)
ap.add_argument("--pburst", type=int, default=1)
ap.add_argument("--t1early", type=int, default=1)
ap.add_argument("--pl2", type=int, default=12)
ap.add_argument("--pl3", type=int, default=18)
args = ap.parse_args()
STAMPS = args.stamps
def parse_sched(t):
    out = []
    for it in t.split(";"):
        m, l = it.split(":")
        out.append((int(m), [int(x) for x in l.split(",") if x]))
    return out
BARS = parse_sched(args.bars)
for m, l in BARS:
    for n in l: assert m >= (n - 4 if n < 6 else n - 3)
assert sorted(sum([l for m, l in BARS], [])) == list(range(4, 10))
KST = [int(x) for x in args.kstag.split(",")]
for n in KST: assert [m for m, l in BARS if n in l][0] >= 2
CB = [m for m, l in BARS] + ([7, 8] if args.t0bar == 7 else [8])
BARS2 = parse_sched(args.bars2)
for m, l in BARS2:
    for n in l: assert m >= n - 4
assert sorted(sum([l for m, l in BARS2], [])) == list(range(4, 12))
assert BARS2[-1][0] >= 8
NAME = "standalone__mha_block_cached__near_ridge_kernel"
WS_PX = 0
WS_F1 = 3 << 20
WS_E = WS_F1 + 0x20000
WS_F2 = WS_F1 + 0x40000
WS_P = args.wsp
NSTEP = 0x9E3779B1
WS_ST = 0x8000000
NST = 16
e = A()

S_X, S_K, S_V, S_WQ, S_WO, S_OUT, S_DBG, S_WS = 4, 6, 8, 10, 12, 14, 16, 18
R_X, R_WQ, R_K, R_V, R_WO, R_OUT, R_WS = 20, 24, 28, 32, 36, 40, 44
S_J, S_I, S_BP, S_H, S_W = 48, 49, 50, 51, 52
S_T0, S_T1, S_T2, S_T3, S_T4 = 53, 54, 55, 56, 57
S_IDX, S_NONCE = 3, 59
S_A = list(range(60, 70))
S_ST = 70
S_BUD = 17
BUD = 2000000
def srd(r, p, nbytes):
    e(f"s_mov_b32 s{r}, s{p}"); e(f"s_mov_b32 s{r+1}, s{p+1}"); e(f"s_mov_b32 s{r+2}, {nbytes}"); e(f"s_mov_b32 s{r+3}, 0x00020000")
def R(r): return f"s[{r}:{r+3}]"
stamp_n = [0]
def stamp(wait=True):
    if not STAMPS: return
    i = stamp_n[0]
    if i >= NST: return
    stamp_n[0] += 1
    e(f"s_mem{'time' if args.clk else 'realtime'} s[{S_ST+2*i}:{S_ST+2*i+1}]")
    if wait: e("s_waitcnt lgkmcnt(0)")
def stamp_store():
    if not STAMPS: return
    n = stamp_n[0]
    e(f"s_lshl_b32 s{S_T0}, s2, 3")
    e(f"s_add_u32 s{S_T0}, s{S_T0}, s{S_W}")
    e(f"s_mul_i32 s{S_T0}, s{S_T0}, {NST*8}")
    e(f"s_add_u32 s{S_T0}, s{S_T0}, {WS_ST}")
    e("v_mov_b32 v4, 0")
    for i in range(NST):
        k = min(i, n-1)
        e(f"v_mov_b32 v6, s{S_ST+2*k}")
        e(f"v_mov_b32 v7, s{S_ST+2*k+1}")
        e(f"buffer_store_dwordx2 v[6:7], v4, {R(R_WS)}, s{S_T0} offen offset:{8*i}")
        e("s_nop 1")
    sys.stderr.write(f"stamps: {n}\n")
def budget(done):
    e(f"s_add_u32 s{S_BUD}, s{S_BUD}, 1")
    e(f"s_cmp_gt_u32 s{S_BUD}, {BUD}")
    e(f"s_cbranch_scc1 {done}")
XB = 12288
PITCH = 40960
SY_FLG = 36864
F_K, F_T, F_P = 10, 16, 30
def bufof(s): return [1, 2, 3, 0, 1, 2, 0, 1, 2, 0][s]
def buf2(t): return [1, 0, 3, 2][t % 4]
SXB = 2*PITCH

e.raw(f".globl {NAME}\n.p2align 8\n.type {NAME},@function\n{NAME}:")
stamp(wait=False)
e("s_load_dwordx16 s[4:19], s[0:1], 0")
e("s_cmp_ge_u32 s2, 256")
e("s_cbranch_scc1 L_end")
e("v_lshrrev_b32 v2, 6, v0")
e("v_and_b32 v1, 63, v0")
e(f"v_readfirstlane_b32 s{S_W}, v2")
e(f"s_and_b32 s{S_J}, s2, 7")
e(f"s_lshr_b32 s{S_IDX}, s2, 3")
e(f"s_and_b32 s{S_I}, s{S_IDX}, 3")
e(f"s_lshr_b32 s{S_BP}, s{S_IDX}, 2")
e(f"s_lshl_b32 s{S_H}, s{S_J}, 2")
e(f"s_add_u32 s{S_H}, s{S_H}, s{S_I}")
e(f"s_cmp_lt_u32 s{S_W}, 4")
e("s_cbranch_scc1 L_compute")

S_L, S_KX, S_KW, S_XK, S_SO, S_LX, S_LW, S_XB, S_WB, S_KVB = S_A
V_OW, V_OXA, V_OXB, V_OKA, V_OKB, V_OOB, V_PF, LDUMMY = 10, 11, 12, 14, 15, 16, 17, 18
V_OWO = 20
S_KB2, S_VB2, S_FLB, S_KD, S_LO, S_WOB = 4, 5, 6, 7, 8, 9
e(f"s_sub_u32 s{S_L}, s{S_W}, 4")
e("v_lshrrev_b32 v2, 3, v1")
e("v_and_b32 v3, 7, v1")
e("v_lshrrev_b32 v4, 1, v2")
e("v_lshlrev_b32 v5, 1, v4")
e("v_xor_b32 v5, v5, v3")
e("v_lshlrev_b32 v5, 4, v5")
e("v_lshrrev_b32 v6, 2, v2")
e("v_lshlrev_b32 v6, 3, v6")
e("v_and_b32 v7, 3, v2")
e("v_add_u32 v6, v6, v7")
e("v_mul_u32_u24 v6, 12288, v6")
e(f"v_add_u32 v{V_OW}, v6, v5")
e("v_mul_u32_u24 v6, 1280, v2")
e("v_xor_b32 v7, v3, v4")
e("v_lshlrev_b32 v8, 4, v7")
e(f"s_and_b32 s{S_T1}, s{S_L}, 1")
e(f"s_lshl_b32 s{S_T2}, s{S_T1}, 6")
e(f"v_xor_b32 v8, s{S_T2}, v8")
e(f"v_add_u32 v{V_OXA}, v6, v8")
e("v_xor_b32 v9, 64, v8")
e(f"v_add_u32 v{V_OXB}, v6, v9")
e(f"s_mul_i32 s{S_XB}, s{S_BP}, {96*1280}")
e(f"s_mul_i32 s{S_T2}, s{S_L}, {24*1280}")
e(f"s_add_u32 s{S_XB}, s{S_XB}, s{S_T2}")
e(f"s_mul_i32 s{S_WB}, s{S_H}, 384")
e(f"s_lshr_b32 s{S_T0}, s{S_L}, 1")
e(f"s_mul_i32 s{S_T2}, s{S_T0}, {16*12288}")
e(f"s_add_u32 s{S_WB}, s{S_WB}, s{S_T2}")
e(f"s_mul_i32 s{S_T2}, s{S_T1}, {4*12288}")
e(f"s_add_u32 s{S_WB}, s{S_WB}, s{S_T2}")
e(f"s_and_b32 s{S_KX}, s{S_BP}, {args.gw-1}")
e(f"s_mul_i32 s{S_KX}, s{S_KX}, {80//args.gw}")
e(f"s_lshr_b32 s{S_KX}, s{S_KX}, 3")
e(f"s_and_b32 s{S_T2}, s{S_I}, {args.gx-1}")
e(f"s_mul_i32 s{S_T2}, s{S_T2}, {80//args.gx}")
e(f"s_lshr_b32 s{S_T2}, s{S_T2}, 3")
e(f"s_add_u32 s{S_KX}, s{S_KX}, s{S_T2}")
e(f"s_sub_u32 s{S_T2}, s{S_KX}, 10")
e(f"s_cmp_ge_u32 s{S_KX}, 10")
e(f"s_cselect_b32 s{S_KX}, s{S_T2}, s{S_KX}")
e(f"s_lshl_b32 s{S_KX}, s{S_KX}, 7")
e(f"s_mul_i32 s{S_LX}, s{S_L}, 3072")
e(f"s_lshl_b32 s{S_LW}, s{S_L}, 10")
V_WPR, V_XPR = 13, 19
if args.wnt:
    e("v_lshrrev_b32 v24, 2, v1")
    e("v_and_b32 v25, 3, v24")
    e("v_lshrrev_b32 v26, 2, v24")
    e("v_and_b32 v27, 1, v26")
    e("v_lshl_add_u32 v25, v27, 3, v25")
    e("v_lshrrev_b32 v26, 1, v26")
    e("v_lshl_add_u32 v25, v26, 5, v25")
    e("v_mul_u32_u24 v25, 12288, v25")
    e("v_and_b32 v26, 3, v1")
    e("v_min_u32 v26, 2, v26")
    e(f"v_lshl_add_u32 v{V_WPR}, v26, 7, v25")
if args.xnt:
    e("v_min_u32 v24, 23, v1")
    e(f"v_mul_u32_u24 v{V_XPR}, 1280, v24")
if args.st0: stamp(wait=False)
e("s_waitcnt lgkmcnt(0)")
if args.st0: stamp()
srd(R_X, S_X, 16*48*640*2)
srd(R_WQ, S_WQ, 640*6144*2)
def issue(s):
    buf = bufof(s)
    e(f"s_mul_i32 s{S_KW}, s{S_KX}, 6144"); e(f"s_add_u32 s{S_KW}, s{S_KW}, s{S_WB}"); e(f"s_add_u32 s{S_XK}, s{S_KX}, s{S_XB}")
    ws = [("w", ks, cg) for ks in range(2) for cg in range(3)]
    xs = [("x", a) for a in range(3)]
    for o in [xs[0], ws[0], ws[1], xs[1], ws[2], xs[2], ws[3], ws[4], ws[5]]:
        if o[0] == "w":
            _, ks, cg = o
            e(f"s_add_u32 m0, s{S_LW}, {buf*PITCH + XB + ks*12288 + cg*4096}")
            e(f"s_add_u32 s{S_SO}, s{S_KW}, {32*ks*12288 + cg*128}")
            e(f"buffer_load_dwordx4 v{V_OW}, {R(R_WQ)}, s{S_SO} offen {'nt' if s < args.wnt else ''} lds")
        else:
            a = o[1]
            e(f"s_add_u32 m0, s{S_LX}, {buf*PITCH + a*1024}")
            e(f"s_add_u32 s{S_SO}, s{S_XK}, {8*a*1280}")
            e(f"buffer_load_dwordx4 v{V_OXB if a == 1 else V_OXA}, {R(R_X)}, s{S_SO} offen {'nt' if s < args.xnt else ''} lds")
    if s < args.wnt: e(f"buffer_load_dword v{LDUMMY}, v{V_WPR}, {R(R_WQ)}, s{S_KW} offen sc1")
    if s < args.xnt: e(f"buffer_load_dword v{LDUMMY}, v{V_XPR}, {R(R_X)}, s{S_XK} offen sc1")
    e(f"s_add_u32 s{S_KX}, s{S_KX}, 128"); e(f"s_cmp_eq_u32 s{S_KX}, 1280"); e(f"s_cselect_b32 s{S_KX}, 0, s{S_KX}")
NOFLAG = [int(x) for x in args.noflag.split(",") if x]
def flag(n):
    if n in NOFLAG: return
    e(f"s_add_u32 m0, s{S_FLB}, {16*n}")
    e("s_mov_b64 exec, 1")
    e(f"buffer_load_dword v{V_OOB}, {R(R_X)}, 0 offen lds")
    e("s_mov_b64 exec, -1")
issue(0)
if args.st0: stamp()
srd(R_K, S_K, 16*32*48*192*2)
srd(R_V, S_V, 16*32*48*192*2)
e(f"v_mov_b32 v{V_OOB}, 0x7ffffff0")
e(f"s_lshl_b32 s{S_FLB}, s{S_L}, 2")
e(f"s_add_u32 s{S_FLB}, s{S_FLB}, {SY_FLG}")
e("s_barrier")
if args.st0: stamp()
flag(0)
issue(1); flag(1)
if args.st0: stamp()
e(f"s_lshl_b32 s{S_T2}, s{S_BP}, 7")
e(f"s_add_u32 s{S_T2}, s{S_T2}, {WS_E}")
e(f"s_load_dword s{S_NONCE}, s[{S_WS}:{S_WS+1}], s{S_T2}")
srd(R_WO, S_WO, 6144*640*2)
srd(R_WS, S_WS, 268435456)
srd(R_OUT, S_OUT, 16*48*640*2)
S_H0, S_RK, S_LF1, S_LPX = 10, 11, 12, 13
if args.rot2:
    if args.vord:
        e(f"s_and_b32 s{S_H0}, s{S_I}, 1")
        e(f"s_and_b32 s{S_RK}, s{S_BP}, 1")
        e(f"s_lshl_b32 s{S_RK}, s{S_RK}, 1")
        if args.vord == 1: e(f"s_or_b32 s{S_H0}, s{S_H0}, s{S_RK}")
        e(f"s_lshr_b32 s{S_RK}, s{S_I}, 1")
    else:
        e(f"s_add_u32 s{S_H0}, s{S_I}, s{S_BP}")
        e(f"s_lshr_b32 s{S_RK}, s{S_BP}, 2")
else:
    e(f"s_mov_b32 s{S_H0}, s{S_I}")
    e(f"s_mov_b32 s{S_RK}, 0")
e("v_mul_u32_u24 v6, 384, v2")
e(f"v_add_u32 v{V_OKA}, v6, v8")
e(f"v_add_u32 v{V_OKB}, v6, v9")
e(f"s_lshl_b32 s{S_T2}, s{S_BP}, 1")
e(f"s_add_u32 s{S_T2}, s{S_T2}, s{S_T0}")
e(f"s_lshl_b32 s{S_T2}, s{S_T2}, 3")
e(f"s_add_u32 s{S_T2}, s{S_T2}, s{S_J}")
e(f"s_mul_i32 s{S_VB2}, s{S_T2}, {4*18432}")
e(f"s_lshl_b32 s{S_LF1}, s{S_T2}, 7")
e(f"s_add_u32 s{S_LF1}, s{S_LF1}, {WS_F1}")
e(f"s_mul_i32 s{S_LPX}, s{S_T2}, {4*5120}")
e(f"s_mul_i32 s{S_T3}, s{S_T1}, {24*384}")
e(f"s_add_u32 s{S_VB2}, s{S_VB2}, s{S_T3}")
e(f"s_mul_i32 s{S_T3}, s{S_I}, 18432")
e(f"s_add_u32 s{S_KB2}, s{S_VB2}, s{S_T3}")
e(f"s_mul_i32 s{S_KD}, s{S_T0}, 18432")
e(f"s_mul_i32 s{S_T3}, s{S_T1}, 3072")
e(f"s_add_u32 s{S_KD}, s{S_KD}, s{S_T3}")
e(f"s_mul_i32 s{S_WOB}, s{S_J}, {768*1280}")
e(f"s_mul_i32 s{S_T2}, s{S_L}, {16*1280}")
e(f"s_add_u32 s{S_WOB}, s{S_WOB}, s{S_T2}")
e(f"s_mul_i32 s{S_T2}, s{S_I}, 320")
e(f"s_add_u32 s{S_WOB}, s{S_WOB}, s{S_T2}")
e(f"s_mul_i32 s{S_LO}, s{S_L}, 5120")
e(f"s_mov_b32 s{S_T0}, 0x0ccccccd")
for n in range(5):
    e(f"v_add_u32 v2, {64*n}, v1")
    e(f"v_mul_hi_u32 v3, v2, s{S_T0}")
    e("v_mul_u32_u24 v4, 20, v3")
    e("v_sub_u32 v4, v2, v4")
    e("v_lshrrev_b32 v5, 2, v3")
    e("v_and_b32 v5, 2, v5")
    e("v_xor_b32 v4, v4, v5")
    e("v_mul_u32_u24 v3, 1280, v3")
    e(f"v_lshl_add_u32 v{V_OWO+n}, v4, 4, v3")
e("v_min_u32 v2, 59, v1")
e(f"v_lshlrev_b32 v{V_PF}, 7, v2")
V_T1, V_T2 = 26, 27
e(f"v_lshlrev_b32 v{V_T1}, 7, v1")
e("v_and_b32 v2, 7, v1")
e(f"v_lshlrev_b32 v{V_T2}, 7, v2")
def vpf():
    e(f"s_and_b32 s{S_SO}, s{S_H0}, 3")
    e(f"s_mul_i32 s{S_SO}, s{S_SO}, 18432")
    e(f"s_add_u32 s{S_SO}, s{S_SO}, s{S_VB2}")
    e(f"s_add_u32 s{S_T2}, s{S_SO}, 8192")
    e(f"buffer_load_dword v{LDUMMY}, v{V_T1}, {R(R_V)}, s{S_SO} offen")
    e(f"buffer_load_dword v{LDUMMY}, v{V_T2}, {R(R_V)}, s{S_T2} offen")
WST = [int(x) for x in args.wstag.split(",")] if args.wstag else []
VST = [int(x) for x in args.vstag.split(",")] if args.vstag else []
S_WP, S_VP = 14, 15
def stagsel(dst, lst):
    packed = sum(v << (4*k) for k, v in enumerate(lst))
    e(f"s_and_b32 s{S_T2}, s{S_IDX}, {len(lst)-1}")
    e(f"s_lshl_b32 s{S_T2}, s{S_T2}, 2")
    e(f"s_lshr_b32 s{dst}, {packed:#x}, s{S_T2}")
    e(f"s_and_b32 s{dst}, s{dst}, 15")
if WST: stagsel(S_WP, WST)
assert not VST
stagsel(S_VP, KST)
def kdma():
    for a in range(3):
        for cg in range(3):
            e(f"s_add_u32 m0, s{S_KD}, {3*PITCH + cg*6144 + a*1024}")
            e(f"s_add_u32 s{S_SO}, s{S_KB2}, {8*a*384 + cg*128}")
            e(f"buffer_load_dwordx4 v{V_OKB if a == 1 else V_OKA}, {R(R_K)}, s{S_SO} offen {args.kflag} lds")
    flag(F_K)
V_PFH, V_PFV = 29, 30
LST = [int(x) for x in args.lstag.split(",")] if args.lstag else []
S_LP = 16
if args.vord == 2:
    e("v_min_u32 v2, 29, v1")
    e(f"v_lshlrev_b32 v{V_PF}, 7, v2")
    e("v_min_u32 v2, 35, v1")
    e(f"v_lshlrev_b32 v{V_PFV}, 7, v2")
    if LST: stagsel(S_LP, [x - 8 for x in LST])
def latepf():
    e(f"s_lshl_b32 s{S_T2}, s{S_IDX}, 2"); e(f"s_add_u32 s{S_T2}, s{S_T2}, s{S_L}")
    e(f"s_mul_i32 s{S_T2}, s{S_T2}, 3840"); e(f"s_mul_i32 s{S_SO}, s{S_J}, {768*1280}"); e(f"s_add_u32 s{S_T2}, s{S_T2}, s{S_SO}")
    e(f"s_add_u32 s{S_T2}, s{S_T2}, {384*1280}")
    e(f"s_and_b32 s{S_SO}, s{S_I}, 1"); e(f"s_add_u32 s{S_SO}, s{S_SO}, 2"); e(f"s_mul_i32 s{S_SO}, s{S_SO}, 18432")
    e(f"s_add_u32 s{S_SO}, s{S_SO}, s{S_VB2}")
    e(f"s_mul_i32 s17, s{S_RK}, 4608"); e(f"s_add_u32 s{S_SO}, s{S_SO}, s17")
    for fl in (["nt", "sc1"] if args.lnt else [""]):
        e(f"buffer_load_dword v{LDUMMY}, v{V_PF}, {R(R_WO)}, s{S_T2} offen {fl}")
        e(f"buffer_load_dword v{LDUMMY}, v{V_PFV}, {R(R_V)}, s{S_SO} offen {fl}")
def wpf():
    e(f"s_lshl_b32 s{S_T2}, s{S_IDX}, 2"); e(f"s_add_u32 s{S_T2}, s{S_T2}, s{S_L}")
    e(f"s_mul_i32 s{S_T2}, s{S_T2}, {3840 if args.vord == 2 else 7680}"); e(f"s_mul_i32 s{S_T3}, s{S_J}, {768*1280}"); e(f"s_add_u32 s{S_T2}, s{S_T2}, s{S_T3}")
    if args.wp2:
        e(f"buffer_load_dword v{LDUMMY}, v{V_PF}, {R(R_WO)}, s{S_T2} offen nt")
        e(f"buffer_load_dword v{LDUMMY}, v{V_PF}, {R(R_WO)}, s{S_T2} offen sc1")
    else:
        e(f"buffer_load_dword v{LDUMMY}, v{V_PF}, {R(R_WO)}, s{S_T2} offen")
V_T3 = 28
e("v_min_u32 v2, 23, v1")
e(f"v_mul_u32_u24 v{V_T3}, 384, v2")
def v2pf():
    e(f"s_and_b32 s{S_SO}, s{S_H0}, 3")
    e(f"s_mul_i32 s{S_SO}, s{S_SO}, 18432")
    e(f"s_add_u32 s{S_SO}, s{S_SO}, s{S_VB2}")
    e(f"s_cmp_eq_u32 s{S_RK}, 0")
    e(f"s_cselect_b32 s{S_T2}, 256, 0")
    e(f"s_add_u32 s{S_SO}, s{S_SO}, s{S_T2}")
    if args.vnt:
        e(f"buffer_load_dword v{LDUMMY}, v{V_T3}, {R(R_V)}, s{S_SO} offen nt")
        e(f"buffer_load_dword v{LDUMMY}, v{V_T3}, {R(R_V)}, s{S_SO} offen sc1")
    else:
        e(f"buffer_load_dword v{LDUMMY}, v{V_T3}, {R(R_V)}, s{S_SO} offen")
def tlbwarm():
    e(f"s_lshl_b32 s{S_T2}, s{S_IDX}, 18")
    e(f"s_add_u32 s{S_T2}, s{S_T2}, {WS_P + 7*8192 + 7*1024}")
    e(f"s_mul_i32 s{S_T3}, s{S_BP}, {96*1280}")
    e("v_mov_b32 v2, 0")
    e("s_mov_b64 exec, 1")
    e(f"buffer_load_dword v{LDUMMY}, v2, {R(R_WS)}, s{S_T2} offen sc1")
    e(f"buffer_load_dword v{LDUMMY}, v2, {R(R_OUT)}, s{S_T3} offen sc1")
    e("s_mov_b64 exec, -1")
def extra(n):
    if n == args.tlbw: tlbwarm()
    if n in LST:
        e(f"s_cmp_lg_u32 s{S_LP}, {n-8}"); e(f"s_cbranch_scc1 L_nl{n}"); latepf(); e.lab(f"L_nl{n}")
    if n == args.v2pf: v2pf()
    if n in WST:
        e(f"s_cmp_lg_u32 s{S_WP}, {n}"); e(f"s_cbranch_scc1 L_nw{n}"); wpf(); e.lab(f"L_nw{n}")
    if n in KST:
        e(f"s_cmp_lg_u32 s{S_VP}, {n}"); e(f"s_cbranch_scc1 L_nv{n}"); kdma(); e.lab(f"L_nv{n}")
    if n == args.vppos and args.vfirst: vpf()
    extra2(n)
    if n == args.vppos and not args.vfirst: vpf()
def extra2(n):
    if n == args.wppos:
        e(f"s_lshl_b32 s{S_T2}, s{S_IDX}, 2"); e(f"s_add_u32 s{S_T2}, s{S_T2}, s{S_L}")
        e(f"s_mul_i32 s{S_T2}, s{S_T2}, 7680"); e(f"s_mul_i32 s{S_T3}, s{S_J}, {768*1280}"); e(f"s_add_u32 s{S_T2}, s{S_T2}, s{S_T3}")
        e(f"buffer_load_dword v{LDUMMY}, v{V_PF}, {R(R_WO)}, s{S_T2} offen")
issue(2); flag(2); extra(2)
issue(3); flag(3); extra(3)
for bi, (m, l) in enumerate(BARS):
    e("s_barrier")
    if bi in (0, len(BARS)-1): stamp()
    for n in l: issue(n); flag(n); extra(n)
def issue2(t):
    hd, kk = divmod(t, 3); buf = buf2(t)
    if kk == 0:
        e(f"s_{'xor_b32' if args.vord else 'add_u32'} s{S_T0}, s{S_H0}, {hd}")
        e(f"s_and_b32 s{S_T0}, s{S_T0}, 3")
        e(f"s_mul_i32 s{S_KW}, s{S_T0}, {192*1280}")
        e(f"s_add_u32 s{S_KW}, s{S_KW}, s{S_WOB}")
        e(f"s_mul_i32 s{S_XK}, s{S_T0}, 18432")
        e(f"s_add_u32 s{S_XK}, s{S_XK}, s{S_VB2}")
    e(f"s_add_u32 s{S_T3}, s{S_RK}, {kk}")
    e(f"s_cmp_eq_u32 s{S_T3}, 3")
    e(f"s_cselect_b32 s{S_T3}, 0, s{S_T3}")
    e(f"s_mul_i32 s{S_KX}, s{S_T3}, {64*1280}")
    e(f"s_add_u32 s{S_KX}, s{S_KX}, s{S_KW}")
    e(f"s_lshl_b32 s{S_T3}, s{S_T3}, 7")
    e(f"s_add_u32 s{S_T3}, s{S_T3}, s{S_XK}")
    for o in ["v0", "w0", "w1", "v1", "w2", "w3", "v2", "w4"]:
        n = int(o[1])
        if o[0] == "w":
            e(f"s_add_u32 m0, s{S_LO}, {buf*PITCH + XB + n*1024}")
            e(f"buffer_load_dwordx4 v{V_OWO+n}, {R(R_WO)}, s{S_KX} offen {'nt' if t < args.wont else ''} lds")
        else:
            e(f"s_add_u32 m0, s{S_LX}, {buf*PITCH + n*1024}")
            e(f"s_add_u32 s{S_SO}, s{S_T3}, {8*n*384}")
            e(f"buffer_load_dwordx4 v{V_OKB if n == 1 else V_OKA}, {R(R_V)}, s{S_SO} offen {'nt' if t < args.vnt else ''} lds")
    flag(F_T + t)
    if t < args.vnt: e(f"buffer_load_dword v{LDUMMY}, v{V_T3}, {R(R_V)}, s{S_T3} offen sc1")
    extra(11 + t)
e("s_waitcnt lgkmcnt(0)")
e(f"s_add_u32 s{S_NONCE}, s{S_NONCE}, {NSTEP:#x}")
e("s_barrier")
issue2(0)
stamp()
if args.t0bar == 7: e("s_barrier")
if args.t1early:
    e("s_barrier")
    issue2(1)
e("s_barrier")
e("s_barrier")
stamp()
for t in range(1 + args.t1early, 4): issue2(t)
stamp()
e("v_and_b32 v2, 7, v1")
e("v_lshlrev_b32 v2, 2, v2")
e("v_lshlrev_b32 v3, 4, v1")
for bi, (m, l) in enumerate(BARS2):
    e("s_barrier")
    stamp()
    if bi == len(BARS2) - 2 and args.apoll:
        e(f"buffer_load_dword v4, v2, {R(R_WS)}, s{S_LF1} offen sc1")
        napoll = 9*len(l)
    for t in l: issue2(t)
    if bi == len(BARS2) - 1:
        e(f"s_mov_b32 s{S_T2}, 0")
        if args.apoll:
            e(f"s_waitcnt vmcnt({napoll + 9*len(l)})")
            e(f"v_cmp_ne_u32 vcc, s{S_NONCE}, v4")
            e("s_cbranch_vccz L_lpolld")
        e.lab("L_lpoll")
        e(f"buffer_load_dword v4, v2, {R(R_WS)}, s{S_LF1} offen sc1")
        e(f"s_add_u32 s{S_T2}, s{S_T2}, 1")
        e(f"s_cmp_ge_u32 s{S_T2}, 100000")
        e("s_cbranch_scc1 L_lpolld")
        e("s_waitcnt vmcnt(0)")
        e(f"v_cmp_ne_u32 vcc, s{S_NONCE}, v4")
        e("s_cbranch_vccz L_lpolld")
        e(f"s_sleep {args.sleep}")
        e("s_branch L_lpoll")
        e.lab("L_lpolld")
PBUF = buf2(8)*PITCH
e(f"s_mul_i32 s{S_T3}, s{S_L}, 9216")
for pp in range(2):
    e(f"s_lshl_b32 s{S_T0}, s{S_T1}, 1")
    e(f"s_add_u32 s{S_T0}, s{S_T0}, {pp}")
    e(f"s_{'xor_b32' if args.vord else 'add_u32'} s{S_T0}, s{S_T0}, s{S_H0}")
    e(f"s_and_b32 s{S_T0}, s{S_T0}, 3")
    e(f"s_mul_i32 s{S_T0}, s{S_T0}, 5120")
    e(f"s_add_u32 s{S_T0}, s{S_T0}, s{S_LPX}")
    for n in range(5):
        if n == 4: e("s_mov_b32 exec_hi, 0")
        e(f"s_add_u32 m0, s{S_T3}, {PBUF + pp*4608 + n*1024}")
        e(f"s_add_u32 s{S_SO}, s{S_T0}, {WS_PX + n*1024}")
        e(f"buffer_load_dwordx4 v3, {R(R_WS)}, s{S_SO} offen sc1 lds")
        if n == 4: e("s_mov_b64 exec, -1")
flag(F_P)
e("s_waitcnt vmcnt(0)")
stamp()
stamp_store()
e("s_endpgm")

stamp_n[0] = 1 if STAMPS else 0
e.lab("L_compute")
S_B, S_JH, S_PXB, S_SO, S_CNT, S_F1, S_PXO, S_PB, S_F2, S_OUTB = S_A
V_L16, V_FL8, V_OUT, V_L12, V_SR, V_RDY = 10, 11, 12, 13, 14, 15
V_AW, V_AX = 16, 22
FR = [32, 68]
ACC = 104
V_AK, DUMMY = 182, 191
VA2 = [176, 177, 178, 179]
V_SXW, V_SXR, V_PL = 180, 181, 188
QF = 192
if args.prio: e(f"s_setprio {args.prio}")
e(f"v_lshlrev_b32 v{V_L16}, 4, v1")
e("v_lshlrev_b32 v2, 2, v0")
e(f"v_add_u32 v2, {SY_FLG}, v2")
e("v_mov_b32 v4, 1")
e("ds_write_b32 v2, v4")
e("s_getpc_b64 s[60:61]")
e.lab("L_pc")
e(f"s_sub_u32 s60, s60, L_pc-{NAME}")
e("s_subb_u32 s61, s61, 0")
e(f"s_lshl_b32 s{S_T0}, s{S_IDX}, 10")
e("v_and_b32 v2, 7, v1")
e("v_lshlrev_b32 v2, 7, v2")
e(f"v_add_u32 v2, s{S_T0}, v2")
e(f"global_load_dword v{DUMMY}, v2, s[60:61]")
e("s_waitcnt lgkmcnt(0)")
e("s_barrier")
e(f"s_lshl_b32 s{S_T2}, s{S_BP}, 7")
e(f"s_add_u32 s{S_T2}, s{S_T2}, {WS_E}")
e(f"s_load_dword s{S_NONCE}, s[{S_WS}:{S_WS+1}], s{S_T2}")
srd(R_OUT, S_OUT, 16*48*640*2)
srd(R_WS, S_WS, 268435456)
e(f"s_mov_b32 s{S_BUD}, 0")
e(f"s_lshr_b32 s{S_B}, s{S_W}, 1")
e(f"s_and_b32 s{S_JH}, s{S_W}, 1")
e(f"v_lshlrev_b32 v{V_L12}, 3, v1")
e(f"v_add_u32 v{V_L12}, 512, v{V_L12}")
e("v_lshrrev_b32 v2, 4, v1")
e("v_and_b32 v3, 15, v1")
e("v_mul_u32_u24 v4, 1280, v3")
e(f"v_lshl_add_u32 v{V_OUT}, v2, 3, v4")
e("v_and_b32 v4, 7, v1")
e(f"v_lshlrev_b32 v{V_FL8}, 2, v4")
e("v_and_b32 v4, 3, v1")
e("v_lshlrev_b32 v5, 2, v4")
e(f"v_add_u32 v{V_SR}, {SY_FLG}, v5")
e(f"s_xor_b32 s{S_T3}, s{S_W}, 1")
e(f"s_mul_i32 s{S_T2}, s{S_W}, 9216")
e(f"s_mul_i32 s{S_T1}, s{S_T3}, 9216")
e(f"s_add_u32 s{S_T2}, s{S_T2}, {SXB}")
e(f"s_add_u32 s{S_T1}, s{S_T1}, {SXB}")
e(f"v_add_u32 v{V_SXW}, s{S_T2}, v{V_L16}")
e(f"v_add_u32 v{V_SXR}, s{S_T1}, v{V_L16}")
e("v_lshrrev_b32 v8, 1, v3")
e("v_xor_b32 v4, v8, v2")
e("v_lshlrev_b32 v4, 4, v4")
e("v_lshl_add_u32 v4, v3, 7, v4")
e(f"s_mul_i32 s{S_T2}, s{S_B}, 6144")
e(f"v_add_u32 v{V_AX}, s{S_T2}, v4")
e(f"v_xor_b32 v{V_AX+1}, 64, v{V_AX}")
e(f"v_add_u32 v{V_AX+8}, {2*PITCH}, v{V_AX}")
e(f"v_add_u32 v{V_AX+9}, {2*PITCH}, v{V_AX+1}")
e("v_lshrrev_b32 v9, 1, v2")
e("v_xor_b32 v9, v9, v8")
e("v_and_b32 v4, 1, v2")
e("v_lshlrev_b32 v4, 3, v4")
e("v_lshl_add_u32 v4, v3, 7, v4")
e(f"s_mul_i32 s{S_T2}, s{S_JH}, 12")
e(f"s_mul_i32 s{S_T1}, s{S_B}, 18432")
e(f"s_add_u32 s{S_T1}, s{S_T1}, {3*PITCH}")
for k in range(6):
    e(f"s_add_u32 s{S_T3}, s{S_T2}, {2*k}")
    e(f"s_and_b32 s{S_T0}, s{S_T3}, 7")
    e(f"s_lshr_b32 s{S_T3}, s{S_T3}, 3")
    e(f"s_mul_i32 s{S_T3}, s{S_T3}, 6144")
    e(f"s_add_u32 s{S_T3}, s{S_T3}, s{S_T1}")
    e(f"v_xor_b32 v6, s{S_T0}, v9")
    e(f"v_lshl_add_u32 v6, v6, 4, v4")
    e(f"v_add_u32 v{V_AK+k}, s{S_T3}, v6")
e("v_lshrrev_b32 v4, 2, v1")
e("v_and_b32 v4, 7, v4")
e("v_lshrrev_b32 v5, 5, v1")
e("v_lshlrev_b32 v5, 11, v5")
e("v_lshl_add_u32 v5, v4, 7, v5")
e("v_and_b32 v6, 3, v1")
e("v_lshl_add_u32 v5, v6, 3, v5")
e("v_lshrrev_b32 v4, 1, v4")
e(f"s_mul_i32 s{S_T2}, s{S_JH}, 6")
for t in range(6):
    e(f"s_add_u32 s{S_T3}, s{S_T2}, {t}")
    e(f"s_and_b32 s{S_T0}, s{S_T3}, 3")
    e(f"s_lshr_b32 s{S_T3}, s{S_T3}, 2")
    e(f"s_lshl_b32 s{S_T3}, s{S_T3}, 12")
    e(f"s_add_u32 s{S_T3}, s{S_T3}, {XB}")
    e(f"v_xor_b32 v6, s{S_T0}, v4")
    e(f"v_lshl_add_u32 v6, v6, 5, v5")
    e(f"v_add_u32 v{V_AW+t}, s{S_T3}, v6")
    e(f"v_add_u32 v{V_AW+8+t}, {2*PITCH}, v{V_AW+t}")
e(f"s_lshl_b32 s{S_T2}, s{S_BP}, 1")
e(f"s_add_u32 s{S_T2}, s{S_T2}, s{S_B}")
e(f"s_mul_i32 s{S_OUTB}, s{S_T2}, {48*1280}")
e(f"s_lshl_b32 s{S_T2}, s{S_T2}, 3")
e(f"s_add_u32 s{S_T2}, s{S_T2}, s{S_J}")
e(f"s_mul_i32 s{S_PXB}, s{S_T2}, {4*5120}")
e(f"s_mul_i32 s{S_T3}, s{S_I}, 5120")
e(f"s_add_u32 s{S_PXO}, s{S_PXB}, s{S_T3}")
e(f"s_lshl_b32 s{S_F1}, s{S_T2}, 7")
e(f"s_add_u32 s{S_F1}, s{S_F1}, {WS_F1}")
e(f"s_mul_i32 s{S_T3}, s{S_I}, 320")
e(f"s_add_u32 s{S_OUTB}, s{S_OUTB}, s{S_T3}")
e(f"s_mul_i32 s{S_T3}, s{S_JH}, 160")
e(f"s_add_u32 s{S_OUTB}, s{S_OUTB}, s{S_T3}")
e("v_lshrrev_b32 v2, 4, v1")
e("v_lshrrev_b32 v3, 2, v1")
e("v_and_b32 v3, 3, v3")
e("v_lshl_add_u32 v3, v2, 3, v3")
e("v_mul_u32_u24 v3, 320, v3")
e("v_and_b32 v4, 3, v1")
e("v_lshl_add_u32 v3, v4, 3, v3")
e("v_and_b32 v2, 1, v2")
e("v_lshlrev_b32 v2, 5, v2")
e("v_add_u32 v4, v3, v2")
e("v_sub_u32 v5, v3, v2")
e(f"s_add_u32 s{S_T3}, s{S_T3}, {XB}")
e(f"s_cmp_eq_u32 s{S_JH}, 0")
e("s_cselect_b64 vcc, -1, 0")
e("v_cndmask_b32 v6, v5, v4, vcc")
e("v_cndmask_b32 v7, v4, v5, vcc")
e(f"v_add_u32 v{VA2[0]}, s{S_T3}, v6")
e(f"v_add_u32 v{VA2[2]}, s{S_T3}, v7")
e(f"v_add_u32 v{VA2[1]}, {2*PITCH}, v{VA2[0]}")
e(f"v_add_u32 v{VA2[3]}, {2*PITCH}, v{VA2[2]}")
cs = (192 ** -0.5) * math.log2(math.e)
cbits = struct.unpack("<I", struct.pack("<f", cs))[0]
S_SC = S_T4
e(f"s_mov_b32 s{S_SC}, {cbits:#x}")
e("s_waitcnt lgkmcnt(0)")
e(f"s_add_u32 s{S_NONCE}, s{S_NONCE}, {NSTEP:#x}")
V_NON, V_FO = 189, 190
e(f"v_mov_b32 v{V_NON}, s{S_NONCE}")
e(f"s_lshl_b32 s{S_T0}, s{S_I}, 1")
e(f"s_add_u32 s{S_T0}, s{S_T0}, s{S_JH}")
e(f"s_lshl_b32 s{S_T0}, s{S_T0}, 2")
e(f"v_mov_b32 v{V_FO}, s{S_T0}")

slow = []
def fread(n):
    while n in NOFLAG: n += 1
    return f"ds_read_b32 v{V_RDY}, v{V_SR} offset:{16*n}"
def fcmp(): e(f"v_cmp_ne_u32 vcc, 0, v{V_RDY}")
def check(n):
    e(f"s_cbranch_vccnz L_slow{n}")
    e.lab(f"L_cont{n}")
    slow.append(n)
def fwait(n):
    e(f"s_branch L_slow{n}")
    e.lab(f"L_cont{n}")
    slow.append(n)
def read_ops(s, ks, fs):
    buf = bufof(s)
    aset = 8*(buf//2); boff = (buf % 2)*PITCH
    F = FR[fs]
    def xr(qt): return f"ds_read_b128 {vr(F+24+4*qt,4)}, v{V_AX+aset+ks} offset:{boff+qt*2048}"
    def wr(t, m): return f"ds_read_b64_tr_b16 {vr(F+4*t+2*m,2)}, v{V_AW+aset+t} offset:{boff+ks*12288+m*1024}"
    ops = [xr(0), wr(0,0), wr(0,1), xr(1), xr(2)]
    for t in range(1, 6): ops += [wr(t,0), wr(t,1)]
    return ops
def mfma_ops(fs, first):
    F = FR[fs]; ops = []
    for t in range(6):
        for qt in range(3):
            d = ACC + (t*3+qt)*4
            c = "0" if first else vr(d,4)
            ops.append(f"v_mfma_f32_16x16x32_bf16 {vr(d,4)}, {vr(F+4*t,4)}, {vr(F+24+4*qt,4)}, {c}")
    return ops
def interleave(mf, reads, first2=4, valu=None, vper=0, vstart=0):
    rq = list(reads)
    for k, m in enumerate(mf):
        e(m)
        for _ in range(2 if k < first2 else 1):
            if rq: e(rq.pop(0))
        if valu is not None and k >= vstart:
            n = vper
            while n > 0 and valu:
                x = valu.pop(0); e.emit(x)
                n -= 2 if (isinstance(x, str) and x.startswith(("v_exp", "v_rcp"))) else 1
    assert not rq
def merge(mf, fill, per, start=0):
    fq = list(fill)
    for k, m in enumerate(mf):
        e(m)
        if k >= start:
            for _ in range(per):
                if fq: e.emit(fq.pop(0))
    return fq

fwait(0)
stamp()
for x in read_ops(0, 0, 0): e(x)
STS = [int(x) for x in args.st.split(",")]
for s in range(10):
    e.c(f"--- stage {s} kstep 0")
    e("s_waitcnt lgkmcnt(0)")
    interleave(mfma_ops(0, s == 0), read_ops(s, 1, 1) + ([fread(s+1)] if (s < 9 or args.kfast) else []))
    e("s_waitcnt lgkmcnt(0)")
    e.c(f"--- stage {s} kstep 1")
    mf = mfma_ops(1, False)
    if s < 9 or args.kfast: fcmp()
    e(mf[0])
    if s in CB or (s == 9 and args.kfast): e("s_barrier")
    if s < 9 or args.kfast: check(s+1)
    if s in STS: stamp()
    if s < 9:
        interleave(mf[1:], read_ops(s+1, 0, 0))
def Z1(tt): return 104 + 12*tt
def G(tt): return 164 + 18*tt
def VWA(tt, kt): return G(tt) + 6 + 4*kt
def vwb(hd, tt): return [Z1(tt), Z1(tt)+6, G(tt), G(tt)+6][hd]
KF = 32
SB = 68
SAQ = [Z1(tt)+6 for tt in range(5)] + [G(0), G(4), 26, G(1)]
kreads = [f"ds_read_b64 {vr(KF+(kt*3+u)*4+2*ee,2)}, v{V_AK+2*u+ee} offset:{kt*2048}" for u in range(3) for kt in range(3) for ee in range(2)]
def qcvt(u):
    ops = []
    for hh in range(2):
        for qt in range(3):
            q = QF + (u*3+qt)*4
            a = ACC + ((2*u+hh)*3+qt)*4
            ops += [f"v_cvt_pk_bf16_f32 v{q+2*hh}, v{a}, v{a+1}", f"v_cvt_pk_bf16_f32 v{q+2*hh+1}, v{a+2}, v{a+3}"]
    return ops
REMAP = {}
mv = []
for k, r in enumerate(VA2 + [V_NON, V_FO]):
    n = [16, 17, 18, 19, 20, 21][k]
    mv.append(f"v_mov_b32 v{n}, v{r}")
    REMAP[r] = n
VA2 = [REMAP[r] for r in VA2]; V_NON = REMAP[V_NON]; V_FO = REMAP[V_FO]
def smf(u, kt, qt):
    d = SAQ[kt*3+qt]
    c = "0" if u == 0 else vr(d,4)
    return f"v_mfma_f32_16x16x32_bf16 {vr(d,4)}, {vr(KF+(kt*3+u)*4,4)}, {vr(QF+(u*3+qt)*4,4)}, {c}"
if args.kfast:
    assert F_K == 10 and args.t1early
    fill = kreads + qcvt(0) + qcvt(1) + qcvt(2)
    fill = merge(mf[1:], fill, 2)
    stamp()
    stamp()
    def accsrc(reg): return (reg - ACC) // 24 if ACC <= reg < ACC + 72 else -1
    order = sorted(range(9), key=lambda k: max(accsrc(SAQ[k]), accsrc(SAQ[k]+3)))
    e("s_waitcnt lgkmcnt(0)")
    done = 36 - len(fill)
    for k in order:
        need = 12*(max(accsrc(SAQ[k]), accsrc(SAQ[k]+3)) + 1)
        need = max(need, 12)
        while done < need:
            e(fill.pop(0)); done += 1
        e(smf(0, k // 3, k % 3))
        for _ in range(2):
            if fill: e(fill.pop(0)); done += 1
    assert not fill
    merge([smf(1, kt, qt) for kt in range(3) for qt in range(3)], mv, 1)
else:
    fill = qcvt(0) + qcvt(1) + qcvt(2)
    fill = merge(mf[1:], fill, 2, start=8)
    for x in fill[:6]: e(x)
    fill = fill[6:]
    stamp()
    if args.t1early: e("s_barrier")
    fwait(F_K)
    stamp()
    for x in kreads: e(x)
    for x in fill: e(x)
    for x in mv: e(x)
    for u in range(2):
        e(f"s_waitcnt lgkmcnt({12-6*u})")
        for kt in range(3):
            for qt in range(3): e(smf(u, kt, qt))
    e("s_waitcnt lgkmcnt(0)")
TMPQ = [68, 72, 76]
SB = 80
def slast(jh):
    def m(kt, qt, d): return f"v_mfma_f32_16x16x32_bf16 {vr(d,4)}, {vr(KF+(kt*3+2)*4,4)}, {vr(QF+(6+qt)*4,4)}, {vr(SAQ[kt*3+qt],4)}"
    snd = 2 - 2*jh; keep = 2*jh
    for kt in range(3): e(m(kt, snd, TMPQ[kt]))
    for kt in range(3): e(m(kt, 1, SAQ[kt*3+1]))
    for kt in range(3): e(m(kt, keep, SAQ[kt*3]))
    for kt in range(3): e(f"ds_write_b128 v{V_SXW}, {vr(TMPQ[kt],4)} offset:{kt*1024}")
    for kt in range(3): e(f"ds_write_b128 v{V_SXW}, {vr(SAQ[kt*3+1],4)} offset:{(3+kt)*1024}")
e(f"s_cmp_lg_u32 s{S_JH}, 0")
e("s_cbranch_scc1 L_sl1")
slast(0)
e.lab("L_sld")
e("s_waitcnt lgkmcnt(0) vmcnt(0)")
e("s_barrier")
stamp()
for k in range(6): e(f"ds_read_b128 {vr(SB+4*k,4)}, v{V_SXR} offset:{k*1024}")
def sreg(kt, qt, r): return SAQ[kt*3+qt] + r
NQ = 2
for qt in range(NQ):
    e(f"s_waitcnt lgkmcnt({3-3*qt})")
    if qt == NQ-1: e("s_barrier")
    for kt in range(3):
        for h2 in range(2):
            e(f"v_pk_add_f32 {vr(sreg(kt,qt,2*h2),2)}, {vr(sreg(kt,qt,2*h2),2)}, {vr(SB+4*(qt*3+kt)+2*h2,2)}")
M = [2, 4, 6]; T = [3, 5, 7]
SM = []
for qt in range(NQ):
    vals = [sreg(kt, qt, r) for kt in range(3) for r in range(4)]
    SM.append(f"v_max3_f32 v{M[qt]}, v{vals[0]}, v{vals[1]}, v{vals[2]}")
    for k in range(3, 11, 2): SM.append(f"v_max3_f32 v{M[qt]}, v{M[qt]}, v{vals[k]}, v{vals[k+1]}")
    SM.append(f"v_max_f32 v{M[qt]}, v{M[qt]}, v{vals[11]}")
def xl(op):
    for sw in ("v_permlane32_swap_b32", "v_permlane16_swap_b32"):
        for qt in range(NQ): SM.append(f"v_mov_b32 v{T[qt]}, v{M[qt]}")
        for qt in range(NQ): SM.append(f"{sw} v{M[qt]}, v{T[qt]}")
        for qt in range(NQ): SM.append(f"{op} v{M[qt]}, v{M[qt]}, v{T[qt]}")
xl("v_max_f32")
for qt in range(NQ): SM.append(f"v_mul_f32 v{M[qt]}, s{S_SC}, v{M[qt]}")
for qt in range(NQ):
    for kt in range(3):
        for r in range(4):
            x = sreg(kt, qt, r); SM.append(f"v_fma_f32 v{x}, v{x}, s{S_SC}, -v{M[qt]}")
for qt in range(NQ):
    for kt in range(3):
        for r in range(4):
            x = sreg(kt, qt, r); SM.append(f"v_exp_f32 v{x}, v{x}")
for qt in range(NQ):
    vals = [sreg(kt, qt, r) for kt in range(3) for r in range(4)]
    SM.append(f"v_add_f32 v{M[qt]}, v{vals[0]}, v{vals[1]}")
    for k in range(2, 12): SM.append(f"v_add_f32 v{M[qt]}, v{M[qt]}, v{vals[k]}")
xl("v_add_f32")
for qt in range(NQ): SM.append(f"v_rcp_f32 v{M[qt]}, v{M[qt]}")
for qt in range(NQ):
    for kt in range(3):
        for r in range(4):
            x = sreg(kt, qt, r); SM.append(f"v_mul_f32 v{x}, v{x}, v{M[qt]}")
    for kt in range(3):
        x = sreg(kt, qt, 0)
        d = sreg(0, qt, 2*kt) if kt < 2 else sreg(1, qt, 0)
        SM += [f"v_cvt_pk_bf16_f32 v{d}, v{x}, v{x+1}", f"v_cvt_pk_bf16_f32 v{d+1}, v{x+2}, v{x+3}"]
def ppublish():
    e(f"s_lshl_b32 s{S_T0}, s{S_JH}, 10")
    e(f"s_add_u32 s{S_T1}, s{S_T0}, s{S_PXO}")
    e(f"s_add_u32 s{S_T0}, s{S_T0}, s{S_T1}")
    e(f"buffer_store_dwordx4 {vr(sreg(0,0,0),4)}, v{V_L16}, {R(R_WS)}, s{S_T0} offen sc1")
    e(f"buffer_store_dwordx2 {vr(sreg(1,0,0),2)}, v{V_L12}, {R(R_WS)}, s{S_T1} offen offset:2560 sc1")
    e(f"s_cmp_lg_u32 s{S_JH}, 0")
    e("s_cbranch_scc1 L_pp1")
    e(f"buffer_store_dwordx4 {vr(sreg(0,1,0),4)}, v{V_L16}, {R(R_WS)}, s{S_PXO} offen offset:1024 sc1")
    e.lab("L_ppd")
for x in SM[:args.smpre]: e(x)
SM = SM[args.smpre:]
pubstep = None
if not SM: ppublish(); pubstep = -1
stamp()
def read2(t, ks, fs):
    buf = buf2(t)
    hi = buf // 2; boff = (buf % 2)*PITCH
    F = FR[fs]
    def vrd(kt): return f"ds_read_b128 {vr(F+24+4*kt,4)}, v{V_AX+8*hi+ks} offset:{boff+kt*2048}"
    def wr(tt, m): return f"ds_read_b64_tr_b16 {vr(F+4*tt+2*m,2)}, v{VA2[2*(tt%2)+hi]} offset:{boff+ks*10240+m*1280+tt*32}"
    ops = [vrd(0), wr(0,0), wr(0,1), vrd(1), vrd(2)]
    for tt in range(1, 5): ops += [wr(tt,0), wr(tt,1)]
    return ops
def mf2(fs, first):
    F = FR[fs]; ops = []
    for tt in range(5):
        for kt in range(3):
            d = VWA(tt, kt)
            c = "0" if first else vr(d,4)
            ops.append(f"v_mfma_f32_16x16x32_bf16 {vr(d,4)}, {vr(F+24+4*kt,4)}, {vr(F+4*tt,4)}, {c}")
    if args.r2idle: ops = ["s_nop 0"]*15
    return ops
def vwcvt(hd, tt):
    b = vwb(hd, tt); ops = []
    for kt in range(3):
        a = VWA(tt, kt)
        ops += [f"v_cvt_pk_bf16_f32 v{b+2*kt}, v{a}, v{a+1}", f"v_cvt_pk_bf16_f32 v{b+2*kt+1}, v{a+2}, v{a+3}"]
    return ops
V_PA16, V_PA8 = 24, 25
e(f"s_mul_i32 s{S_T0}, s{S_B}, 18432")
e(f"s_add_u32 s{S_T0}, s{S_T0}, {buf2(8)*PITCH}")
e(f"v_add_u32 v{V_PA16}, s{S_T0}, v{V_L16}")
e(f"v_add_u32 v{V_PA8}, s{S_T0}, v{V_L12}")
def pread(dst, pos, qt, kt):
    if kt < 2: return f"ds_read_b64 {vr(dst,2)}, v{V_PA16} offset:{pos*4608 + qt*1024 + kt*8}"
    return f"ds_read_b64 {vr(dst,2)}, v{V_PA8} offset:{pos*4608 + 2560 + qt*512}"
def pfrag(dst, ks, qt):
    if ks % 3 == 0:
        return [f"ds_read_b128 {vr(dst,4)}, v{V_PA16} offset:{(2*ks//3)*4608 + qt*1024}"]
    return [pread(dst + 2*h, (2*ks+h)//3, qt, (2*ks+h) % 3) for h in range(2)]
fwait(F_T)
if args.p2st: stamp_n[0] = 1
stamp()
for x in read2(0, 0, 0): e(x)
B2M = [m for m, l in BARS2]
carry = []
PQ_ = [FR[0] + 4*k for k in range(9)]
for t in range(12):
    hd, kk = divmod(t, 3)
    for ks in range(2):
        step = 2*t + ks
        e.c(f"--- ring2 stage {t} kstep {ks}")
        e("s_waitcnt lgkmcnt(0)")
        mf = mf2(ks, kk == 0 and ks == 0)
        nf = F_T+t+1 if t < 11 else F_P
        if ks == 0:
            rq = read2(t, 1, 1) + [fread(nf)]
        else:
            fcmp()
            e(mf[0]); mf = mf[1:]
            if t in B2M: e("s_barrier")
            check(nf)
            if args.p2st or t in (2, 5, 8): stamp()
            rq = read2(t+1, 0, 0) if t < 11 else sum([pfrag(PQ_[k], k, 0) for k in range(6)], [])
        if pubstep is not None and step == pubstep + args.ackdelay:
            e(mf[0]); mf = mf[1:]
            e("s_waitcnt vmcnt(0)")
            e(f"buffer_store_dword v{V_NON}, v{V_FO}, {R(R_WS)}, s{S_F1} offen sc1")
        last = (kk == 2 and ks == 1)
        if carry:
            interleave(mf, rq, first2=3, valu=carry, vper=2)
            assert not carry
        elif last:
            assert not (hd == 1 and (SM or pubstep is None)), "softmax must finish within head 1"
            carry = sum([vwcvt(hd, tt) for tt in range(5)], [])
            interleave(mf, rq, first2=3, valu=carry, vper=2, vstart=5)
        elif SM and step >= args.smstart:
            interleave(mf, rq, first2=3, valu=SM, vper=args.vper)
            if not SM:
                ppublish(); pubstep = step
        else:
            interleave(mf, rq, first2=3)
sys.stderr.write(f"pubstep {pubstep}\n")
def afr(tt, ks): return (Z1(tt) + 4*ks) if ks < 3 else (G(tt) + 4*(ks-3))
OUTQ = [FR[1] + 4*k for k in range(9)] + [G(tt) + 12 for tt in range(5)] + [26]
def OUTR_(tt, qt): return OUTQ[qt*5 + tt]
OUTR = list(OUTQ)
e(f"s_lshl_b32 s{S_T0}, s{S_IDX}, 2")
e(f"s_add_u32 s{S_T0}, s{S_T0}, s{S_W}")
e(f"s_lshl_b32 s{S_F2}, s{S_T0}, 10")
e(f"s_add_u32 s{S_F2}, s{S_F2}, {WS_F2}")
e(f"s_lshl_b32 s{S_PB}, s{S_T0}, 16")
e(f"s_add_u32 s{S_PB}, s{S_PB}, {WS_P}")
e(f"s_lshl_b32 s{S_T1}, s{S_J}, 10")
e(f"s_add_u32 s{S_T1}, s{S_T1}, s{S_PB}")
OWN = 2
def pstore(p):
    a0 = OUTR[2*p]; a1 = OUTR[min(2*p+1, 14)]
    ops = [[f"s_cmp_eq_u32 s{S_J}, {p}", f"s_cbranch_scc1 L_own{p}",
            f"v_cvt_pk_bf16_f32 v{a0}, v{a0}, v{a0+1}", f"v_cvt_pk_bf16_f32 v{a0+1}, v{a0+2}, v{a0+3}"]]
    if p < 7:
        ops[0] += [f"v_cvt_pk_bf16_f32 v{a0+2}, v{a1}, v{a1+1}", f"v_cvt_pk_bf16_f32 v{a0+3}, v{a1+2}, v{a1+3}"]
    ops[0] += [f"s_add_u32 s{S_SO}, s{S_T1}, {p*8192}",
               f"buffer_store_dwordx4 {vr(a0,4)}, v{V_L16}, {R(R_WS)}, s{S_SO} offen {args.psf}", f"L_ownr{p}:"]
    return ops
nq = 6
pend = list(range(8))
for qt in range(3):
    for ks in range(6):
        idx = qt*6 + ks
        pq = PQ_[idx % 9]
        fm = [f"v_mfma_f32_16x16x32_bf16 {vr(OUTR_(tt,qt),4)}, {vr(afr(tt,ks),4)}, {vr(pq,4)}, {'0' if ks == 0 else vr(OUTR_(tt,qt),4)}" for tt in range(5)]
        if ks % 3 == 0: e("s_waitcnt lgkmcnt(0)")
        rq = []
        if ks % 3 == 0:
            for _ in range(3):
                if nq < 18:
                    rq += pfrag(PQ_[nq % 9], nq % 6, nq // 6); nq += 1
        interleave(fm, rq, first2=5, valu=carry, vper=3)
        if args.early and ks >= 1 and pend and 2*pend[0]+1 < 5*qt:
            e.emit(pstore(pend.pop(0)))
assert not carry
stamp()
for p in pend: e.emit(pstore(p))
e(f"s_lshl_b32 s{S_T1}, s{S_J}, 2")
e(f"s_add_u32 s{S_T1}, s{S_T1}, s{S_F2}")
e(f"v_lshlrev_b32 v22, 5, v{V_FL8}")
e(f"s_lshl_b32 s{S_T2}, s{S_J}, 7")
e(f"s_add_u32 s{S_F2}, s{S_F2}, s{S_T2}")
e(f"s_lshl_b32 s{S_T0}, s{S_J}, 13")
e(f"s_add_u32 s{S_T0}, s{S_T0}, s{S_PB}")
for k in range(1, 8):
    e(f"s_add_u32 s{S_T2}, s{S_J}, {k}")
    e(f"s_and_b32 s{S_T2}, s{S_T2}, 7")
    e(f"s_lshl_b32 s{S_T2}, s{S_T2}, 10")
    e(f"s_add_u32 s{3+k}, s{S_T2}, s{S_T0}")
e("s_mov_b64 exec, 0xff")
e("s_waitcnt vmcnt(0)")
e(f"buffer_store_dword v{V_NON}, v22, {R(R_WS)}, s{S_T1} offen sc1")
D = args.f2atom
e(f"s_mov_b32 s{S_CNT}, 0")
for k in range(D-1):
    e(f"v_mov_b32 v{140+k}, 0")
    e(f"buffer_atomic_or v{140+k}, v{V_FL8}, {R(R_WS)}, s{S_F2} offen sc0 sc1")
    e(f"s_sleep {args.f2sleep}")
e.lab("L_poll2")
for k in range(D):
    nw = (k + D - 1) % D
    e(f"v_mov_b32 v{140+nw}, 0")
    e(f"buffer_atomic_or v{140+nw}, v{V_FL8}, {R(R_WS)}, s{S_F2} offen sc0 sc1")
    e(f"s_waitcnt vmcnt({D-1})")
    e(f"v_cmp_ne_u32 vcc, s{S_NONCE}, v{140+k}")
    e("s_cbranch_vccz L_poll2_done")
    e(f"s_sleep {args.f2sleep}")
e(f"s_add_u32 s{S_CNT}, s{S_CNT}, 1")
e(f"s_cmp_lt_u32 s{S_CNT}, 50000")
e("s_cbranch_scc1 L_poll2")
e.lab("L_poll2_done")
e("s_mov_b64 exec, -1")
stamp()
for k in range(1, 8):
    e(f"buffer_load_dwordx4 {vr(192+4*k,4)}, v{V_L16}, {R(R_WS)}, s{3+k} offen {args.plf}")
e(f"s_mov_b32 s{S_T4}, 0xffff0000")
for k in range(1, 8):
    e(f"s_waitcnt vmcnt({7-k})")
    for d in range(4):
        e(f"v_lshlrev_b32 v{148+2*d}, 16, v{192+4*k+d}")
        e(f"v_and_b32 v{148+2*d+1}, s{S_T4}, v{192+4*k+d}")
    for d in range(4):
        e(f"v_pk_add_f32 {vr(OWN+2*d,2)}, {vr(OWN+2*d,2)}, {vr(148+2*d,2)}")
res = [OWN, OWN+4]
for z in range(2):
    b = res[z]
    e(f"v_cvt_pk_bf16_f32 v{32+2*z}, v{b}, v{b+1}")
    e(f"v_cvt_pk_bf16_f32 v{33+2*z}, v{b+2}, v{b+3}")
    e(f"s_lshl_b32 s{S_T0}, s{S_J}, 1")
    e(f"s_add_u32 s{S_T0}, s{S_T0}, {z}")
    if z == 1:
        e(f"s_cmp_eq_u32 s{S_T0}, 15")
        e("s_cbranch_scc1 L_fin")
    e(f"s_mul_i32 s{S_T2}, s{S_T0}, 13")
    e(f"s_lshr_b32 s{S_T2}, s{S_T2}, 6")
    e(f"s_mul_i32 s{S_T1}, s{S_T2}, 5")
    e(f"s_sub_u32 s{S_T1}, s{S_T0}, s{S_T1}")
    e(f"s_lshl_b32 s{S_T1}, s{S_T1}, 5")
    e(f"s_mul_i32 s{S_T2}, s{S_T2}, {16*1280}")
    e(f"s_add_u32 s{S_SO}, s{S_OUTB}, s{S_T1}")
    e(f"s_add_u32 s{S_SO}, s{S_SO}, s{S_T2}")
    e(f"buffer_store_dwordx2 {vr(32+2*z,2)}, v{V_OUT}, {R(R_OUT)}, s{S_SO} offen {args.outf}")
e.lab("L_fin")
e(f"s_or_b32 s{S_T0}, s{S_J}, s{S_I}")
e(f"s_or_b32 s{S_T0}, s{S_T0}, s{S_JH}")
e(f"s_cmp_lg_u32 s{S_T0}, 0")
e("s_cbranch_scc1 L_noep")
e("s_barrier")
e(f"s_cmp_lg_u32 s{S_W}, 0")
e("s_cbranch_scc1 L_noep")
e(f"s_lshl_b32 s{S_T2}, s{S_BP}, 7")
e(f"s_add_u32 s{S_T2}, s{S_T2}, {WS_E}")
e("s_mov_b64 exec, 1")
e(f"buffer_store_dword v{V_NON}, v{V_FO}, {R(R_WS)}, s{S_T2} offen sc1")
e("s_mov_b64 exec, -1")
e.lab("L_noep")
if STAMPS:
    e("s_waitcnt vmcnt(0)")
    stamp()
stamp_store()
e.lab("L_end")
e("s_endpgm")
e.lab("L_sl1")
e("s_nop 7")
slast(1)
e("s_branch L_sld")
e.lab("L_pp1")
e(f"buffer_store_dwordx2 {vr(sreg(1,1,0),2)}, v{V_L12}, {R(R_WS)}, s{S_PXO} offen offset:3072 sc1")
e("s_branch L_ppd")
for p in range(8):
    e.lab(f"L_own{p}")
    e("s_nop 7")
    for z in range(2):
        a = OUTR[min(2*p+z, 14)]
        for r in range(4): e(f"v_mov_b32 v{OWN+4*z+r}, v{a+r}")
    e(f"s_branch L_ownr{p}")
for n in slow:
    e.lab(f"L_slow{n}")
    e(fread(n))
    budget(f"L_cont{n}")
    e("s_waitcnt lgkmcnt(0)")
    fcmp()
    e(f"s_cbranch_vccnz L_slow{n}")
    e(f"s_branch L_cont{n}")
e.raw(".p2align 8")
e.raw(".fill 4096, 4, 0xBF810000")
hdr = [
 "; Fused MHA block (cached K/V), hand-written generator output (dev/gen17.py).",
 "; kernarg: x, k_cache, v_cache, wq, wo, out, debug, ws (8 pointers).",
 "; 256 workgroups (one per CU), 8 waves: waves 0-3 compute (MFMA), waves 4-7 stream operands into LDS (LDS-DMA).",
 "; workgroup (j = id&7, i, bp): head 4j+i, batches 2bp,2bp+1:  Q = x Wq_h ; S = Q K^T ; P = softmax(S*scale) (true row max);",
 ";   then, for the 4 heads of group j and 160 output columns: partial = sum_h P_h (V_h Wo_h);",
 ";   P is exchanged inside the group, the 8 partials of a tile are reduced across groups (write-through stores + flags in ws).",
 "; hand-off flags carry a per-launch nonce derived from an epoch word in ws; correctness does not depend on placement.",
 "; @launch grid=(256,1,1) block=(512,1,1) lds=163840",
 '.amdgcn_target "amdgcn-amd-amdhsa--gfx950"', ".text"]
desc = f""".amdhsa_kernel {NAME}
  .amdhsa_next_free_vgpr 256
  .amdhsa_next_free_sgpr 102
  .amdhsa_accum_offset 256
  .amdhsa_group_segment_fixed_size 0
  .amdhsa_kernarg_size 64
  .amdhsa_user_sgpr_count 2
  .amdhsa_user_sgpr_kernarg_segment_ptr 1
  .amdhsa_system_sgpr_workgroup_id_x 1
.end_amdhsa_kernel"""
body = hazard_pad(e.L, verbose=True)
sys.stdout.write("\n".join(hdr + body) + '\n.section .rodata,"a"\n.p2align 6\n' + desc + "\n")
```

```python
import sys, math, argparse, struct
from asmlib import *
ap = argparse.ArgumentParser()
ap.add_argument("--stamps", action="store_true")
ap.add_argument("--clk", action="store_true")
ap.add_argument("--kflag", default="nt")
ap.add_argument("--vflag", default="")
ap.add_argument("--sleep", type=int, default=1)
ap.add_argument("--prio", type=int, default=2)
ap.add_argument("--st", default="2,5")
ap.add_argument("--bars", default="1:4,5;3:6;4:7;5:8;6:9")
ap.add_argument("--bars2", default="1:4,5;3:6,7;5:8,9;6:10;7:11;8:")
ap.add_argument("--wppos", type=int, default=-1)
ap.add_argument("--early", type=int, default=1)
ap.add_argument("--v2pf", type=int, default=12)
ap.add_argument("--apoll", type=int, default=1)
ap.add_argument("--smstart", type=int, default=0)
ap.add_argument("--vord", type=int, default=0)
ap.add_argument("--st0", action="store_true")
ap.add_argument("--wp2", type=int, default=0)
ap.add_argument("--kfast", type=int, default=1)
ap.add_argument("--kstag", default="8,9,6,7")
ap.add_argument("--t0bar", type=int, default=7)
ap.add_argument("--gw", type=int, default=4)
ap.add_argument("--gx", type=int, default=4)
ap.add_argument("--noflag", default="")
ap.add_argument("--v8pf", type=int, default=-1)
ap.add_argument("--psf", default="sc1")
ap.add_argument("--plf", default="sc1")
ap.add_argument("--outf", default="")
ap.add_argument("--wsp", type=lambda x: int(x, 0), default=4 << 20)
ap.add_argument("--wstag", default="3,4,8,9")
ap.add_argument("--vstag", default="")
ap.add_argument("--rot2", type=int, default=1)
ap.add_argument("--vnt", type=int, default=0)
ap.add_argument("--wont", type=int, default=0)
ap.add_argument("--wnt", type=int, default=0)
ap.add_argument("--xnt", type=int, default=0)
ap.add_argument("--vper", type=int, default=3)
ap.add_argument("--ackdelay", type=int, default=3)
ap.add_argument("--f2atom", type=int, default=2)
ap.add_argument("--f2sleep", type=int, default=2)
ap.add_argument("--ackstep", type=int, default=1)
ap.add_argument("--pollstep", type=int, default=9)
ap.add_argument("--smpre", type=int, default=26)
ap.add_argument("--p2st", action="store_true")
ap.add_argument("--vppos", type=int, default=-1)
ap.add_argument("--vfirst", type=int, default=1)
ap.add_argument("--pburst", type=int, default=1)
ap.add_argument("--t1early", type=int, default=1)
ap.add_argument("--pl2", type=int, default=12)
ap.add_argument("--pl3", type=int, default=18)
args = ap.parse_args()
STAMPS = args.stamps
def parse_sched(t):
    out = []
    for it in t.split(";"):
        m, l = it.split(":")
        out.append((int(m), [int(x) for x in l.split(",") if x]))
    return out
BARS = parse_sched(args.bars)
for m, l in BARS:
    for n in l: assert m >= (n - 4 if n < 6 else n - 3)
assert sorted(sum([l for m, l in BARS], [])) == list(range(4, 10))
KST = [int(x) for x in args.kstag.split(",")]
for n in KST: assert [m for m, l in BARS if n in l][0] >= 2
CB = [m for m, l in BARS] + ([7, 8] if args.t0bar == 7 else [8])
BARS2 = parse_sched(args.bars2)
for m, l in BARS2:
    for n in l: assert m >= n - 4
assert sorted(sum([l for m, l in BARS2], [])) == list(range(4, 12))
assert BARS2[-1][0] >= 8
NAME = "standalone__mha_block_cached__near_ridge_kernel"
WS_PX = 0
WS_F1 = 3 << 20
WS_E = WS_F1 + 0x20000
WS_F2 = WS_F1 + 0x40000
WS_P = args.wsp
NSTEP = 0x9E3779B1
WS_ST = 0x8000000
NST = 16
e = A()

S_X, S_K, S_V, S_WQ, S_WO, S_OUT, S_DBG, S_WS = 4, 6, 8, 10, 12, 14, 16, 18
R_X, R_WQ, R_K, R_V, R_WO, R_OUT, R_WS = 20, 24, 28, 32, 36, 40, 44
S_J, S_I, S_BP, S_H, S_W = 48, 49, 50, 51, 52
S_T0, S_T1, S_T2, S_T3, S_T4 = 53, 54, 55, 56, 57
S_IDX, S_NONCE = 3, 59
S_A = list(range(60, 70))
S_ST = 70
S_BUD = 17
BUD = 2000000
def srd(r, p, nbytes):
    e(f"s_mov_b32 s{r}, s{p}"); e(f"s_mov_b32 s{r+1}, s{p+1}"); e(f"s_mov_b32 s{r+2}, {nbytes}"); e(f"s_mov_b32 s{r+3}, 0x00020000")
def R(r): return f"s[{r}:{r+3}]"
stamp_n = [0]
def stamp(wait=True):
    if not STAMPS: return
    i = stamp_n[0]
    if i >= NST: return
    stamp_n[0] += 1
    e(f"s_mem{'time' if args.clk else 'realtime'} s[{S_ST+2*i}:{S_ST+2*i+1}]")
    if wait: e("s_waitcnt lgkmcnt(0)")
def stamp_store():
    if not STAMPS: return
    n = stamp_n[0]
    e(f"s_lshl_b32 s{S_T0}, s2, 3")
    e(f"s_add_u32 s{S_T0}, s{S_T0}, s{S_W}")
    e(f"s_mul_i32 s{S_T0}, s{S_T0}, {NST*8}")
    e(f"s_add_u32 s{S_T0}, s{S_T0}, {WS_ST}")
    e("v_mov_b32 v4, 0")
    for i in range(NST):
        k = min(i, n-1)
        e(f"v_mov_b32 v6, s{S_ST+2*k}")
        e(f"v_mov_b32 v7, s{S_ST+2*k+1}")
        e(f"buffer_store_dwordx2 v[6:7], v4, {R(R_WS)}, s{S_T0} offen offset:{8*i}")
        e("s_nop 1")
    sys.stderr.write(f"stamps: {n}\n")
def budget(done):
    e(f"s_add_u32 s{S_BUD}, s{S_BUD}, 1")
    e(f"s_cmp_gt_u32 s{S_BUD}, {BUD}")
    e(f"s_cbranch_scc1 {done}")
XB = 12288
PITCH = 40960
SY_FLG = 36864
F_K, F_T, F_P = 10, 16, 30
def bufof(s): return [1, 2, 3, 0, 1, 2, 0, 1, 2, 0][s]
def buf2(t): return [1, 0, 3, 2][t % 4]
SXB = 2*PITCH

e.raw(f".globl {NAME}\n.p2align 8\n.type {NAME},@function\n{NAME}:")
stamp(wait=False)
e("s_load_dwordx16 s[4:19], s[0:1], 0")
e("s_cmp_ge_u32 s2, 256")
e("s_cbranch_scc1 L_end")
e("v_lshrrev_b32 v2, 6, v0")
e("v_and_b32 v1, 63, v0")
e(f"v_readfirstlane_b32 s{S_W}, v2")
e(f"s_and_b32 s{S_J}, s2, 7")
e(f"s_lshr_b32 s{S_IDX}, s2, 3")
e(f"s_and_b32 s{S_I}, s{S_IDX}, 3")
e(f"s_lshr_b32 s{S_BP}, s{S_IDX}, 2")
e(f"s_lshl_b32 s{S_H}, s{S_J}, 2")
e(f"s_add_u32 s{S_H}, s{S_H}, s{S_I}")
e(f"s_cmp_lt_u32 s{S_W}, 4")
e("s_cbranch_scc1 L_compute")

S_L, S_KX, S_KW, S_XK, S_SO, S_LX, S_LW, S_XB, S_WB, S_KVB = S_A
V_OW, V_OXA, V_OXB, V_OKA, V_OKB, V_OOB, V_PF, LDUMMY = 10, 11, 12, 14, 15, 16, 17, 18
V_OWO = 20
S_KB2, S_VB2, S_FLB, S_KD, S_LO, S_WOB = 4, 5, 6, 7, 8, 9
e(f"s_sub_u32 s{S_L}, s{S_W}, 4")
e("v_lshrrev_b32 v2, 3, v1")
e("v_and_b32 v3, 7, v1")
e("v_lshrrev_b32 v4, 1, v2")
e("v_lshlrev_b32 v5, 1, v4")
e("v_xor_b32 v5, v5, v3")
e("v_lshlrev_b32 v5, 4, v5")
e("v_lshrrev_b32 v6, 2, v2")
e("v_lshlrev_b32 v6, 3, v6")
e("v_and_b32 v7, 3, v2")
e("v_add_u32 v6, v6, v7")
e("v_mul_u32_u24 v6, 12288, v6")
e(f"v_add_u32 v{V_OW}, v6, v5")
e("v_mul_u32_u24 v6, 1280, v2")
e("v_xor_b32 v7, v3, v4")
e("v_lshlrev_b32 v8, 4, v7")
e(f"s_and_b32 s{S_T1}, s{S_L}, 1")
e(f"s_lshl_b32 s{S_T2}, s{S_T1}, 6")
e(f"v_xor_b32 v8, s{S_T2}, v8")
e(f"v_add_u32 v{V_OXA}, v6, v8")
e("v_xor_b32 v9, 64, v8")
e(f"v_add_u32 v{V_OXB}, v6, v9")
e(f"s_mul_i32 s{S_XB}, s{S_BP}, {96*1280}")
e(f"s_mul_i32 s{S_T2}, s{S_L}, {24*1280}")
e(f"s_add_u32 s{S_XB}, s{S_XB}, s{S_T2}")
e(f"s_mul_i32 s{S_WB}, s{S_H}, 384")
e(f"s_lshr_b32 s{S_T0}, s{S_L}, 1")
e(f"s_mul_i32 s{S_T2}, s{S_T0}, {16*12288}")
e(f"s_add_u32 s{S_WB}, s{S_WB}, s{S_T2}")
e(f"s_mul_i32 s{S_T2}, s{S_T1}, {4*12288}")
e(f"s_add_u32 s{S_WB}, s{S_WB}, s{S_T2}")
e(f"s_and_b32 s{S_KX}, s{S_BP}, {args.gw-1}")
e(f"s_mul_i32 s{S_KX}, s{S_KX}, {80//args.gw}")
e(f"s_lshr_b32 s{S_KX}, s{S_KX}, 3")
e(f"s_and_b32 s{S_T2}, s{S_I}, {args.gx-1}")
e(f"s_mul_i32 s{S_T2}, s{S_T2}, {80//args.gx}")
e(f"s_lshr_b32 s{S_T2}, s{S_T2}, 3")
e(f"s_add_u32 s{S_KX}, s{S_KX}, s{S_T2}")
e(f"s_sub_u32 s{S_T2}, s{S_KX}, 10")
e(f"s_cmp_ge_u32 s{S_KX}, 10")
e(f"s_cselect_b32 s{S_KX}, s{S_T2}, s{S_KX}")
e(f"s_lshl_b32 s{S_KX}, s{S_KX}, 7")
e(f"s_mul_i32 s{S_LX}, s{S_L}, 3072")
e(f"s_lshl_b32 s{S_LW}, s{S_L}, 10")
V_WPR, V_XPR = 13, 19
if args.wnt:
    e("v_lshrrev_b32 v24, 2, v1")
    e("v_and_b32 v25, 3, v24")
    e("v_lshrrev_b32 v26, 2, v24")
    e("v_and_b32 v27, 1, v26")
    e("v_lshl_add_u32 v25, v27, 3, v25")
    e("v_lshrrev_b32 v26, 1, v26")
    e("v_lshl_add_u32 v25, v26, 5, v25")
    e("v_mul_u32_u24 v25, 12288, v25")
    e("v_and_b32 v26, 3, v1")
    e("v_min_u32 v26, 2, v26")
    e(f"v_lshl_add_u32 v{V_WPR}, v26, 7, v25")
if args.xnt:
    e("v_min_u32 v24, 23, v1")
    e(f"v_mul_u32_u24 v{V_XPR}, 1280, v24")
if args.st0: stamp(wait=False)
e("s_waitcnt lgkmcnt(0)")
if args.st0: stamp()
srd(R_X, S_X, 16*48*640*2)
srd(R_WQ, S_WQ, 640*6144*2)
def issue(s):
    buf = bufof(s)
    e(f"s_mul_i32 s{S_KW}, s{S_KX}, 6144"); e(f"s_add_u32 s{S_KW}, s{S_KW}, s{S_WB}"); e(f"s_add_u32 s{S_XK}, s{S_KX}, s{S_XB}")
    ws = [("w", ks, cg) for ks in range(2) for cg in range(3)]
    xs = [("x", a) for a in range(3)]
    for o in [xs[0], ws[0], ws[1], xs[1], ws[2], xs[2], ws[3], ws[4], ws[5]]:
        if o[0] == "w":
            _, ks, cg = o
            e(f"s_add_u32 m0, s{S_LW}, {buf*PITCH + XB + ks*12288 + cg*4096}")
            e(f"s_add_u32 s{S_SO}, s{S_KW}, {32*ks*12288 + cg*128}")
            e(f"buffer_load_dwordx4 v{V_OW}, {R(R_WQ)}, s{S_SO} offen {'nt' if s < args.wnt else ''} lds")
        else:
            a = o[1]
            e(f"s_add_u32 m0, s{S_LX}, {buf*PITCH + a*1024}")
            e(f"s_add_u32 s{S_SO}, s{S_XK}, {8*a*1280}")
            e(f"buffer_load_dwordx4 v{V_OXB if a == 1 else V_OXA}, {R(R_X)}, s{S_SO} offen {'nt' if s < args.xnt else ''} lds")
    if s < args.wnt: e(f"buffer_load_dword v{LDUMMY}, v{V_WPR}, {R(R_WQ)}, s{S_KW} offen sc1")
    if s < args.xnt: e(f"buffer_load_dword v{LDUMMY}, v{V_XPR}, {R(R_X)}, s{S_XK} offen sc1")
    e(f"s_add_u32 s{S_KX}, s{S_KX}, 128"); e(f"s_cmp_eq_u32 s{S_KX}, 1280"); e(f"s_cselect_b32 s{S_KX}, 0, s{S_KX}")
NOFLAG = [int(x) for x in args.noflag.split(",") if x]
def flag(n):
    if n in NOFLAG: return
    e(f"s_add_u32 m0, s{S_FLB}, {16*n}")
    e("s_mov_b64 exec, 1")
    e(f"buffer_load_dword v{V_OOB}, {R(R_X)}, 0 offen lds")
    e("s_mov_b64 exec, -1")
issue(0)
if args.st0: stamp()
srd(R_K, S_K, 16*32*48*192*2)
srd(R_V, S_V, 16*32*48*192*2)
e(f"v_mov_b32 v{V_OOB}, 0x7ffffff0")
e(f"s_lshl_b32 s{S_FLB}, s{S_L}, 2")
e(f"s_add_u32 s{S_FLB}, s{S_FLB}, {SY_FLG}")
e("s_barrier")
if args.st0: stamp()
flag(0)
issue(1); flag(1)
if args.st0: stamp()
e(f"s_lshl_b32 s{S_T2}, s{S_BP}, 7")
e(f"s_add_u32 s{S_T2}, s{S_T2}, {WS_E}")
e(f"s_load_dword s{S_NONCE}, s[{S_WS}:{S_WS+1}], s{S_T2}")
srd(R_WO, S_WO, 6144*640*2)
srd(R_WS, S_WS, 268435456)
S_H0, S_RK, S_LF1, S_LPX = 10, 11, 12, 13
if args.rot2:
    if args.vord:
        e(f"s_and_b32 s{S_H0}, s{S_I}, 1")
        e(f"s_and_b32 s{S_RK}, s{S_BP}, 1")
        e(f"s_lshl_b32 s{S_RK}, s{S_RK}, 1")
        e(f"s_or_b32 s{S_H0}, s{S_H0}, s{S_RK}")
        e(f"s_lshr_b32 s{S_RK}, s{S_I}, 1")
    else:
        e(f"s_add_u32 s{S_H0}, s{S_I}, s{S_BP}")
        e(f"s_lshr_b32 s{S_RK}, s{S_BP}, 2")
else:
    e(f"s_mov_b32 s{S_H0}, s{S_I}")
    e(f"s_mov_b32 s{S_RK}, 0")
e("v_mul_u32_u24 v6, 384, v2")
e(f"v_add_u32 v{V_OKA}, v6, v8")
e(f"v_add_u32 v{V_OKB}, v6, v9")
e(f"s_lshl_b32 s{S_T2}, s{S_BP}, 1")
e(f"s_add_u32 s{S_T2}, s{S_T2}, s{S_T0}")
e(f"s_lshl_b32 s{S_T2}, s{S_T2}, 3")
e(f"s_add_u32 s{S_T2}, s{S_T2}, s{S_J}")
e(f"s_mul_i32 s{S_VB2}, s{S_T2}, {4*18432}")
e(f"s_lshl_b32 s{S_LF1}, s{S_T2}, 7")
e(f"s_add_u32 s{S_LF1}, s{S_LF1}, {WS_F1}")
e(f"s_mul_i32 s{S_LPX}, s{S_T2}, {4*5120}")
e(f"s_mul_i32 s{S_T3}, s{S_T1}, {24*384}")
e(f"s_add_u32 s{S_VB2}, s{S_VB2}, s{S_T3}")
e(f"s_mul_i32 s{S_T3}, s{S_I}, 18432")
e(f"s_add_u32 s{S_KB2}, s{S_VB2}, s{S_T3}")
e(f"s_mul_i32 s{S_KD}, s{S_T0}, 18432")
e(f"s_mul_i32 s{S_T3}, s{S_T1}, 3072")
e(f"s_add_u32 s{S_KD}, s{S_KD}, s{S_T3}")
e(f"s_mul_i32 s{S_WOB}, s{S_J}, {768*1280}")
e(f"s_mul_i32 s{S_T2}, s{S_L}, {16*1280}")
e(f"s_add_u32 s{S_WOB}, s{S_WOB}, s{S_T2}")
e(f"s_mul_i32 s{S_T2}, s{S_I}, 320")
e(f"s_add_u32 s{S_WOB}, s{S_WOB}, s{S_T2}")
e(f"s_mul_i32 s{S_LO}, s{S_L}, 5120")
e(f"s_mov_b32 s{S_T0}, 0x0ccccccd")
for n in range(5):
    e(f"v_add_u32 v2, {64*n}, v1")
    e(f"v_mul_hi_u32 v3, v2, s{S_T0}")
    e("v_mul_u32_u24 v4, 20, v3")
    e("v_sub_u32 v4, v2, v4")
    e("v_lshrrev_b32 v5, 2, v3")
    e("v_and_b32 v5, 2, v5")
    e("v_xor_b32 v4, v4, v5")
    e("v_mul_u32_u24 v3, 1280, v3")
    e(f"v_lshl_add_u32 v{V_OWO+n}, v4, 4, v3")
e("v_min_u32 v2, 59, v1")
e(f"v_lshlrev_b32 v{V_PF}, 7, v2")
V_T1, V_T2 = 26, 27
e(f"v_lshlrev_b32 v{V_T1}, 7, v1")
e("v_and_b32 v2, 7, v1")
e(f"v_lshlrev_b32 v{V_T2}, 7, v2")
def vpf():
    e(f"s_and_b32 s{S_SO}, s{S_H0}, 3")
    e(f"s_mul_i32 s{S_SO}, s{S_SO}, 18432")
    e(f"s_add_u32 s{S_SO}, s{S_SO}, s{S_VB2}")
    e(f"s_add_u32 s{S_T2}, s{S_SO}, 8192")
    e(f"buffer_load_dword v{LDUMMY}, v{V_T1}, {R(R_V)}, s{S_SO} offen")
    e(f"buffer_load_dword v{LDUMMY}, v{V_T2}, {R(R_V)}, s{S_T2} offen")
WST = [int(x) for x in args.wstag.split(",")] if args.wstag else []
VST = [int(x) for x in args.vstag.split(",")] if args.vstag else []
S_WP, S_VP = 14, 15
def stagsel(dst, lst):
    packed = sum(v << (4*k) for k, v in enumerate(lst))
    e(f"s_and_b32 s{S_T2}, s{S_IDX}, {len(lst)-1}")
    e(f"s_lshl_b32 s{S_T2}, s{S_T2}, 2")
    e(f"s_lshr_b32 s{dst}, {packed:#x}, s{S_T2}")
    e(f"s_and_b32 s{dst}, s{dst}, 15")
if WST: stagsel(S_WP, WST)
assert not VST
stagsel(S_VP, KST)
def kdma():
    for a in range(3):
        for cg in range(3):
            e(f"s_add_u32 m0, s{S_KD}, {3*PITCH + cg*6144 + a*1024}")
            e(f"s_add_u32 s{S_SO}, s{S_KB2}, {8*a*384 + cg*128}")
            e(f"buffer_load_dwordx4 v{V_OKB if a == 1 else V_OKA}, {R(R_K)}, s{S_SO} offen {args.kflag} lds")
    flag(F_K)
def wpf():
    e(f"s_lshl_b32 s{S_T2}, s{S_IDX}, 2"); e(f"s_add_u32 s{S_T2}, s{S_T2}, s{S_L}")
    e(f"s_mul_i32 s{S_T2}, s{S_T2}, 7680"); e(f"s_mul_i32 s{S_T3}, s{S_J}, {768*1280}"); e(f"s_add_u32 s{S_T2}, s{S_T2}, s{S_T3}")
    if args.wp2:
        e(f"buffer_load_dword v{LDUMMY}, v{V_PF}, {R(R_WO)}, s{S_T2} offen nt")
        e(f"buffer_load_dword v{LDUMMY}, v{V_PF}, {R(R_WO)}, s{S_T2} offen sc1")
    else:
        e(f"buffer_load_dword v{LDUMMY}, v{V_PF}, {R(R_WO)}, s{S_T2} offen")
V_T3 = 28
e("v_min_u32 v2, 23, v1")
e(f"v_mul_u32_u24 v{V_T3}, 384, v2")
def v2pf():
    e(f"s_and_b32 s{S_SO}, s{S_H0}, 3")
    e(f"s_mul_i32 s{S_SO}, s{S_SO}, 18432")
    e(f"s_add_u32 s{S_SO}, s{S_SO}, s{S_VB2}")
    e(f"s_cmp_eq_u32 s{S_RK}, 0")
    e(f"s_cselect_b32 s{S_T2}, 256, 0")
    e(f"s_add_u32 s{S_SO}, s{S_SO}, s{S_T2}")
    if args.vnt:
        e(f"buffer_load_dword v{LDUMMY}, v{V_T3}, {R(R_V)}, s{S_SO} offen nt")
        e(f"buffer_load_dword v{LDUMMY}, v{V_T3}, {R(R_V)}, s{S_SO} offen sc1")
    else:
        e(f"buffer_load_dword v{LDUMMY}, v{V_T3}, {R(R_V)}, s{S_SO} offen")
def extra(n):
    if n == args.v2pf: v2pf()
    if n in WST:
        e(f"s_cmp_lg_u32 s{S_WP}, {n}"); e(f"s_cbranch_scc1 L_nw{n}"); wpf(); e.lab(f"L_nw{n}")
    if n in KST:
        e(f"s_cmp_lg_u32 s{S_VP}, {n}"); e(f"s_cbranch_scc1 L_nv{n}"); kdma(); e.lab(f"L_nv{n}")
    if n == args.vppos and args.vfirst: vpf()
    extra2(n)
    if n == args.vppos and not args.vfirst: vpf()
def extra2(n):
    if n == args.wppos:
        e(f"s_lshl_b32 s{S_T2}, s{S_IDX}, 2"); e(f"s_add_u32 s{S_T2}, s{S_T2}, s{S_L}")
        e(f"s_mul_i32 s{S_T2}, s{S_T2}, 7680"); e(f"s_mul_i32 s{S_T3}, s{S_J}, {768*1280}"); e(f"s_add_u32 s{S_T2}, s{S_T2}, s{S_T3}")
        e(f"buffer_load_dword v{LDUMMY}, v{V_PF}, {R(R_WO)}, s{S_T2} offen")
issue(2); flag(2); extra(2)
issue(3); flag(3); extra(3)
for bi, (m, l) in enumerate(BARS):
    e("s_barrier")
    if bi in (0, len(BARS)-1): stamp()
    for n in l: issue(n); flag(n); extra(n)
def issue2(t):
    hd, kk = divmod(t, 3); buf = buf2(t)
    if kk == 0:
        e(f"s_{'xor_b32' if args.vord else 'add_u32'} s{S_T0}, s{S_H0}, {hd}")
        e(f"s_and_b32 s{S_T0}, s{S_T0}, 3")
        e(f"s_mul_i32 s{S_KW}, s{S_T0}, {192*1280}")
        e(f"s_add_u32 s{S_KW}, s{S_KW}, s{S_WOB}")
        e(f"s_mul_i32 s{S_XK}, s{S_T0}, 18432")
        e(f"s_add_u32 s{S_XK}, s{S_XK}, s{S_VB2}")
    e(f"s_add_u32 s{S_T3}, s{S_RK}, {kk}")
    e(f"s_cmp_eq_u32 s{S_T3}, 3")
    e(f"s_cselect_b32 s{S_T3}, 0, s{S_T3}")
    e(f"s_mul_i32 s{S_KX}, s{S_T3}, {64*1280}")
    e(f"s_add_u32 s{S_KX}, s{S_KX}, s{S_KW}")
    e(f"s_lshl_b32 s{S_T3}, s{S_T3}, 7")
    e(f"s_add_u32 s{S_T3}, s{S_T3}, s{S_XK}")
    for o in ["v0", "w0", "w1", "v1", "w2", "w3", "v2", "w4"]:
        n = int(o[1])
        if o[0] == "w":
            e(f"s_add_u32 m0, s{S_LO}, {buf*PITCH + XB + n*1024}")
            e(f"buffer_load_dwordx4 v{V_OWO+n}, {R(R_WO)}, s{S_KX} offen {'nt' if t < args.wont else ''} lds")
        else:
            e(f"s_add_u32 m0, s{S_LX}, {buf*PITCH + n*1024}")
            e(f"s_add_u32 s{S_SO}, s{S_T3}, {8*n*384}")
            e(f"buffer_load_dwordx4 v{V_OKB if n == 1 else V_OKA}, {R(R_V)}, s{S_SO} offen {'nt' if t < args.vnt else ''} lds")
    flag(F_T + t)
    if t < args.vnt: e(f"buffer_load_dword v{LDUMMY}, v{V_T3}, {R(R_V)}, s{S_T3} offen sc1")
    extra(11 + t)
e("s_waitcnt lgkmcnt(0)")
e(f"s_add_u32 s{S_NONCE}, s{S_NONCE}, {NSTEP:#x}")
e("s_barrier")
issue2(0)
stamp()
if args.t0bar == 7: e("s_barrier")
if args.t1early:
    e("s_barrier")
    issue2(1)
e("s_barrier")
e("s_barrier")
stamp()
for t in range(1 + args.t1early, 4): issue2(t)
stamp()
e("v_and_b32 v2, 7, v1")
e("v_lshlrev_b32 v2, 2, v2")
e("v_lshlrev_b32 v3, 4, v1")
for bi, (m, l) in enumerate(BARS2):
    e("s_barrier")
    stamp()
    if bi == len(BARS2) - 2 and args.apoll:
        e(f"buffer_load_dword v4, v2, {R(R_WS)}, s{S_LF1} offen sc1")
        napoll = 9*len(l)
    for t in l: issue2(t)
    if bi == len(BARS2) - 1:
        e(f"s_mov_b32 s{S_T2}, 0")
        if args.apoll:
            e(f"s_waitcnt vmcnt({napoll + 9*len(l)})")
            e(f"v_cmp_ne_u32 vcc, s{S_NONCE}, v4")
            e("s_cbranch_vccz L_lpolld")
        e.lab("L_lpoll")
        e(f"buffer_load_dword v4, v2, {R(R_WS)}, s{S_LF1} offen sc1")
        e(f"s_add_u32 s{S_T2}, s{S_T2}, 1")
        e(f"s_cmp_ge_u32 s{S_T2}, 100000")
        e("s_cbranch_scc1 L_lpolld")
        e("s_waitcnt vmcnt(0)")
        e(f"v_cmp_ne_u32 vcc, s{S_NONCE}, v4")
        e("s_cbranch_vccz L_lpolld")
        e(f"s_sleep {args.sleep}")
        e("s_branch L_lpoll")
        e.lab("L_lpolld")
PBUF = buf2(8)*PITCH
e(f"s_mul_i32 s{S_T3}, s{S_L}, 9216")
for pp in range(2):
    e(f"s_lshl_b32 s{S_T0}, s{S_T1}, 1")
    e(f"s_add_u32 s{S_T0}, s{S_T0}, {pp}")
    e(f"s_{'xor_b32' if args.vord else 'add_u32'} s{S_T0}, s{S_T0}, s{S_H0}")
    e(f"s_and_b32 s{S_T0}, s{S_T0}, 3")
    e(f"s_mul_i32 s{S_T0}, s{S_T0}, 5120")
    e(f"s_add_u32 s{S_T0}, s{S_T0}, s{S_LPX}")
    for n in range(5):
        if n == 4: e("s_mov_b32 exec_hi, 0")
        e(f"s_add_u32 m0, s{S_T3}, {PBUF + pp*4608 + n*1024}")
        e(f"s_add_u32 s{S_SO}, s{S_T0}, {WS_PX + n*1024}")
        e(f"buffer_load_dwordx4 v3, {R(R_WS)}, s{S_SO} offen sc1 lds")
        if n == 4: e("s_mov_b64 exec, -1")
flag(F_P)
e("s_waitcnt vmcnt(0)")
stamp()
stamp_store()
e("s_endpgm")

stamp_n[0] = 1 if STAMPS else 0
e.lab("L_compute")
S_B, S_JH, S_PXB, S_SO, S_CNT, S_F1, S_PXO, S_PB, S_F2, S_OUTB = S_A
V_L16, V_FL8, V_OUT, V_L12, V_SR, V_RDY = 10, 11, 12, 13, 14, 15
V_AW, V_AX = 16, 22
FR = [32, 68]
ACC = 104
V_AK, DUMMY = 182, 191
VA2 = [176, 177, 178, 179]
V_SXW, V_SXR, V_PL = 180, 181, 188
QF = 192
if args.prio: e(f"s_setprio {args.prio}")
e(f"v_lshlrev_b32 v{V_L16}, 4, v1")
e("v_lshlrev_b32 v2, 2, v0")
e(f"v_add_u32 v2, {SY_FLG}, v2")
e("v_mov_b32 v4, 1")
e("ds_write_b32 v2, v4")
e("s_getpc_b64 s[60:61]")
e.lab("L_pc")
e(f"s_sub_u32 s60, s60, L_pc-{NAME}")
e("s_subb_u32 s61, s61, 0")
e(f"s_lshl_b32 s{S_T0}, s{S_IDX}, 10")
e("v_and_b32 v2, 7, v1")
e("v_lshlrev_b32 v2, 7, v2")
e(f"v_add_u32 v2, s{S_T0}, v2")
e(f"global_load_dword v{DUMMY}, v2, s[60:61]")
e("s_waitcnt lgkmcnt(0)")
e("s_barrier")
e(f"s_lshl_b32 s{S_T2}, s{S_BP}, 7")
e(f"s_add_u32 s{S_T2}, s{S_T2}, {WS_E}")
e(f"s_load_dword s{S_NONCE}, s[{S_WS}:{S_WS+1}], s{S_T2}")
srd(R_OUT, S_OUT, 16*48*640*2)
srd(R_WS, S_WS, 268435456)
e(f"s_mov_b32 s{S_BUD}, 0")
e(f"s_lshr_b32 s{S_B}, s{S_W}, 1")
e(f"s_and_b32 s{S_JH}, s{S_W}, 1")
e(f"v_lshlrev_b32 v{V_L12}, 3, v1")
e(f"v_add_u32 v{V_L12}, 512, v{V_L12}")
e("v_lshrrev_b32 v2, 4, v1")
e("v_and_b32 v3, 15, v1")
e("v_mul_u32_u24 v4, 1280, v3")
e(f"v_lshl_add_u32 v{V_OUT}, v2, 3, v4")
e("v_and_b32 v4, 7, v1")
e(f"v_lshlrev_b32 v{V_FL8}, 2, v4")
e("v_and_b32 v4, 3, v1")
e("v_lshlrev_b32 v5, 2, v4")
e(f"v_add_u32 v{V_SR}, {SY_FLG}, v5")
e(f"s_xor_b32 s{S_T3}, s{S_W}, 1")
e(f"s_mul_i32 s{S_T2}, s{S_W}, 9216")
e(f"s_mul_i32 s{S_T1}, s{S_T3}, 9216")
e(f"s_add_u32 s{S_T2}, s{S_T2}, {SXB}")
e(f"s_add_u32 s{S_T1}, s{S_T1}, {SXB}")
e(f"v_add_u32 v{V_SXW}, s{S_T2}, v{V_L16}")
e(f"v_add_u32 v{V_SXR}, s{S_T1}, v{V_L16}")
e("v_lshrrev_b32 v8, 1, v3")
e("v_xor_b32 v4, v8, v2")
e("v_lshlrev_b32 v4, 4, v4")
e("v_lshl_add_u32 v4, v3, 7, v4")
e(f"s_mul_i32 s{S_T2}, s{S_B}, 6144")
e(f"v_add_u32 v{V_AX}, s{S_T2}, v4")
e(f"v_xor_b32 v{V_AX+1}, 64, v{V_AX}")
e(f"v_add_u32 v{V_AX+8}, {2*PITCH}, v{V_AX}")
e(f"v_add_u32 v{V_AX+9}, {2*PITCH}, v{V_AX+1}")
e("v_lshrrev_b32 v9, 1, v2")
e("v_xor_b32 v9, v9, v8")
e("v_and_b32 v4, 1, v2")
e("v_lshlrev_b32 v4, 3, v4")
e("v_lshl_add_u32 v4, v3, 7, v4")
e(f"s_mul_i32 s{S_T2}, s{S_JH}, 12")
e(f"s_mul_i32 s{S_T1}, s{S_B}, 18432")
e(f"s_add_u32 s{S_T1}, s{S_T1}, {3*PITCH}")
for k in range(6):
    e(f"s_add_u32 s{S_T3}, s{S_T2}, {2*k}")
    e(f"s_and_b32 s{S_T0}, s{S_T3}, 7")
    e(f"s_lshr_b32 s{S_T3}, s{S_T3}, 3")
    e(f"s_mul_i32 s{S_T3}, s{S_T3}, 6144")
    e(f"s_add_u32 s{S_T3}, s{S_T3}, s{S_T1}")
    e(f"v_xor_b32 v6, s{S_T0}, v9")
    e(f"v_lshl_add_u32 v6, v6, 4, v4")
    e(f"v_add_u32 v{V_AK+k}, s{S_T3}, v6")
e("v_lshrrev_b32 v4, 2, v1")
e("v_and_b32 v4, 7, v4")
e("v_lshrrev_b32 v5, 5, v1")
e("v_lshlrev_b32 v5, 11, v5")
e("v_lshl_add_u32 v5, v4, 7, v5")
e("v_and_b32 v6, 3, v1")
e("v_lshl_add_u32 v5, v6, 3, v5")
e("v_lshrrev_b32 v4, 1, v4")
e(f"s_mul_i32 s{S_T2}, s{S_JH}, 6")
for t in range(6):
    e(f"s_add_u32 s{S_T3}, s{S_T2}, {t}")
    e(f"s_and_b32 s{S_T0}, s{S_T3}, 3")
    e(f"s_lshr_b32 s{S_T3}, s{S_T3}, 2")
    e(f"s_lshl_b32 s{S_T3}, s{S_T3}, 12")
    e(f"s_add_u32 s{S_T3}, s{S_T3}, {XB}")
    e(f"v_xor_b32 v6, s{S_T0}, v4")
    e(f"v_lshl_add_u32 v6, v6, 5, v5")
    e(f"v_add_u32 v{V_AW+t}, s{S_T3}, v6")
    e(f"v_add_u32 v{V_AW+8+t}, {2*PITCH}, v{V_AW+t}")
e(f"s_lshl_b32 s{S_T2}, s{S_BP}, 1")
e(f"s_add_u32 s{S_T2}, s{S_T2}, s{S_B}")
e(f"s_mul_i32 s{S_OUTB}, s{S_T2}, {48*1280}")
e(f"s_lshl_b32 s{S_T2}, s{S_T2}, 3")
e(f"s_add_u32 s{S_T2}, s{S_T2}, s{S_J}")
e(f"s_mul_i32 s{S_PXB}, s{S_T2}, {4*5120}")
e(f"s_mul_i32 s{S_T3}, s{S_I}, 5120")
e(f"s_add_u32 s{S_PXO}, s{S_PXB}, s{S_T3}")
e(f"s_lshl_b32 s{S_F1}, s{S_T2}, 7")
e(f"s_add_u32 s{S_F1}, s{S_F1}, {WS_F1}")
e(f"s_mul_i32 s{S_T3}, s{S_I}, 320")
e(f"s_add_u32 s{S_OUTB}, s{S_OUTB}, s{S_T3}")
e(f"s_mul_i32 s{S_T3}, s{S_JH}, 160")
e(f"s_add_u32 s{S_OUTB}, s{S_OUTB}, s{S_T3}")
e("v_lshrrev_b32 v2, 4, v1")
e("v_lshrrev_b32 v3, 2, v1")
e("v_and_b32 v3, 3, v3")
e("v_lshl_add_u32 v3, v2, 3, v3")
e("v_mul_u32_u24 v3, 320, v3")
e("v_and_b32 v4, 3, v1")
e("v_lshl_add_u32 v3, v4, 3, v3")
e("v_and_b32 v2, 1, v2")
e("v_lshlrev_b32 v2, 5, v2")
e("v_add_u32 v4, v3, v2")
e("v_sub_u32 v5, v3, v2")
e(f"s_add_u32 s{S_T3}, s{S_T3}, {XB}")
e(f"s_cmp_eq_u32 s{S_JH}, 0")
e("s_cselect_b64 vcc, -1, 0")
e("v_cndmask_b32 v6, v5, v4, vcc")
e("v_cndmask_b32 v7, v4, v5, vcc")
e(f"v_add_u32 v{VA2[0]}, s{S_T3}, v6")
e(f"v_add_u32 v{VA2[2]}, s{S_T3}, v7")
e(f"v_add_u32 v{VA2[1]}, {2*PITCH}, v{VA2[0]}")
e(f"v_add_u32 v{VA2[3]}, {2*PITCH}, v{VA2[2]}")
cs = (192 ** -0.5) * math.log2(math.e)
cbits = struct.unpack("<I", struct.pack("<f", cs))[0]
S_SC = S_T4
e(f"s_mov_b32 s{S_SC}, {cbits:#x}")
e("s_waitcnt lgkmcnt(0)")
e(f"s_add_u32 s{S_NONCE}, s{S_NONCE}, {NSTEP:#x}")
V_NON, V_FO = 189, 190
e(f"v_mov_b32 v{V_NON}, s{S_NONCE}")
e(f"s_lshl_b32 s{S_T0}, s{S_I}, 1")
e(f"s_add_u32 s{S_T0}, s{S_T0}, s{S_JH}")
e(f"s_lshl_b32 s{S_T0}, s{S_T0}, 2")
e(f"v_mov_b32 v{V_FO}, s{S_T0}")

slow = []
def fread(n):
    while n in NOFLAG: n += 1
    return f"ds_read_b32 v{V_RDY}, v{V_SR} offset:{16*n}"
def fcmp(): e(f"v_cmp_ne_u32 vcc, 0, v{V_RDY}")
def check(n):
    e(f"s_cbranch_vccnz L_slow{n}")
    e.lab(f"L_cont{n}")
    slow.append(n)
def fwait(n):
    e(f"s_branch L_slow{n}")
    e.lab(f"L_cont{n}")
    slow.append(n)
def read_ops(s, ks, fs):
    buf = bufof(s)
    aset = 8*(buf//2); boff = (buf % 2)*PITCH
    F = FR[fs]
    def xr(qt): return f"ds_read_b128 {vr(F+24+4*qt,4)}, v{V_AX+aset+ks} offset:{boff+qt*2048}"
    def wr(t, m): return f"ds_read_b64_tr_b16 {vr(F+4*t+2*m,2)}, v{V_AW+aset+t} offset:{boff+ks*12288+m*1024}"
    ops = [xr(0), wr(0,0), wr(0,1), xr(1), xr(2)]
    for t in range(1, 6): ops += [wr(t,0), wr(t,1)]
    return ops
def mfma_ops(fs, first):
    F = FR[fs]; ops = []
    for t in range(6):
        for qt in range(3):
            d = ACC + (t*3+qt)*4
            c = "0" if first else vr(d,4)
            ops.append(f"v_mfma_f32_16x16x32_bf16 {vr(d,4)}, {vr(F+4*t,4)}, {vr(F+24+4*qt,4)}, {c}")
    return ops
def interleave(mf, reads, first2=4, valu=None, vper=0, vstart=0):
    rq = list(reads)
    for k, m in enumerate(mf):
        e(m)
        for _ in range(2 if k < first2 else 1):
            if rq: e(rq.pop(0))
        if valu is not None and k >= vstart:
            n = vper
            while n > 0 and valu:
                x = valu.pop(0); e.emit(x)
                n -= 2 if (isinstance(x, str) and x.startswith(("v_exp", "v_rcp"))) else 1
    assert not rq
def merge(mf, fill, per, start=0):
    fq = list(fill)
    for k, m in enumerate(mf):
        e(m)
        if k >= start:
            for _ in range(per):
                if fq: e.emit(fq.pop(0))
    return fq

fwait(0)
stamp()
for x in read_ops(0, 0, 0): e(x)
STS = [int(x) for x in args.st.split(",")]
for s in range(10):
    e.c(f"--- stage {s} kstep 0")
    e("s_waitcnt lgkmcnt(0)")
    interleave(mfma_ops(0, s == 0), read_ops(s, 1, 1) + ([fread(s+1)] if (s < 9 or args.kfast) else []))
    e("s_waitcnt lgkmcnt(0)")
    e.c(f"--- stage {s} kstep 1")
    mf = mfma_ops(1, False)
    if s < 9 or args.kfast: fcmp()
    e(mf[0])
    if s in CB or (s == 9 and args.kfast): e("s_barrier")
    if s < 9 or args.kfast: check(s+1)
    if s in STS: stamp()
    if s < 9:
        interleave(mf[1:], read_ops(s+1, 0, 0))
def Z1(tt): return 104 + 12*tt
def G(tt): return 164 + 18*tt
def VWA(tt, kt): return G(tt) + 6 + 4*kt
def vwb(hd, tt): return [Z1(tt), Z1(tt)+6, G(tt), G(tt)+6][hd]
KF = 32
SB = 68
SAQ = [Z1(tt)+6 for tt in range(5)] + [G(0), G(4), 26, G(1)]
kreads = [f"ds_read_b64 {vr(KF+(kt*3+u)*4+2*ee,2)}, v{V_AK+2*u+ee} offset:{kt*2048}" for u in range(3) for kt in range(3) for ee in range(2)]
def qcvt(u):
    ops = []
    for hh in range(2):
        for qt in range(3):
            q = QF + (u*3+qt)*4
            a = ACC + ((2*u+hh)*3+qt)*4
            ops += [f"v_cvt_pk_bf16_f32 v{q+2*hh}, v{a}, v{a+1}", f"v_cvt_pk_bf16_f32 v{q+2*hh+1}, v{a+2}, v{a+3}"]
    return ops
REMAP = {}
mv = []
for k, r in enumerate(VA2 + [V_NON, V_FO]):
    n = [16, 17, 18, 19, 20, 21][k]
    mv.append(f"v_mov_b32 v{n}, v{r}")
    REMAP[r] = n
VA2 = [REMAP[r] for r in VA2]; V_NON = REMAP[V_NON]; V_FO = REMAP[V_FO]
def smf(u, kt, qt):
    d = SAQ[kt*3+qt]
    c = "0" if u == 0 else vr(d,4)
    return f"v_mfma_f32_16x16x32_bf16 {vr(d,4)}, {vr(KF+(kt*3+u)*4,4)}, {vr(QF+(u*3+qt)*4,4)}, {c}"
if args.kfast:
    assert F_K == 10 and args.t1early
    fill = kreads + qcvt(0) + qcvt(1) + qcvt(2)
    fill = merge(mf[1:], fill, 2)
    stamp()
    stamp()
    def accsrc(reg): return (reg - ACC) // 24 if ACC <= reg < ACC + 72 else -1
    order = sorted(range(9), key=lambda k: max(accsrc(SAQ[k]), accsrc(SAQ[k]+3)))
    e("s_waitcnt lgkmcnt(0)")
    done = 36 - len(fill)
    for k in order:
        need = 12*(max(accsrc(SAQ[k]), accsrc(SAQ[k]+3)) + 1)
        need = max(need, 12)
        while done < need:
            e(fill.pop(0)); done += 1
        e(smf(0, k // 3, k % 3))
        for _ in range(2):
            if fill: e(fill.pop(0)); done += 1
    assert not fill
    merge([smf(1, kt, qt) for kt in range(3) for qt in range(3)], mv, 1)
else:
    fill = qcvt(0) + qcvt(1) + qcvt(2)
    fill = merge(mf[1:], fill, 2, start=8)
    for x in fill[:6]: e(x)
    fill = fill[6:]
    stamp()
    if args.t1early: e("s_barrier")
    fwait(F_K)
    stamp()
    for x in kreads: e(x)
    for x in fill: e(x)
    for x in mv: e(x)
    for u in range(2):
        e(f"s_waitcnt lgkmcnt({12-6*u})")
        for kt in range(3):
            for qt in range(3): e(smf(u, kt, qt))
    e("s_waitcnt lgkmcnt(0)")
TMPQ = [68, 72, 76]
SB = 80
def slast(jh):
    def m(kt, qt, d): return f"v_mfma_f32_16x16x32_bf16 {vr(d,4)}, {vr(KF+(kt*3+2)*4,4)}, {vr(QF+(6+qt)*4,4)}, {vr(SAQ[kt*3+qt],4)}"
    snd = 2 - 2*jh; keep = 2*jh
    for kt in range(3): e(m(kt, snd, TMPQ[kt]))
    for kt in range(3): e(m(kt, 1, SAQ[kt*3+1]))
    for kt in range(3): e(m(kt, keep, SAQ[kt*3]))
    for kt in range(3): e(f"ds_write_b128 v{V_SXW}, {vr(TMPQ[kt],4)} offset:{kt*1024}")
    for kt in range(3): e(f"ds_write_b128 v{V_SXW}, {vr(SAQ[kt*3+1],4)} offset:{(3+kt)*1024}")
e(f"s_cmp_lg_u32 s{S_JH}, 0")
e("s_cbranch_scc1 L_sl1")
slast(0)
e.lab("L_sld")
e("s_waitcnt lgkmcnt(0) vmcnt(0)")
e("s_barrier")
stamp()
for k in range(6): e(f"ds_read_b128 {vr(SB+4*k,4)}, v{V_SXR} offset:{k*1024}")
def sreg(kt, qt, r): return SAQ[kt*3+qt] + r
NQ = 2
for qt in range(NQ):
    e(f"s_waitcnt lgkmcnt({3-3*qt})")
    if qt == NQ-1: e("s_barrier")
    for kt in range(3):
        for h2 in range(2):
            e(f"v_pk_add_f32 {vr(sreg(kt,qt,2*h2),2)}, {vr(sreg(kt,qt,2*h2),2)}, {vr(SB+4*(qt*3+kt)+2*h2,2)}")
M = [2, 4, 6]; T = [3, 5, 7]
SM = []
for qt in range(NQ):
    vals = [sreg(kt, qt, r) for kt in range(3) for r in range(4)]
    SM.append(f"v_max3_f32 v{M[qt]}, v{vals[0]}, v{vals[1]}, v{vals[2]}")
    for k in range(3, 11, 2): SM.append(f"v_max3_f32 v{M[qt]}, v{M[qt]}, v{vals[k]}, v{vals[k+1]}")
    SM.append(f"v_max_f32 v{M[qt]}, v{M[qt]}, v{vals[11]}")
def xl(op):
    for sw in ("v_permlane32_swap_b32", "v_permlane16_swap_b32"):
        for qt in range(NQ): SM.append(f"v_mov_b32 v{T[qt]}, v{M[qt]}")
        for qt in range(NQ): SM.append(f"{sw} v{M[qt]}, v{T[qt]}")
        for qt in range(NQ): SM.append(f"{op} v{M[qt]}, v{M[qt]}, v{T[qt]}")
xl("v_max_f32")
for qt in range(NQ): SM.append(f"v_mul_f32 v{M[qt]}, s{S_SC}, v{M[qt]}")
for qt in range(NQ):
    for kt in range(3):
        for r in range(4):
            x = sreg(kt, qt, r); SM.append(f"v_fma_f32 v{x}, v{x}, s{S_SC}, -v{M[qt]}")
for qt in range(NQ):
    for kt in range(3):
        for r in range(4):
            x = sreg(kt, qt, r); SM.append(f"v_exp_f32 v{x}, v{x}")
for qt in range(NQ):
    vals = [sreg(kt, qt, r) for kt in range(3) for r in range(4)]
    SM.append(f"v_add_f32 v{M[qt]}, v{vals[0]}, v{vals[1]}")
    for k in range(2, 12): SM.append(f"v_add_f32 v{M[qt]}, v{M[qt]}, v{vals[k]}")
xl("v_add_f32")
for qt in range(NQ): SM.append(f"v_rcp_f32 v{M[qt]}, v{M[qt]}")
for qt in range(NQ):
    for kt in range(3):
        for r in range(4):
            x = sreg(kt, qt, r); SM.append(f"v_mul_f32 v{x}, v{x}, v{M[qt]}")
    for kt in range(3):
        x = sreg(kt, qt, 0)
        d = sreg(0, qt, 2*kt) if kt < 2 else sreg(1, qt, 0)
        SM += [f"v_cvt_pk_bf16_f32 v{d}, v{x}, v{x+1}", f"v_cvt_pk_bf16_f32 v{d+1}, v{x+2}, v{x+3}"]
def ppublish():
    e(f"s_lshl_b32 s{S_T0}, s{S_JH}, 10")
    e(f"s_add_u32 s{S_T1}, s{S_T0}, s{S_PXO}")
    e(f"s_add_u32 s{S_T0}, s{S_T0}, s{S_T1}")
    e(f"buffer_store_dwordx4 {vr(sreg(0,0,0),4)}, v{V_L16}, {R(R_WS)}, s{S_T0} offen sc1")
    e(f"buffer_store_dwordx2 {vr(sreg(1,0,0),2)}, v{V_L12}, {R(R_WS)}, s{S_T1} offen offset:2560 sc1")
    e(f"s_cmp_lg_u32 s{S_JH}, 0")
    e("s_cbranch_scc1 L_pp1")
    e(f"buffer_store_dwordx4 {vr(sreg(0,1,0),4)}, v{V_L16}, {R(R_WS)}, s{S_PXO} offen offset:1024 sc1")
    e.lab("L_ppd")
for x in SM[:args.smpre]: e(x)
SM = SM[args.smpre:]
pubstep = None
if not SM: ppublish(); pubstep = -1
stamp()
def read2(t, ks, fs):
    buf = buf2(t)
    hi = buf // 2; boff = (buf % 2)*PITCH
    F = FR[fs]
    def vrd(kt): return f"ds_read_b128 {vr(F+24+4*kt,4)}, v{V_AX+8*hi+ks} offset:{boff+kt*2048}"
    def wr(tt, m): return f"ds_read_b64_tr_b16 {vr(F+4*tt+2*m,2)}, v{VA2[2*(tt%2)+hi]} offset:{boff+ks*10240+m*1280+tt*32}"
    ops = [vrd(0), wr(0,0), wr(0,1), vrd(1), vrd(2)]
    for tt in range(1, 5): ops += [wr(tt,0), wr(tt,1)]
    return ops
def mf2(fs, first):
    F = FR[fs]; ops = []
    for tt in range(5):
        for kt in range(3):
            d = VWA(tt, kt)
            c = "0" if first else vr(d,4)
            ops.append(f"v_mfma_f32_16x16x32_bf16 {vr(d,4)}, {vr(F+24+4*kt,4)}, {vr(F+4*tt,4)}, {c}")
    return ops
def vwcvt(hd, tt):
    b = vwb(hd, tt); ops = []
    for kt in range(3):
        a = VWA(tt, kt)
        ops += [f"v_cvt_pk_bf16_f32 v{b+2*kt}, v{a}, v{a+1}", f"v_cvt_pk_bf16_f32 v{b+2*kt+1}, v{a+2}, v{a+3}"]
    return ops
V_PA16, V_PA8 = 24, 25
e(f"s_mul_i32 s{S_T0}, s{S_B}, 18432")
e(f"s_add_u32 s{S_T0}, s{S_T0}, {buf2(8)*PITCH}")
e(f"v_add_u32 v{V_PA16}, s{S_T0}, v{V_L16}")
e(f"v_add_u32 v{V_PA8}, s{S_T0}, v{V_L12}")
def pread(dst, pos, qt, kt):
    if kt < 2: return f"ds_read_b64 {vr(dst,2)}, v{V_PA16} offset:{pos*4608 + qt*1024 + kt*8}"
    return f"ds_read_b64 {vr(dst,2)}, v{V_PA8} offset:{pos*4608 + 2560 + qt*512}"
def pfrag(dst, ks, qt):
    if ks % 3 == 0:
        return [f"ds_read_b128 {vr(dst,4)}, v{V_PA16} offset:{(2*ks//3)*4608 + qt*1024}"]
    return [pread(dst + 2*h, (2*ks+h)//3, qt, (2*ks+h) % 3) for h in range(2)]
fwait(F_T)
if args.p2st: stamp_n[0] = 1
stamp()
for x in read2(0, 0, 0): e(x)
B2M = [m for m, l in BARS2]
carry = []
PQ_ = [FR[0] + 4*k for k in range(9)]
for t in range(12):
    hd, kk = divmod(t, 3)
    for ks in range(2):
        step = 2*t + ks
        e.c(f"--- ring2 stage {t} kstep {ks}")
        e("s_waitcnt lgkmcnt(0)")
        mf = mf2(ks, kk == 0 and ks == 0)
        nf = F_T+t+1 if t < 11 else F_P
        if ks == 0:
            rq = read2(t, 1, 1) + [fread(nf)]
        else:
            fcmp()
            e(mf[0]); mf = mf[1:]
            if t in B2M: e("s_barrier")
            check(nf)
            if args.p2st or t in (2, 5, 8): stamp()
            rq = read2(t+1, 0, 0) if t < 11 else sum([pfrag(PQ_[k], k, 0) for k in range(6)], [])
        if pubstep is not None and step == pubstep + args.ackdelay:
            e(mf[0]); mf = mf[1:]
            e("s_waitcnt vmcnt(0)")
            e(f"buffer_store_dword v{V_NON}, v{V_FO}, {R(R_WS)}, s{S_F1} offen sc1")
        last = (kk == 2 and ks == 1)
        if carry:
            interleave(mf, rq, first2=3, valu=carry, vper=2)
            assert not carry
        elif last:
            assert not (hd == 1 and (SM or pubstep is None)), "softmax must finish within head 1"
            carry = sum([vwcvt(hd, tt) for tt in range(5)], [])
            interleave(mf, rq, first2=3, valu=carry, vper=2, vstart=5)
        elif SM and step >= args.smstart:
            interleave(mf, rq, first2=3, valu=SM, vper=args.vper)
            if not SM:
                ppublish(); pubstep = step
        else:
            interleave(mf, rq, first2=3)
sys.stderr.write(f"pubstep {pubstep}\n")
def afr(tt, ks): return (Z1(tt) + 4*ks) if ks < 3 else (G(tt) + 4*(ks-3))
OUTQ = [FR[1] + 4*k for k in range(9)] + [G(tt) + 12 for tt in range(5)] + [26]
def OUTR_(tt, qt): return OUTQ[qt*5 + tt]
OUTR = list(OUTQ)
e(f"s_lshl_b32 s{S_T0}, s{S_IDX}, 2")
e(f"s_add_u32 s{S_T0}, s{S_T0}, s{S_W}")
e(f"s_lshl_b32 s{S_F2}, s{S_T0}, 10")
e(f"s_add_u32 s{S_F2}, s{S_F2}, {WS_F2}")
e(f"s_lshl_b32 s{S_PB}, s{S_T0}, 16")
e(f"s_add_u32 s{S_PB}, s{S_PB}, {WS_P}")
e(f"s_lshl_b32 s{S_T1}, s{S_J}, 10")
e(f"s_add_u32 s{S_T1}, s{S_T1}, s{S_PB}")
OWN = 2
def pstore(p):
    a0 = OUTR[2*p]; a1 = OUTR[min(2*p+1, 14)]
    ops = [[f"s_cmp_eq_u32 s{S_J}, {p}", f"s_cbranch_scc1 L_own{p}",
            f"v_cvt_pk_bf16_f32 v{a0}, v{a0}, v{a0+1}", f"v_cvt_pk_bf16_f32 v{a0+1}, v{a0+2}, v{a0+3}"]]
    if p < 7:
        ops[0] += [f"v_cvt_pk_bf16_f32 v{a0+2}, v{a1}, v{a1+1}", f"v_cvt_pk_bf16_f32 v{a0+3}, v{a1+2}, v{a1+3}"]
    ops[0] += [f"s_add_u32 s{S_SO}, s{S_T1}, {p*8192}",
               f"buffer_store_dwordx4 {vr(a0,4)}, v{V_L16}, {R(R_WS)}, s{S_SO} offen {args.psf}", f"L_ownr{p}:"]
    return ops
nq = 6
pend = list(range(8))
for qt in range(3):
    for ks in range(6):
        idx = qt*6 + ks
        pq = PQ_[idx % 9]
        fm = [f"v_mfma_f32_16x16x32_bf16 {vr(OUTR_(tt,qt),4)}, {vr(afr(tt,ks),4)}, {vr(pq,4)}, {'0' if ks == 0 else vr(OUTR_(tt,qt),4)}" for tt in range(5)]
        if ks % 3 == 0: e("s_waitcnt lgkmcnt(0)")
        rq = []
        if ks % 3 == 0:
            for _ in range(3):
                if nq < 18:
                    rq += pfrag(PQ_[nq % 9], nq % 6, nq // 6); nq += 1
        interleave(fm, rq, first2=5, valu=carry, vper=3)
        if args.early and ks >= 1 and pend and 2*pend[0]+1 < 5*qt:
            e.emit(pstore(pend.pop(0)))
assert not carry
stamp()
for p in pend: e.emit(pstore(p))
e(f"s_lshl_b32 s{S_T1}, s{S_J}, 2")
e(f"s_add_u32 s{S_T1}, s{S_T1}, s{S_F2}")
e(f"v_lshlrev_b32 v22, 5, v{V_FL8}")
e(f"s_lshl_b32 s{S_T2}, s{S_J}, 7")
e(f"s_add_u32 s{S_F2}, s{S_F2}, s{S_T2}")
e(f"s_lshl_b32 s{S_T0}, s{S_J}, 13")
e(f"s_add_u32 s{S_T0}, s{S_T0}, s{S_PB}")
for k in range(1, 8):
    e(f"s_add_u32 s{S_T2}, s{S_J}, {k}")
    e(f"s_and_b32 s{S_T2}, s{S_T2}, 7")
    e(f"s_lshl_b32 s{S_T2}, s{S_T2}, 10")
    e(f"s_add_u32 s{3+k}, s{S_T2}, s{S_T0}")
e("s_mov_b64 exec, 0xff")
e("s_waitcnt vmcnt(0)")
e(f"buffer_store_dword v{V_NON}, v22, {R(R_WS)}, s{S_T1} offen sc1")
D = args.f2atom
e(f"s_mov_b32 s{S_CNT}, 0")
for k in range(D-1):
    e(f"v_mov_b32 v{140+k}, 0")
    e(f"buffer_atomic_or v{140+k}, v{V_FL8}, {R(R_WS)}, s{S_F2} offen sc0 sc1")
    e(f"s_sleep {args.f2sleep}")
e.lab("L_poll2")
for k in range(D):
    nw = (k + D - 1) % D
    e(f"v_mov_b32 v{140+nw}, 0")
    e(f"buffer_atomic_or v{140+nw}, v{V_FL8}, {R(R_WS)}, s{S_F2} offen sc0 sc1")
    e(f"s_waitcnt vmcnt({D-1})")
    e(f"v_cmp_ne_u32 vcc, s{S_NONCE}, v{140+k}")
    e("s_cbranch_vccz L_poll2_done")
    e(f"s_sleep {args.f2sleep}")
e(f"s_add_u32 s{S_CNT}, s{S_CNT}, 1")
e(f"s_cmp_lt_u32 s{S_CNT}, 50000")
e("s_cbranch_scc1 L_poll2")
e.lab("L_poll2_done")
e("s_mov_b64 exec, -1")
stamp()
for k in range(1, 8):
    e(f"buffer_load_dwordx4 {vr(192+4*k,4)}, v{V_L16}, {R(R_WS)}, s{3+k} offen {args.plf}")
e(f"s_mov_b32 s{S_T4}, 0xffff0000")
for k in range(1, 8):
    e(f"s_waitcnt vmcnt({7-k})")
    for d in range(4):
        e(f"v_lshlrev_b32 v{148+2*d}, 16, v{192+4*k+d}")
        e(f"v_and_b32 v{148+2*d+1}, s{S_T4}, v{192+4*k+d}")
    for d in range(4):
        e(f"v_pk_add_f32 {vr(OWN+2*d,2)}, {vr(OWN+2*d,2)}, {vr(148+2*d,2)}")
res = [OWN, OWN+4]
for z in range(2):
    b = res[z]
    e(f"v_cvt_pk_bf16_f32 v{32+2*z}, v{b}, v{b+1}")
    e(f"v_cvt_pk_bf16_f32 v{33+2*z}, v{b+2}, v{b+3}")
    e(f"s_lshl_b32 s{S_T0}, s{S_J}, 1")
    e(f"s_add_u32 s{S_T0}, s{S_T0}, {z}")
    if z == 1:
        e(f"s_cmp_eq_u32 s{S_T0}, 15")
        e("s_cbranch_scc1 L_fin")
    e(f"s_mul_i32 s{S_T2}, s{S_T0}, 13")
    e(f"s_lshr_b32 s{S_T2}, s{S_T2}, 6")
    e(f"s_mul_i32 s{S_T1}, s{S_T2}, 5")
    e(f"s_sub_u32 s{S_T1}, s{S_T0}, s{S_T1}")
    e(f"s_lshl_b32 s{S_T1}, s{S_T1}, 5")
    e(f"s_mul_i32 s{S_T2}, s{S_T2}, {16*1280}")
    e(f"s_add_u32 s{S_SO}, s{S_OUTB}, s{S_T1}")
    e(f"s_add_u32 s{S_SO}, s{S_SO}, s{S_T2}")
    e(f"buffer_store_dwordx2 {vr(32+2*z,2)}, v{V_OUT}, {R(R_OUT)}, s{S_SO} offen {args.outf}")
e.lab("L_fin")
e(f"s_or_b32 s{S_T0}, s{S_J}, s{S_I}")
e(f"s_or_b32 s{S_T0}, s{S_T0}, s{S_JH}")
e(f"s_cmp_lg_u32 s{S_T0}, 0")
e("s_cbranch_scc1 L_noep")
e("s_barrier")
e(f"s_cmp_lg_u32 s{S_W}, 0")
e("s_cbranch_scc1 L_noep")
e(f"s_lshl_b32 s{S_T2}, s{S_BP}, 7")
e(f"s_add_u32 s{S_T2}, s{S_T2}, {WS_E}")
e("s_mov_b64 exec, 1")
e(f"buffer_store_dword v{V_NON}, v{V_FO}, {R(R_WS)}, s{S_T2} offen sc1")
e("s_mov_b64 exec, -1")
e.lab("L_noep")
if STAMPS:
    e("s_waitcnt vmcnt(0)")
    stamp()
stamp_store()
e.lab("L_end")
e("s_endpgm")
e.lab("L_sl1")
e("s_nop 7")
slast(1)
e("s_branch L_sld")
e.lab("L_pp1")
e(f"buffer_store_dwordx2 {vr(sreg(1,1,0),2)}, v{V_L12}, {R(R_WS)}, s{S_PXO} offen offset:3072 sc1")
e("s_branch L_ppd")
for p in range(8):
    e.lab(f"L_own{p}")
    e("s_nop 7")
    for z in range(2):
        a = OUTR[min(2*p+z, 14)]
        for r in range(4): e(f"v_mov_b32 v{OWN+4*z+r}, v{a+r}")
    e(f"s_branch L_ownr{p}")
for n in slow:
    e.lab(f"L_slow{n}")
    e(fread(n))
    budget(f"L_cont{n}")
    e("s_waitcnt lgkmcnt(0)")
    fcmp()
    e(f"s_cbranch_vccnz L_slow{n}")
    e(f"s_branch L_cont{n}")
e.raw(".p2align 8")
e.raw(".fill 4096, 4, 0xBF810000")
hdr = [
 "; Fused MHA block (cached K/V), hand-written generator output (dev/gen17.py).",
 "; kernarg: x, k_cache, v_cache, wq, wo, out, debug, ws (8 pointers).",
 "; 256 workgroups (one per CU), 8 waves: waves 0-3 compute (MFMA), waves 4-7 stream operands into LDS (LDS-DMA).",
 "; workgroup (j = id&7, i, bp): head 4j+i, batches 2bp,2bp+1:  Q = x Wq_h ; S = Q K^T ; P = softmax(S*scale) (true row max);",
 ";   then, for the 4 heads of group j and 160 output columns: partial = sum_h P_h (V_h Wo_h);",
 ";   P is exchanged inside the group, the 8 partials of a tile are reduced across groups (write-through stores + flags in ws).",
 "; hand-off flags carry a per-launch nonce derived from an epoch word in ws; correctness does not depend on placement.",
 "; @launch grid=(256,1,1) block=(512,1,1) lds=163840",
 '.amdgcn_target "amdgcn-amd-amdhsa--gfx950"', ".text"]
desc = f""".amdhsa_kernel {NAME}
  .amdhsa_next_free_vgpr 256
  .amdhsa_next_free_sgpr 102
  .amdhsa_accum_offset 256
  .amdhsa_group_segment_fixed_size 0
  .amdhsa_kernarg_size 64
  .amdhsa_user_sgpr_count 2
  .amdhsa_user_sgpr_kernarg_segment_ptr 1
  .amdhsa_system_sgpr_workgroup_id_x 1
.end_amdhsa_kernel"""
body = hazard_pad(e.L, verbose=True)
sys.stdout.write("\n".join(hdr + body) + '\n.section .rodata,"a"\n.p2align 6\n' + desc + "\n")
```

```python
import sys, math, argparse, struct
from asmlib import *
ap = argparse.ArgumentParser()
ap.add_argument("--stamps", action="store_true")
ap.add_argument("--clk", action="store_true")
ap.add_argument("--kflag", default="nt")
ap.add_argument("--vflag", default="")
ap.add_argument("--sleep", type=int, default=1)
ap.add_argument("--prio", type=int, default=2)
ap.add_argument("--st", default="2,5")
ap.add_argument("--bars", default="1:4,5;3:6;4:7;5:8;6:9")
ap.add_argument("--bars2", default="1:4,5;3:6,7;5:8,9;6:10;7:11;8:")
ap.add_argument("--wppos", type=int, default=-1)
ap.add_argument("--early", type=int, default=1)
ap.add_argument("--v2pf", type=int, default=12)
ap.add_argument("--apoll", type=int, default=1)
ap.add_argument("--smstart", type=int, default=0)
ap.add_argument("--vord", type=int, default=0)
ap.add_argument("--st0", action="store_true")
ap.add_argument("--wp2", type=int, default=0)
ap.add_argument("--kfast", type=int, default=1)
ap.add_argument("--tlbw", type=int, default=-1)
ap.add_argument("--r2idle", type=int, default=0)
ap.add_argument("--lstag", default="")
ap.add_argument("--lnt", type=int, default=0)
ap.add_argument("--kstag", default="8,9,6,7")
ap.add_argument("--t0bar", type=int, default=7)
ap.add_argument("--gw", type=int, default=4)
ap.add_argument("--gx", type=int, default=4)
ap.add_argument("--noflag", default="")
ap.add_argument("--v8pf", type=int, default=-1)
ap.add_argument("--psf", default="sc1")
ap.add_argument("--plf", default="sc1")
ap.add_argument("--outf", default="")
ap.add_argument("--wsp", type=lambda x: int(x, 0), default=4 << 20)
ap.add_argument("--wstag", default="3,4,8,9")
ap.add_argument("--vstag", default="")
ap.add_argument("--rot2", type=int, default=1)
ap.add_argument("--vnt", type=int, default=0)
ap.add_argument("--wont", type=int, default=0)
ap.add_argument("--wnt", type=int, default=0)
ap.add_argument("--xnt", type=int, default=0)
ap.add_argument("--vper", type=int, default=3)
ap.add_argument("--ackdelay", type=int, default=3)
ap.add_argument("--f2atom", type=int, default=2)
ap.add_argument("--f2sleep", type=int, default=2)
ap.add_argument("--ackstep", type=int, default=1)
ap.add_argument("--pollstep", type=int, default=9)
ap.add_argument("--smpre", type=int, default=26)
ap.add_argument("--p2st", action="store_true")
ap.add_argument("--vppos", type=int, default=-1)
ap.add_argument("--vfirst", type=int, default=1)
ap.add_argument("--pburst", type=int, default=1)
ap.add_argument("--t1early", type=int, default=1)
ap.add_argument("--pl2", type=int, default=12)
ap.add_argument("--pl3", type=int, default=18)
args = ap.parse_args()
STAMPS = args.stamps
def parse_sched(t):
    out = []
    for it in t.split(";"):
        m, l = it.split(":")
        out.append((int(m), [int(x) for x in l.split(",") if x]))
    return out
BARS = parse_sched(args.bars)
for m, l in BARS:
    for n in l: assert m >= (n - 4 if n < 6 else n - 3)
assert sorted(sum([l for m, l in BARS], [])) == list(range(4, 10))
KST = [int(x) for x in args.kstag.split(",")]
for n in KST: assert [m for m, l in BARS if n in l][0] >= 2
CB = [m for m, l in BARS] + ([7, 8] if args.t0bar == 7 else [8])
BARS2 = parse_sched(args.bars2)
for m, l in BARS2:
    for n in l: assert m >= n - 4
assert sorted(sum([l for m, l in BARS2], [])) == list(range(4, 12))
assert BARS2[-1][0] >= 8
NAME = "standalone__mha_block_cached__near_ridge_kernel"
WS_PX = 0
WS_F1 = 3 << 20
WS_E = WS_F1 + 0x20000
WS_F2 = WS_F1 + 0x40000
WS_P = args.wsp
NSTEP = 0x9E3779B1
WS_ST = 0x8000000
NST = 16
e = A()

S_X, S_K, S_V, S_WQ, S_WO, S_OUT, S_DBG, S_WS = 4, 6, 8, 10, 12, 14, 16, 18
R_X, R_WQ, R_K, R_V, R_WO, R_OUT, R_WS = 20, 24, 28, 32, 36, 40, 44
S_J, S_I, S_BP, S_H, S_W = 48, 49, 50, 51, 52
S_T0, S_T1, S_T2, S_T3, S_T4 = 53, 54, 55, 56, 57
S_IDX, S_NONCE = 3, 59
S_A = list(range(60, 70))
S_ST = 70
S_BUD = 17
BUD = 2000000
def srd(r, p, nbytes):
    e(f"s_mov_b32 s{r}, s{p}"); e(f"s_mov_b32 s{r+1}, s{p+1}"); e(f"s_mov_b32 s{r+2}, {nbytes}"); e(f"s_mov_b32 s{r+3}, 0x00020000")
def R(r): return f"s[{r}:{r+3}]"
stamp_n = [0]
def stamp(wait=True):
    if not STAMPS: return
    i = stamp_n[0]
    if i >= NST: return
    stamp_n[0] += 1
    e(f"s_mem{'time' if args.clk else 'realtime'} s[{S_ST+2*i}:{S_ST+2*i+1}]")
    if wait: e("s_waitcnt lgkmcnt(0)")
def stamp_store():
    if not STAMPS: return
    n = stamp_n[0]
    e(f"s_lshl_b32 s{S_T0}, s2, 3")
    e(f"s_add_u32 s{S_T0}, s{S_T0}, s{S_W}")
    e(f"s_mul_i32 s{S_T0}, s{S_T0}, {NST*8}")
    e(f"s_add_u32 s{S_T0}, s{S_T0}, {WS_ST}")
    e("v_mov_b32 v4, 0")
    for i in range(NST):
        k = min(i, n-1)
        e(f"v_mov_b32 v6, s{S_ST+2*k}")
        e(f"v_mov_b32 v7, s{S_ST+2*k+1}")
        e(f"buffer_store_dwordx2 v[6:7], v4, {R(R_WS)}, s{S_T0} offen offset:{8*i}")
        e("s_nop 1")
    sys.stderr.write(f"stamps: {n}\n")
def budget(done):
    e(f"s_add_u32 s{S_BUD}, s{S_BUD}, 1")
    e(f"s_cmp_gt_u32 s{S_BUD}, {BUD}")
    e(f"s_cbranch_scc1 {done}")
XB = 12288
PITCH = 40960
SY_FLG = 36864
F_K, F_T, F_P = 10, 16, 30
def bufof(s): return [1, 2, 3, 0, 1, 2, 0, 1, 2, 0][s]
def buf2(t): return [1, 0, 3, 2][t % 4]
SXB = 2*PITCH

e.raw(f".globl {NAME}\n.p2align 8\n.type {NAME},@function\n{NAME}:")
stamp(wait=False)
e("s_load_dwordx16 s[4:19], s[0:1], 0")
e("s_cmp_ge_u32 s2, 256")
e("s_cbranch_scc1 L_end")
e("v_lshrrev_b32 v2, 6, v0")
e("v_and_b32 v1, 63, v0")
e(f"v_readfirstlane_b32 s{S_W}, v2")
e(f"s_and_b32 s{S_J}, s2, 7")
e(f"s_lshr_b32 s{S_IDX}, s2, 3")
e(f"s_and_b32 s{S_I}, s{S_IDX}, 3")
e(f"s_lshr_b32 s{S_BP}, s{S_IDX}, 2")
e(f"s_lshl_b32 s{S_H}, s{S_J}, 2")
e(f"s_add_u32 s{S_H}, s{S_H}, s{S_I}")
e(f"s_cmp_lt_u32 s{S_W}, 4")
e("s_cbranch_scc1 L_compute")

S_L, S_KX, S_KW, S_XK, S_SO, S_LX, S_LW, S_XB, S_WB, S_KVB = S_A
V_OW, V_OXA, V_OXB, V_OKA, V_OKB, V_OOB, V_PF, LDUMMY = 10, 11, 12, 14, 15, 16, 17, 18
V_OWO = 20
S_KB2, S_VB2, S_FLB, S_KD, S_LO, S_WOB = 4, 5, 6, 7, 8, 9
e(f"s_sub_u32 s{S_L}, s{S_W}, 4")
e("v_lshrrev_b32 v2, 3, v1")
e("v_and_b32 v3, 7, v1")
e("v_lshrrev_b32 v4, 1, v2")
e("v_lshlrev_b32 v5, 1, v4")
e("v_xor_b32 v5, v5, v3")
e("v_lshlrev_b32 v5, 4, v5")
e("v_lshrrev_b32 v6, 2, v2")
e("v_lshlrev_b32 v6, 3, v6")
e("v_and_b32 v7, 3, v2")
e("v_add_u32 v6, v6, v7")
e("v_mul_u32_u24 v6, 12288, v6")
e(f"v_add_u32 v{V_OW}, v6, v5")
e("v_mul_u32_u24 v6, 1280, v2")
e("v_xor_b32 v7, v3, v4")
e("v_lshlrev_b32 v8, 4, v7")
e(f"s_and_b32 s{S_T1}, s{S_L}, 1")
e(f"s_lshl_b32 s{S_T2}, s{S_T1}, 6")
e(f"v_xor_b32 v8, s{S_T2}, v8")
e(f"v_add_u32 v{V_OXA}, v6, v8")
e("v_xor_b32 v9, 64, v8")
e(f"v_add_u32 v{V_OXB}, v6, v9")
e(f"s_mul_i32 s{S_XB}, s{S_BP}, {96*1280}")
e(f"s_mul_i32 s{S_T2}, s{S_L}, {24*1280}")
e(f"s_add_u32 s{S_XB}, s{S_XB}, s{S_T2}")
e(f"s_mul_i32 s{S_WB}, s{S_H}, 384")
e(f"s_lshr_b32 s{S_T0}, s{S_L}, 1")
e(f"s_mul_i32 s{S_T2}, s{S_T0}, {16*12288}")
e(f"s_add_u32 s{S_WB}, s{S_WB}, s{S_T2}")
e(f"s_mul_i32 s{S_T2}, s{S_T1}, {4*12288}")
e(f"s_add_u32 s{S_WB}, s{S_WB}, s{S_T2}")
e(f"s_and_b32 s{S_KX}, s{S_BP}, {args.gw-1}")
e(f"s_mul_i32 s{S_KX}, s{S_KX}, {80//args.gw}")
e(f"s_lshr_b32 s{S_KX}, s{S_KX}, 3")
e(f"s_and_b32 s{S_T2}, s{S_I}, {args.gx-1}")
e(f"s_mul_i32 s{S_T2}, s{S_T2}, {80//args.gx}")
e(f"s_lshr_b32 s{S_T2}, s{S_T2}, 3")
e(f"s_add_u32 s{S_KX}, s{S_KX}, s{S_T2}")
e(f"s_sub_u32 s{S_T2}, s{S_KX}, 10")
e(f"s_cmp_ge_u32 s{S_KX}, 10")
e(f"s_cselect_b32 s{S_KX}, s{S_T2}, s{S_KX}")
e(f"s_lshl_b32 s{S_KX}, s{S_KX}, 7")
e(f"s_mul_i32 s{S_LX}, s{S_L}, 3072")
e(f"s_lshl_b32 s{S_LW}, s{S_L}, 10")
V_WPR, V_XPR = 13, 19
if args.wnt:
    e("v_lshrrev_b32 v24, 2, v1")
    e("v_and_b32 v25, 3, v24")
    e("v_lshrrev_b32 v26, 2, v24")
    e("v_and_b32 v27, 1, v26")
    e("v_lshl_add_u32 v25, v27, 3, v25")
    e("v_lshrrev_b32 v26, 1, v26")
    e("v_lshl_add_u32 v25, v26, 5, v25")
    e("v_mul_u32_u24 v25, 12288, v25")
    e("v_and_b32 v26, 3, v1")
    e("v_min_u32 v26, 2, v26")
    e(f"v_lshl_add_u32 v{V_WPR}, v26, 7, v25")
if args.xnt:
    e("v_min_u32 v24, 23, v1")
    e(f"v_mul_u32_u24 v{V_XPR}, 1280, v24")
if args.st0: stamp(wait=False)
e("s_waitcnt lgkmcnt(0)")
if args.st0: stamp()
srd(R_X, S_X, 16*48*640*2)
srd(R_WQ, S_WQ, 640*6144*2)
def issue(s):
    buf = bufof(s)
    e(f"s_mul_i32 s{S_KW}, s{S_KX}, 6144"); e(f"s_add_u32 s{S_KW}, s{S_KW}, s{S_WB}"); e(f"s_add_u32 s{S_XK}, s{S_KX}, s{S_XB}")
    ws = [("w", ks, cg) for ks in range(2) for cg in range(3)]
    xs = [("x", a) for a in range(3)]
    for o in [xs[0], ws[0], ws[1], xs[1], ws[2], xs[2], ws[3], ws[4], ws[5]]:
        if o[0] == "w":
            _, ks, cg = o
            e(f"s_add_u32 m0, s{S_LW}, {buf*PITCH + XB + ks*12288 + cg*4096}")
            e(f"s_add_u32 s{S_SO}, s{S_KW}, {32*ks*12288 + cg*128}")
            e(f"buffer_load_dwordx4 v{V_OW}, {R(R_WQ)}, s{S_SO} offen {'nt' if s < args.wnt else ''} lds")
        else:
            a = o[1]
            e(f"s_add_u32 m0, s{S_LX}, {buf*PITCH + a*1024}")
            e(f"s_add_u32 s{S_SO}, s{S_XK}, {8*a*1280}")
            e(f"buffer_load_dwordx4 v{V_OXB if a == 1 else V_OXA}, {R(R_X)}, s{S_SO} offen {'nt' if s < args.xnt else ''} lds")
    if s < args.wnt: e(f"buffer_load_dword v{LDUMMY}, v{V_WPR}, {R(R_WQ)}, s{S_KW} offen sc1")
    if s < args.xnt: e(f"buffer_load_dword v{LDUMMY}, v{V_XPR}, {R(R_X)}, s{S_XK} offen sc1")
    e(f"s_add_u32 s{S_KX}, s{S_KX}, 128"); e(f"s_cmp_eq_u32 s{S_KX}, 1280"); e(f"s_cselect_b32 s{S_KX}, 0, s{S_KX}")
NOFLAG = [int(x) for x in args.noflag.split(",") if x]
def flag(n):
    if n in NOFLAG: return
    e(f"s_add_u32 m0, s{S_FLB}, {16*n}")
    e("s_mov_b64 exec, 1")
    e(f"buffer_load_dword v{V_OOB}, {R(R_X)}, 0 offen lds")
    e("s_mov_b64 exec, -1")
issue(0)
if args.st0: stamp()
srd(R_K, S_K, 16*32*48*192*2)
srd(R_V, S_V, 16*32*48*192*2)
e(f"v_mov_b32 v{V_OOB}, 0x7ffffff0")
e(f"s_lshl_b32 s{S_FLB}, s{S_L}, 2")
e(f"s_add_u32 s{S_FLB}, s{S_FLB}, {SY_FLG}")
e("s_barrier")
if args.st0: stamp()
flag(0)
issue(1); flag(1)
if args.st0: stamp()
e(f"s_lshl_b32 s{S_T2}, s{S_BP}, 7")
e(f"s_add_u32 s{S_T2}, s{S_T2}, {WS_E}")
e(f"s_load_dword s{S_NONCE}, s[{S_WS}:{S_WS+1}], s{S_T2}")
srd(R_WO, S_WO, 6144*640*2)
srd(R_WS, S_WS, 268435456)
srd(R_OUT, S_OUT, 16*48*640*2)
S_H0, S_RK, S_LF1, S_LPX = 10, 11, 12, 13
if args.rot2:
    if args.vord:
        e(f"s_and_b32 s{S_H0}, s{S_I}, 1")
        e(f"s_and_b32 s{S_RK}, s{S_BP}, 1")
        e(f"s_lshl_b32 s{S_RK}, s{S_RK}, 1")
        if args.vord == 1: e(f"s_or_b32 s{S_H0}, s{S_H0}, s{S_RK}")
        e(f"s_lshr_b32 s{S_RK}, s{S_I}, 1")
    else:
        e(f"s_add_u32 s{S_H0}, s{S_I}, s{S_BP}")
        e(f"s_lshr_b32 s{S_RK}, s{S_BP}, 2")
else:
    e(f"s_mov_b32 s{S_H0}, s{S_I}")
    e(f"s_mov_b32 s{S_RK}, 0")
e("v_mul_u32_u24 v6, 384, v2")
e(f"v_add_u32 v{V_OKA}, v6, v8")
e(f"v_add_u32 v{V_OKB}, v6, v9")
e(f"s_lshl_b32 s{S_T2}, s{S_BP}, 1")
e(f"s_add_u32 s{S_T2}, s{S_T2}, s{S_T0}")
e(f"s_lshl_b32 s{S_T2}, s{S_T2}, 3")
e(f"s_add_u32 s{S_T2}, s{S_T2}, s{S_J}")
e(f"s_mul_i32 s{S_VB2}, s{S_T2}, {4*18432}")
e(f"s_lshl_b32 s{S_LF1}, s{S_T2}, 7")
e(f"s_add_u32 s{S_LF1}, s{S_LF1}, {WS_F1}")
e(f"s_mul_i32 s{S_LPX}, s{S_T2}, {4*5120}")
e(f"s_mul_i32 s{S_T3}, s{S_T1}, {24*384}")
e(f"s_add_u32 s{S_VB2}, s{S_VB2}, s{S_T3}")
e(f"s_mul_i32 s{S_T3}, s{S_I}, 18432")
e(f"s_add_u32 s{S_KB2}, s{S_VB2}, s{S_T3}")
e(f"s_mul_i32 s{S_KD}, s{S_T0}, 18432")
e(f"s_mul_i32 s{S_T3}, s{S_T1}, 3072")
e(f"s_add_u32 s{S_KD}, s{S_KD}, s{S_T3}")
e(f"s_mul_i32 s{S_WOB}, s{S_J}, {768*1280}")
e(f"s_mul_i32 s{S_T2}, s{S_L}, {16*1280}")
e(f"s_add_u32 s{S_WOB}, s{S_WOB}, s{S_T2}")
e(f"s_mul_i32 s{S_T2}, s{S_I}, 320")
e(f"s_add_u32 s{S_WOB}, s{S_WOB}, s{S_T2}")
e(f"s_mul_i32 s{S_LO}, s{S_L}, 5120")
e(f"s_mov_b32 s{S_T0}, 0x0ccccccd")
for n in range(5):
    e(f"v_add_u32 v2, {64*n}, v1")
    e(f"v_mul_hi_u32 v3, v2, s{S_T0}")
    e("v_mul_u32_u24 v4, 20, v3")
    e("v_sub_u32 v4, v2, v4")
    e("v_lshrrev_b32 v5, 2, v3")
    e("v_and_b32 v5, 2, v5")
    e("v_xor_b32 v4, v4, v5")
    e("v_mul_u32_u24 v3, 1280, v3")
    e(f"v_lshl_add_u32 v{V_OWO+n}, v4, 4, v3")
e("v_min_u32 v2, 59, v1")
e(f"v_lshlrev_b32 v{V_PF}, 7, v2")
V_T1, V_T2 = 26, 27
e(f"v_lshlrev_b32 v{V_T1}, 7, v1")
e("v_and_b32 v2, 7, v1")
e(f"v_lshlrev_b32 v{V_T2}, 7, v2")
def vpf():
    e(f"s_and_b32 s{S_SO}, s{S_H0}, 3")
    e(f"s_mul_i32 s{S_SO}, s{S_SO}, 18432")
    e(f"s_add_u32 s{S_SO}, s{S_SO}, s{S_VB2}")
    e(f"s_add_u32 s{S_T2}, s{S_SO}, 8192")
    e(f"buffer_load_dword v{LDUMMY}, v{V_T1}, {R(R_V)}, s{S_SO} offen")
    e(f"buffer_load_dword v{LDUMMY}, v{V_T2}, {R(R_V)}, s{S_T2} offen")
WST = [int(x) for x in args.wstag.split(",")] if args.wstag else []
VST = [int(x) for x in args.vstag.split(",")] if args.vstag else []
S_WP, S_VP = 14, 15
def stagsel(dst, lst):
    packed = sum(v << (4*k) for k, v in enumerate(lst))
    e(f"s_and_b32 s{S_T2}, s{S_IDX}, {len(lst)-1}")
    e(f"s_lshl_b32 s{S_T2}, s{S_T2}, 2")
    e(f"s_lshr_b32 s{dst}, {packed:#x}, s{S_T2}")
    e(f"s_and_b32 s{dst}, s{dst}, 15")
if WST: stagsel(S_WP, WST)
assert not VST
stagsel(S_VP, KST)
def kdma():
    for a in range(3):
        for cg in range(3):
            e(f"s_add_u32 m0, s{S_KD}, {3*PITCH + cg*6144 + a*1024}")
            e(f"s_add_u32 s{S_SO}, s{S_KB2}, {8*a*384 + cg*128}")
            e(f"buffer_load_dwordx4 v{V_OKB if a == 1 else V_OKA}, {R(R_K)}, s{S_SO} offen {args.kflag} lds")
    flag(F_K)
V_PFH, V_PFV = 29, 30
LST = [int(x) for x in args.lstag.split(",")] if args.lstag else []
S_LP = 16
if args.vord == 2:
    e("v_min_u32 v2, 29, v1")
    e(f"v_lshlrev_b32 v{V_PF}, 7, v2")
    e("v_min_u32 v2, 35, v1")
    e(f"v_lshlrev_b32 v{V_PFV}, 7, v2")
    if LST: stagsel(S_LP, [x - 8 for x in LST])
def latepf():
    e(f"s_lshl_b32 s{S_T2}, s{S_IDX}, 2"); e(f"s_add_u32 s{S_T2}, s{S_T2}, s{S_L}")
    e(f"s_mul_i32 s{S_T2}, s{S_T2}, 3840"); e(f"s_mul_i32 s{S_SO}, s{S_J}, {768*1280}"); e(f"s_add_u32 s{S_T2}, s{S_T2}, s{S_SO}")
    e(f"s_add_u32 s{S_T2}, s{S_T2}, {384*1280}")
    e(f"s_and_b32 s{S_SO}, s{S_I}, 1"); e(f"s_add_u32 s{S_SO}, s{S_SO}, 2"); e(f"s_mul_i32 s{S_SO}, s{S_SO}, 18432")
    e(f"s_add_u32 s{S_SO}, s{S_SO}, s{S_VB2}")
    e(f"s_mul_i32 s17, s{S_RK}, 4608"); e(f"s_add_u32 s{S_SO}, s{S_SO}, s17")
    for fl in (["nt", "sc1"] if args.lnt else [""]):
        e(f"buffer_load_dword v{LDUMMY}, v{V_PF}, {R(R_WO)}, s{S_T2} offen {fl}")
        e(f"buffer_load_dword v{LDUMMY}, v{V_PFV}, {R(R_V)}, s{S_SO} offen {fl}")
def wpf():
    e(f"s_lshl_b32 s{S_T2}, s{S_IDX}, 2"); e(f"s_add_u32 s{S_T2}, s{S_T2}, s{S_L}")
    e(f"s_mul_i32 s{S_T2}, s{S_T2}, {3840 if args.vord == 2 else 7680}"); e(f"s_mul_i32 s{S_T3}, s{S_J}, {768*1280}"); e(f"s_add_u32 s{S_T2}, s{S_T2}, s{S_T3}")
    if args.wp2:
        e(f"buffer_load_dword v{LDUMMY}, v{V_PF}, {R(R_WO)}, s{S_T2} offen nt")
        e(f"buffer_load_dword v{LDUMMY}, v{V_PF}, {R(R_WO)}, s{S_T2} offen sc1")
    else:
        e(f"buffer_load_dword v{LDUMMY}, v{V_PF}, {R(R_WO)}, s{S_T2} offen")
V_T3 = 28
e("v_min_u32 v2, 23, v1")
e(f"v_mul_u32_u24 v{V_T3}, 384, v2")
def v2pf():
    e(f"s_and_b32 s{S_SO}, s{S_H0}, 3")
    e(f"s_mul_i32 s{S_SO}, s{S_SO}, 18432")
    e(f"s_add_u32 s{S_SO}, s{S_SO}, s{S_VB2}")
    e(f"s_cmp_eq_u32 s{S_RK}, 0")
    e(f"s_cselect_b32 s{S_T2}, 256, 0")
    e(f"s_add_u32 s{S_SO}, s{S_SO}, s{S_T2}")
    if args.vnt:
        e(f"buffer_load_dword v{LDUMMY}, v{V_T3}, {R(R_V)}, s{S_SO} offen nt")
        e(f"buffer_load_dword v{LDUMMY}, v{V_T3}, {R(R_V)}, s{S_SO} offen sc1")
    else:
        e(f"buffer_load_dword v{LDUMMY}, v{V_T3}, {R(R_V)}, s{S_SO} offen")
def tlbwarm():
    e(f"s_lshl_b32 s{S_T2}, s{S_IDX}, 18")
    e(f"s_add_u32 s{S_T2}, s{S_T2}, {WS_P + 7*8192 + 7*1024}")
    e(f"s_mul_i32 s{S_T3}, s{S_BP}, {96*1280}")
    e("v_mov_b32 v2, 0")
    e("s_mov_b64 exec, 1")
    e(f"buffer_load_dword v{LDUMMY}, v2, {R(R_WS)}, s{S_T2} offen sc1")
    e(f"buffer_load_dword v{LDUMMY}, v2, {R(R_OUT)}, s{S_T3} offen sc1")
    e("s_mov_b64 exec, -1")
def extra(n):
    if n == args.tlbw: tlbwarm()
    if n in LST:
        e(f"s_cmp_lg_u32 s{S_LP}, {n-8}"); e(f"s_cbranch_scc1 L_nl{n}"); latepf(); e.lab(f"L_nl{n}")
    if n == args.v2pf: v2pf()
    if n in WST:
        e(f"s_cmp_lg_u32 s{S_WP}, {n}"); e(f"s_cbranch_scc1 L_nw{n}"); wpf(); e.lab(f"L_nw{n}")
    if n in KST:
        e(f"s_cmp_lg_u32 s{S_VP}, {n}"); e(f"s_cbranch_scc1 L_nv{n}"); kdma(); e.lab(f"L_nv{n}")
    if n == args.vppos and args.vfirst: vpf()
    extra2(n)
    if n == args.vppos and not args.vfirst: vpf()
def extra2(n):
    if n == args.wppos:
        e(f"s_lshl_b32 s{S_T2}, s{S_IDX}, 2"); e(f"s_add_u32 s{S_T2}, s{S_T2}, s{S_L}")
        e(f"s_mul_i32 s{S_T2}, s{S_T2}, 7680"); e(f"s_mul_i32 s{S_T3}, s{S_J}, {768*1280}"); e(f"s_add_u32 s{S_T2}, s{S_T2}, s{S_T3}")
        e(f"buffer_load_dword v{LDUMMY}, v{V_PF}, {R(R_WO)}, s{S_T2} offen")
issue(2); flag(2); extra(2)
issue(3); flag(3); extra(3)
for bi, (m, l) in enumerate(BARS):
    e("s_barrier")
    if bi in (0, len(BARS)-1): stamp()
    for n in l: issue(n); flag(n); extra(n)
def issue2(t):
    hd, kk = divmod(t, 3); buf = buf2(t)
    if kk == 0:
        e(f"s_{'xor_b32' if args.vord else 'add_u32'} s{S_T0}, s{S_H0}, {hd}")
        e(f"s_and_b32 s{S_T0}, s{S_T0}, 3")
        e(f"s_mul_i32 s{S_KW}, s{S_T0}, {192*1280}")
        e(f"s_add_u32 s{S_KW}, s{S_KW}, s{S_WOB}")
        e(f"s_mul_i32 s{S_XK}, s{S_T0}, 18432")
        e(f"s_add_u32 s{S_XK}, s{S_XK}, s{S_VB2}")
    e(f"s_add_u32 s{S_T3}, s{S_RK}, {kk}")
    e(f"s_cmp_eq_u32 s{S_T3}, 3")
    e(f"s_cselect_b32 s{S_T3}, 0, s{S_T3}")
    e(f"s_mul_i32 s{S_KX}, s{S_T3}, {64*1280}")
    e(f"s_add_u32 s{S_KX}, s{S_KX}, s{S_KW}")
    e(f"s_lshl_b32 s{S_T3}, s{S_T3}, 7")
    e(f"s_add_u32 s{S_T3}, s{S_T3}, s{S_XK}")
    for o in ["v0", "w0", "w1", "v1", "w2", "w3", "v2", "w4"]:
        n = int(o[1])
        if o[0] == "w":
            e(f"s_add_u32 m0, s{S_LO}, {buf*PITCH + XB + n*1024}")
            e(f"buffer_load_dwordx4 v{V_OWO+n}, {R(R_WO)}, s{S_KX} offen {'nt' if t < args.wont else ''} lds")
        else:
            e(f"s_add_u32 m0, s{S_LX}, {buf*PITCH + n*1024}")
            e(f"s_add_u32 s{S_SO}, s{S_T3}, {8*n*384}")
            e(f"buffer_load_dwordx4 v{V_OKB if n == 1 else V_OKA}, {R(R_V)}, s{S_SO} offen {'nt' if t < args.vnt else ''} lds")
    flag(F_T + t)
    if t < args.vnt: e(f"buffer_load_dword v{LDUMMY}, v{V_T3}, {R(R_V)}, s{S_T3} offen sc1")
    extra(11 + t)
e("s_waitcnt lgkmcnt(0)")
e(f"s_add_u32 s{S_NONCE}, s{S_NONCE}, {NSTEP:#x}")
e("s_barrier")
issue2(0)
stamp()
if args.t0bar == 7: e("s_barrier")
if args.t1early:
    e("s_barrier")
    issue2(1)
e("s_barrier")
e("s_barrier")
stamp()
for t in range(1 + args.t1early, 4): issue2(t)
stamp()
e("v_and_b32 v2, 7, v1")
e("v_lshlrev_b32 v2, 2, v2")
e("v_lshlrev_b32 v3, 4, v1")
for bi, (m, l) in enumerate(BARS2):
    e("s_barrier")
    stamp()
    if bi == len(BARS2) - 2 and args.apoll:
        e(f"buffer_load_dword v4, v2, {R(R_WS)}, s{S_LF1} offen sc1")
        napoll = 9*len(l)
    for t in l: issue2(t)
    if bi == len(BARS2) - 1:
        e(f"s_mov_b32 s{S_T2}, 0")
        if args.apoll:
            e(f"s_waitcnt vmcnt({napoll + 9*len(l)})")
            e(f"v_cmp_ne_u32 vcc, s{S_NONCE}, v4")
            e("s_cbranch_vccz L_lpolld")
        e.lab("L_lpoll")
        e(f"buffer_load_dword v4, v2, {R(R_WS)}, s{S_LF1} offen sc1")
        e(f"s_add_u32 s{S_T2}, s{S_T2}, 1")
        e(f"s_cmp_ge_u32 s{S_T2}, 100000")
        e("s_cbranch_scc1 L_lpolld")
        e("s_waitcnt vmcnt(0)")
        e(f"v_cmp_ne_u32 vcc, s{S_NONCE}, v4")
        e("s_cbranch_vccz L_lpolld")
        e(f"s_sleep {args.sleep}")
        e("s_branch L_lpoll")
        e.lab("L_lpolld")
PBUF = buf2(8)*PITCH
e(f"s_mul_i32 s{S_T3}, s{S_L}, 9216")
for pp in range(2):
    e(f"s_lshl_b32 s{S_T0}, s{S_T1}, 1")
    e(f"s_add_u32 s{S_T0}, s{S_T0}, {pp}")
    e(f"s_{'xor_b32' if args.vord else 'add_u32'} s{S_T0}, s{S_T0}, s{S_H0}")
    e(f"s_and_b32 s{S_T0}, s{S_T0}, 3")
    e(f"s_mul_i32 s{S_T0}, s{S_T0}, 5120")
    e(f"s_add_u32 s{S_T0}, s{S_T0}, s{S_LPX}")
    for n in range(5):
        if n == 4: e("s_mov_b32 exec_hi, 0")
        e(f"s_add_u32 m0, s{S_T3}, {PBUF + pp*4608 + n*1024}")
        e(f"s_add_u32 s{S_SO}, s{S_T0}, {WS_PX + n*1024}")
        e(f"buffer_load_dwordx4 v3, {R(R_WS)}, s{S_SO} offen sc1 lds")
        if n == 4: e("s_mov_b64 exec, -1")
flag(F_P)
e("s_waitcnt vmcnt(0)")
stamp()
stamp_store()
e("s_endpgm")

stamp_n[0] = 1 if STAMPS else 0
e.lab("L_compute")
S_B, S_JH, S_PXB, S_SO, S_CNT, S_F1, S_PXO, S_PB, S_F2, S_OUTB = S_A
V_L16, V_FL8, V_OUT, V_L12, V_SR, V_RDY = 10, 11, 12, 13, 14, 15
V_AW, V_AX = 16, 22
FR = [32, 68]
ACC = 104
V_AK, DUMMY = 182, 191
VA2 = [176, 177, 178, 179]
V_SXW, V_SXR, V_PL = 180, 181, 188
QF = 192
if args.prio: e(f"s_setprio {args.prio}")
e(f"v_lshlrev_b32 v{V_L16}, 4, v1")
e("v_lshlrev_b32 v2, 2, v0")
e(f"v_add_u32 v2, {SY_FLG}, v2")
e("v_mov_b32 v4, 1")
e("ds_write_b32 v2, v4")
e("s_getpc_b64 s[60:61]")
e.lab("L_pc")
e(f"s_sub_u32 s60, s60, L_pc-{NAME}")
e("s_subb_u32 s61, s61, 0")
e(f"s_lshl_b32 s{S_T0}, s{S_IDX}, 10")
e("v_and_b32 v2, 7, v1")
e("v_lshlrev_b32 v2, 7, v2")
e(f"v_add_u32 v2, s{S_T0}, v2")
e(f"global_load_dword v{DUMMY}, v2, s[60:61]")
e("s_waitcnt lgkmcnt(0)")
e("s_barrier")
e(f"s_lshl_b32 s{S_T2}, s{S_BP}, 7")
e(f"s_add_u32 s{S_T2}, s{S_T2}, {WS_E}")
e(f"s_load_dword s{S_NONCE}, s[{S_WS}:{S_WS+1}], s{S_T2}")
srd(R_OUT, S_OUT, 16*48*640*2)
srd(R_WS, S_WS, 268435456)
e(f"s_mov_b32 s{S_BUD}, 0")
e(f"s_lshr_b32 s{S_B}, s{S_W}, 1")
e(f"s_and_b32 s{S_JH}, s{S_W}, 1")
e(f"v_lshlrev_b32 v{V_L12}, 3, v1")
e(f"v_add_u32 v{V_L12}, 512, v{V_L12}")
e("v_lshrrev_b32 v2, 4, v1")
e("v_and_b32 v3, 15, v1")
e("v_mul_u32_u24 v4, 1280, v3")
e(f"v_lshl_add_u32 v{V_OUT}, v2, 3, v4")
e("v_and_b32 v4, 7, v1")
e(f"v_lshlrev_b32 v{V_FL8}, 2, v4")
e("v_and_b32 v4, 3, v1")
e("v_lshlrev_b32 v5, 2, v4")
e(f"v_add_u32 v{V_SR}, {SY_FLG}, v5")
e(f"s_xor_b32 s{S_T3}, s{S_W}, 1")
e(f"s_mul_i32 s{S_T2}, s{S_W}, 9216")
e(f"s_mul_i32 s{S_T1}, s{S_T3}, 9216")
e(f"s_add_u32 s{S_T2}, s{S_T2}, {SXB}")
e(f"s_add_u32 s{S_T1}, s{S_T1}, {SXB}")
e(f"v_add_u32 v{V_SXW}, s{S_T2}, v{V_L16}")
e(f"v_add_u32 v{V_SXR}, s{S_T1}, v{V_L16}")
e("v_lshrrev_b32 v8, 1, v3")
e("v_xor_b32 v4, v8, v2")
e("v_lshlrev_b32 v4, 4, v4")
e("v_lshl_add_u32 v4, v3, 7, v4")
e(f"s_mul_i32 s{S_T2}, s{S_B}, 6144")
e(f"v_add_u32 v{V_AX}, s{S_T2}, v4")
e(f"v_xor_b32 v{V_AX+1}, 64, v{V_AX}")
e(f"v_add_u32 v{V_AX+8}, {2*PITCH}, v{V_AX}")
e(f"v_add_u32 v{V_AX+9}, {2*PITCH}, v{V_AX+1}")
e("v_lshrrev_b32 v9, 1, v2")
e("v_xor_b32 v9, v9, v8")
e("v_and_b32 v4, 1, v2")
e("v_lshlrev_b32 v4, 3, v4")
e("v_lshl_add_u32 v4, v3, 7, v4")
e(f"s_mul_i32 s{S_T2}, s{S_JH}, 12")
e(f"s_mul_i32 s{S_T1}, s{S_B}, 18432")
e(f"s_add_u32 s{S_T1}, s{S_T1}, {3*PITCH}")
for k in range(6):
    e(f"s_add_u32 s{S_T3}, s{S_T2}, {2*k}")
    e(f"s_and_b32 s{S_T0}, s{S_T3}, 7")
    e(f"s_lshr_b32 s{S_T3}, s{S_T3}, 3")
    e(f"s_mul_i32 s{S_T3}, s{S_T3}, 6144")
    e(f"s_add_u32 s{S_T3}, s{S_T3}, s{S_T1}")
    e(f"v_xor_b32 v6, s{S_T0}, v9")
    e(f"v_lshl_add_u32 v6, v6, 4, v4")
    e(f"v_add_u32 v{V_AK+k}, s{S_T3}, v6")
e("v_lshrrev_b32 v4, 2, v1")
e("v_and_b32 v4, 7, v4")
e("v_lshrrev_b32 v5, 5, v1")
e("v_lshlrev_b32 v5, 11, v5")
e("v_lshl_add_u32 v5, v4, 7, v5")
e("v_and_b32 v6, 3, v1")
e("v_lshl_add_u32 v5, v6, 3, v5")
e("v_lshrrev_b32 v4, 1, v4")
e(f"s_mul_i32 s{S_T2}, s{S_JH}, 6")
for t in range(6):
    e(f"s_add_u32 s{S_T3}, s{S_T2}, {t}")
    e(f"s_and_b32 s{S_T0}, s{S_T3}, 3")
    e(f"s_lshr_b32 s{S_T3}, s{S_T3}, 2")
    e(f"s_lshl_b32 s{S_T3}, s{S_T3}, 12")
    e(f"s_add_u32 s{S_T3}, s{S_T3}, {XB}")
    e(f"v_xor_b32 v6, s{S_T0}, v4")
    e(f"v_lshl_add_u32 v6, v6, 5, v5")
    e(f"v_add_u32 v{V_AW+t}, s{S_T3}, v6")
    e(f"v_add_u32 v{V_AW+8+t}, {2*PITCH}, v{V_AW+t}")
e(f"s_lshl_b32 s{S_T2}, s{S_BP}, 1")
e(f"s_add_u32 s{S_T2}, s{S_T2}, s{S_B}")
e(f"s_mul_i32 s{S_OUTB}, s{S_T2}, {48*1280}")
e(f"s_lshl_b32 s{S_T2}, s{S_T2}, 3")
e(f"s_add_u32 s{S_T2}, s{S_T2}, s{S_J}")
e(f"s_mul_i32 s{S_PXB}, s{S_T2}, {4*5120}")
e(f"s_mul_i32 s{S_T3}, s{S_I}, 5120")
e(f"s_add_u32 s{S_PXO}, s{S_PXB}, s{S_T3}")
e(f"s_lshl_b32 s{S_F1}, s{S_T2}, 7")
e(f"s_add_u32 s{S_F1}, s{S_F1}, {WS_F1}")
e(f"s_mul_i32 s{S_T3}, s{S_I}, 320")
e(f"s_add_u32 s{S_OUTB}, s{S_OUTB}, s{S_T3}")
e(f"s_mul_i32 s{S_T3}, s{S_JH}, 160")
e(f"s_add_u32 s{S_OUTB}, s{S_OUTB}, s{S_T3}")
e("v_lshrrev_b32 v2, 4, v1")
e("v_lshrrev_b32 v3, 2, v1")
e("v_and_b32 v3, 3, v3")
e("v_lshl_add_u32 v3, v2, 3, v3")
e("v_mul_u32_u24 v3, 320, v3")
e("v_and_b32 v4, 3, v1")
e("v_lshl_add_u32 v3, v4, 3, v3")
e("v_and_b32 v2, 1, v2")
e("v_lshlrev_b32 v2, 5, v2")
e("v_add_u32 v4, v3, v2")
e("v_sub_u32 v5, v3, v2")
e(f"s_add_u32 s{S_T3}, s{S_T3}, {XB}")
e(f"s_cmp_eq_u32 s{S_JH}, 0")
e("s_cselect_b64 vcc, -1, 0")
e("v_cndmask_b32 v6, v5, v4, vcc")
e("v_cndmask_b32 v7, v4, v5, vcc")
e(f"v_add_u32 v{VA2[0]}, s{S_T3}, v6")
e(f"v_add_u32 v{VA2[2]}, s{S_T3}, v7")
e(f"v_add_u32 v{VA2[1]}, {2*PITCH}, v{VA2[0]}")
e(f"v_add_u32 v{VA2[3]}, {2*PITCH}, v{VA2[2]}")
cs = (192 ** -0.5) * math.log2(math.e)
cbits = struct.unpack("<I", struct.pack("<f", cs))[0]
S_SC = S_T4
e(f"s_mov_b32 s{S_SC}, {cbits:#x}")
e("s_waitcnt lgkmcnt(0)")
e(f"s_add_u32 s{S_NONCE}, s{S_NONCE}, {NSTEP:#x}")
V_NON, V_FO = 189, 190
e(f"v_mov_b32 v{V_NON}, s{S_NONCE}")
e(f"s_lshl_b32 s{S_T0}, s{S_I}, 1")
e(f"s_add_u32 s{S_T0}, s{S_T0}, s{S_JH}")
e(f"s_lshl_b32 s{S_T0}, s{S_T0}, 2")
e(f"v_mov_b32 v{V_FO}, s{S_T0}")

slow = []
def fread(n):
    while n in NOFLAG: n += 1
    return f"ds_read_b32 v{V_RDY}, v{V_SR} offset:{16*n}"
def fcmp(): e(f"v_cmp_ne_u32 vcc, 0, v{V_RDY}")
def check(n):
    e(f"s_cbranch_vccnz L_slow{n}")
    e.lab(f"L_cont{n}")
    slow.append(n)
def fwait(n):
    e(f"s_branch L_slow{n}")
    e.lab(f"L_cont{n}")
    slow.append(n)
def read_ops(s, ks, fs):
    buf = bufof(s)
    aset = 8*(buf//2); boff = (buf % 2)*PITCH
    F = FR[fs]
    def xr(qt): return f"ds_read_b128 {vr(F+24+4*qt,4)}, v{V_AX+aset+ks} offset:{boff+qt*2048}"
    def wr(t, m): return f"ds_read_b64_tr_b16 {vr(F+4*t+2*m,2)}, v{V_AW+aset+t} offset:{boff+ks*12288+m*1024}"
    ops = [xr(0), wr(0,0), wr(0,1), xr(1), xr(2)]
    for t in range(1, 6): ops += [wr(t,0), wr(t,1)]
    return ops
def mfma_ops(fs, first):
    F = FR[fs]; ops = []
    for t in range(6):
        for qt in range(3):
            d = ACC + (t*3+qt)*4
            c = "0" if first else vr(d,4)
            ops.append(f"v_mfma_f32_16x16x32_bf16 {vr(d,4)}, {vr(F+4*t,4)}, {vr(F+24+4*qt,4)}, {c}")
    return ops
def interleave(mf, reads, first2=4, valu=None, vper=0, vstart=0):
    rq = list(reads)
    for k, m in enumerate(mf):
        e(m)
        for _ in range(2 if k < first2 else 1):
            if rq: e(rq.pop(0))
        if valu is not None and k >= vstart:
            n = vper
            while n > 0 and valu:
                x = valu.pop(0); e.emit(x)
                n -= 2 if (isinstance(x, str) and x.startswith(("v_exp", "v_rcp"))) else 1
    assert not rq
def merge(mf, fill, per, start=0):
    fq = list(fill)
    for k, m in enumerate(mf):
        e(m)
        if k >= start:
            for _ in range(per):
                if fq: e.emit(fq.pop(0))
    return fq

fwait(0)
stamp()
for x in read_ops(0, 0, 0): e(x)
STS = [int(x) for x in args.st.split(",")]
for s in range(10):
    e.c(f"--- stage {s} kstep 0")
    e("s_waitcnt lgkmcnt(0)")
    interleave(mfma_ops(0, s == 0), read_ops(s, 1, 1) + ([fread(s+1)] if (s < 9 or args.kfast) else []))
    e("s_waitcnt lgkmcnt(0)")
    e.c(f"--- stage {s} kstep 1")
    mf = mfma_ops(1, False)
    if s < 9 or args.kfast: fcmp()
    e(mf[0])
    if s in CB or (s == 9 and args.kfast): e("s_barrier")
    if s < 9 or args.kfast: check(s+1)
    if s in STS: stamp()
    if s < 9:
        interleave(mf[1:], read_ops(s+1, 0, 0))
def Z1(tt): return 104 + 12*tt
def G(tt): return 164 + 18*tt
def VWA(tt, kt): return G(tt) + 6 + 4*kt
def vwb(hd, tt): return [Z1(tt), Z1(tt)+6, G(tt), G(tt)+6][hd]
KF = 32
SB = 68
SAQ = [Z1(tt)+6 for tt in range(5)] + [G(0), G(4), 26, G(1)]
kreads = [f"ds_read_b64 {vr(KF+(kt*3+u)*4+2*ee,2)}, v{V_AK+2*u+ee} offset:{kt*2048}" for u in range(3) for kt in range(3) for ee in range(2)]
def qcvt(u):
    ops = []
    for hh in range(2):
        for qt in range(3):
            q = QF + (u*3+qt)*4
            a = ACC + ((2*u+hh)*3+qt)*4
            ops += [f"v_cvt_pk_bf16_f32 v{q+2*hh}, v{a}, v{a+1}", f"v_cvt_pk_bf16_f32 v{q+2*hh+1}, v{a+2}, v{a+3}"]
    return ops
REMAP = {}
mv = []
for k, r in enumerate(VA2 + [V_NON, V_FO]):
    n = [16, 17, 18, 19, 20, 21][k]
    mv.append(f"v_mov_b32 v{n}, v{r}")
    REMAP[r] = n
VA2 = [REMAP[r] for r in VA2]; V_NON = REMAP[V_NON]; V_FO = REMAP[V_FO]
def smf(u, kt, qt):
    d = SAQ[kt*3+qt]
    c = "0" if u == 0 else vr(d,4)
    return f"v_mfma_f32_16x16x32_bf16 {vr(d,4)}, {vr(KF+(kt*3+u)*4,4)}, {vr(QF+(u*3+qt)*4,4)}, {c}"
if args.kfast:
    assert F_K == 10 and args.t1early
    fill = kreads + qcvt(0) + qcvt(1) + qcvt(2)
    fill = merge(mf[1:], fill, 2)
    stamp()
    stamp()
    def accsrc(reg): return (reg - ACC) // 24 if ACC <= reg < ACC + 72 else -1
    order = sorted(range(9), key=lambda k: max(accsrc(SAQ[k]), accsrc(SAQ[k]+3)))
    e("s_waitcnt lgkmcnt(0)")
    done = 36 - len(fill)
    for k in order:
        need = 12*(max(accsrc(SAQ[k]), accsrc(SAQ[k]+3)) + 1)
        need = max(need, 12)
        while done < need:
            e(fill.pop(0)); done += 1
        e(smf(0, k // 3, k % 3))
        for _ in range(2):
            if fill: e(fill.pop(0)); done += 1
    assert not fill
    merge([smf(1, kt, qt) for kt in range(3) for qt in range(3)], mv, 1)
else:
    fill = qcvt(0) + qcvt(1) + qcvt(2)
    fill = merge(mf[1:], fill, 2, start=8)
    for x in fill[:6]: e(x)
    fill = fill[6:]
    stamp()
    if args.t1early: e("s_barrier")
    fwait(F_K)
    stamp()
    for x in kreads: e(x)
    for x in fill: e(x)
    for x in mv: e(x)
    for u in range(2):
        e(f"s_waitcnt lgkmcnt({12-6*u})")
        for kt in range(3):
            for qt in range(3): e(smf(u, kt, qt))
    e("s_waitcnt lgkmcnt(0)")
TMPQ = [68, 72, 76]
SB = 80
def slast(jh):
    def m(kt, qt, d): return f"v_mfma_f32_16x16x32_bf16 {vr(d,4)}, {vr(KF+(kt*3+2)*4,4)}, {vr(QF+(6+qt)*4,4)}, {vr(SAQ[kt*3+qt],4)}"
    snd = 2 - 2*jh; keep = 2*jh
    for kt in range(3): e(m(kt, snd, TMPQ[kt]))
    for kt in range(3): e(m(kt, 1, SAQ[kt*3+1]))
    for kt in range(3): e(m(kt, keep, SAQ[kt*3]))
    for kt in range(3): e(f"ds_write_b128 v{V_SXW}, {vr(TMPQ[kt],4)} offset:{kt*1024}")
    for kt in range(3): e(f"ds_write_b128 v{V_SXW}, {vr(SAQ[kt*3+1],4)} offset:{(3+kt)*1024}")
e(f"s_cmp_lg_u32 s{S_JH}, 0")
e("s_cbranch_scc1 L_sl1")
slast(0)
e.lab("L_sld")
e("s_waitcnt lgkmcnt(0) vmcnt(0)")
e("s_barrier")
stamp()
for k in range(6): e(f"ds_read_b128 {vr(SB+4*k,4)}, v{V_SXR} offset:{k*1024}")
def sreg(kt, qt, r): return SAQ[kt*3+qt] + r
NQ = 2
for qt in range(NQ):
    e(f"s_waitcnt lgkmcnt({3-3*qt})")
    if qt == NQ-1: e("s_barrier")
    for kt in range(3):
        for h2 in range(2):
            e(f"v_pk_add_f32 {vr(sreg(kt,qt,2*h2),2)}, {vr(sreg(kt,qt,2*h2),2)}, {vr(SB+4*(qt*3+kt)+2*h2,2)}")
M = [2, 4, 6]; T = [3, 5, 7]
SM = []
for qt in range(NQ):
    vals = [sreg(kt, qt, r) for kt in range(3) for r in range(4)]
    SM.append(f"v_max3_f32 v{M[qt]}, v{vals[0]}, v{vals[1]}, v{vals[2]}")
    for k in range(3, 11, 2): SM.append(f"v_max3_f32 v{M[qt]}, v{M[qt]}, v{vals[k]}, v{vals[k+1]}")
    SM.append(f"v_max_f32 v{M[qt]}, v{M[qt]}, v{vals[11]}")
def xl(op):
    for sw in ("v_permlane32_swap_b32", "v_permlane16_swap_b32"):
        for qt in range(NQ): SM.append(f"v_mov_b32 v{T[qt]}, v{M[qt]}")
        for qt in range(NQ): SM.append(f"{sw} v{M[qt]}, v{T[qt]}")
        for qt in range(NQ): SM.append(f"{op} v{M[qt]}, v{M[qt]}, v{T[qt]}")
xl("v_max_f32")
for qt in range(NQ): SM.append(f"v_mul_f32 v{M[qt]}, s{S_SC}, v{M[qt]}")
for qt in range(NQ):
    for kt in range(3):
        for r in range(4):
            x = sreg(kt, qt, r); SM.append(f"v_fma_f32 v{x}, v{x}, s{S_SC}, -v{M[qt]}")
for qt in range(NQ):
    for kt in range(3):
        for r in range(4):
            x = sreg(kt, qt, r); SM.append(f"v_exp_f32 v{x}, v{x}")
for qt in range(NQ):
    vals = [sreg(kt, qt, r) for kt in range(3) for r in range(4)]
    SM.append(f"v_add_f32 v{M[qt]}, v{vals[0]}, v{vals[1]}")
    for k in range(2, 12): SM.append(f"v_add_f32 v{M[qt]}, v{M[qt]}, v{vals[k]}")
xl("v_add_f32")
for qt in range(NQ): SM.append(f"v_rcp_f32 v{M[qt]}, v{M[qt]}")
for qt in range(NQ):
    for kt in range(3):
        for r in range(4):
            x = sreg(kt, qt, r); SM.append(f"v_mul_f32 v{x}, v{x}, v{M[qt]}")
    for kt in range(3):
        x = sreg(kt, qt, 0)
        d = sreg(0, qt, 2*kt) if kt < 2 else sreg(1, qt, 0)
        SM += [f"v_cvt_pk_bf16_f32 v{d}, v{x}, v{x+1}", f"v_cvt_pk_bf16_f32 v{d+1}, v{x+2}, v{x+3}"]
def ppublish():
    e(f"s_lshl_b32 s{S_T0}, s{S_JH}, 10")
    e(f"s_add_u32 s{S_T1}, s{S_T0}, s{S_PXO}")
    e(f"s_add_u32 s{S_T0}, s{S_T0}, s{S_T1}")
    e(f"buffer_store_dwordx4 {vr(sreg(0,0,0),4)}, v{V_L16}, {R(R_WS)}, s{S_T0} offen sc1")
    e(f"buffer_store_dwordx2 {vr(sreg(1,0,0),2)}, v{V_L12}, {R(R_WS)}, s{S_T1} offen offset:2560 sc1")
    e(f"s_cmp_lg_u32 s{S_JH}, 0")
    e("s_cbranch_scc1 L_pp1")
    e(f"buffer_store_dwordx4 {vr(sreg(0,1,0),4)}, v{V_L16}, {R(R_WS)}, s{S_PXO} offen offset:1024 sc1")
    e.lab("L_ppd")
for x in SM[:args.smpre]: e(x)
SM = SM[args.smpre:]
pubstep = None
if not SM: ppublish(); pubstep = -1
stamp()
def read2(t, ks, fs):
    buf = buf2(t)
    hi = buf // 2; boff = (buf % 2)*PITCH
    F = FR[fs]
    def vrd(kt): return f"ds_read_b128 {vr(F+24+4*kt,4)}, v{V_AX+8*hi+ks} offset:{boff+kt*2048}"
    def wr(tt, m): return f"ds_read_b64_tr_b16 {vr(F+4*tt+2*m,2)}, v{VA2[2*(tt%2)+hi]} offset:{boff+ks*10240+m*1280+tt*32}"
    ops = [vrd(0), wr(0,0), wr(0,1), vrd(1), vrd(2)]
    for tt in range(1, 5): ops += [wr(tt,0), wr(tt,1)]
    return ops
def mf2(fs, first):
    F = FR[fs]; ops = []
    for tt in range(5):
        for kt in range(3):
            d = VWA(tt, kt)
            c = "0" if first else vr(d,4)
            ops.append(f"v_mfma_f32_16x16x32_bf16 {vr(d,4)}, {vr(F+24+4*kt,4)}, {vr(F+4*tt,4)}, {c}")
    if args.r2idle: ops = ["s_nop 0"]*15
    return ops
def vwcvt(hd, tt):
    b = vwb(hd, tt); ops = []
    for kt in range(3):
        a = VWA(tt, kt)
        ops += [f"v_cvt_pk_bf16_f32 v{b+2*kt}, v{a}, v{a+1}", f"v_cvt_pk_bf16_f32 v{b+2*kt+1}, v{a+2}, v{a+3}"]
    return ops
V_PA16, V_PA8 = 24, 25
e(f"s_mul_i32 s{S_T0}, s{S_B}, 18432")
e(f"s_add_u32 s{S_T0}, s{S_T0}, {buf2(8)*PITCH}")
e(f"v_add_u32 v{V_PA16}, s{S_T0}, v{V_L16}")
e(f"v_add_u32 v{V_PA8}, s{S_T0}, v{V_L12}")
def pread(dst, pos, qt, kt):
    if kt < 2: return f"ds_read_b64 {vr(dst,2)}, v{V_PA16} offset:{pos*4608 + qt*1024 + kt*8}"
    return f"ds_read_b64 {vr(dst,2)}, v{V_PA8} offset:{pos*4608 + 2560 + qt*512}"
def pfrag(dst, ks, qt):
    if ks % 3 == 0:
        return [f"ds_read_b128 {vr(dst,4)}, v{V_PA16} offset:{(2*ks//3)*4608 + qt*1024}"]
    return [pread(dst + 2*h, (2*ks+h)//3, qt, (2*ks+h) % 3) for h in range(2)]
fwait(F_T)
if args.p2st: stamp_n[0] = 1
stamp()
for x in read2(0, 0, 0): e(x)
B2M = [m for m, l in BARS2]
carry = []
PQ_ = [FR[0] + 4*k for k in range(9)]
for t in range(12):
    hd, kk = divmod(t, 3)
    for ks in range(2):
        step = 2*t + ks
        e.c(f"--- ring2 stage {t} kstep {ks}")
        e("s_waitcnt lgkmcnt(0)")
        mf = mf2(ks, kk == 0 and ks == 0)
        nf = F_T+t+1 if t < 11 else F_P
        if ks == 0:
            rq = read2(t, 1, 1) + [fread(nf)]
        else:
            fcmp()
            e(mf[0]); mf = mf[1:]
            if t in B2M: e("s_barrier")
            check(nf)
            if args.p2st or t in (2, 5, 8): stamp()
            rq = read2(t+1, 0, 0) if t < 11 else sum([pfrag(PQ_[k], k, 0) for k in range(6)], [])
        if pubstep is not None and step == pubstep + args.ackdelay:
            e(mf[0]); mf = mf[1:]
            e("s_waitcnt vmcnt(0)")
            e(f"buffer_store_dword v{V_NON}, v{V_FO}, {R(R_WS)}, s{S_F1} offen sc1")
        last = (kk == 2 and ks == 1)
        if carry:
            interleave(mf, rq, first2=3, valu=carry, vper=2)
            assert not carry
        elif last:
            assert not (hd == 1 and (SM or pubstep is None)), "softmax must finish within head 1"
            carry = sum([vwcvt(hd, tt) for tt in range(5)], [])
            interleave(mf, rq, first2=3, valu=carry, vper=2, vstart=5)
        elif SM and step >= args.smstart:
            interleave(mf, rq, first2=3, valu=SM, vper=args.vper)
            if not SM:
                ppublish(); pubstep = step
        else:
            interleave(mf, rq, first2=3)
sys.stderr.write(f"pubstep {pubstep}\n")
def afr(tt, ks): return (Z1(tt) + 4*ks) if ks < 3 else (G(tt) + 4*(ks-3))
OUTQ = [FR[1] + 4*k for k in range(9)] + [G(tt) + 12 for tt in range(5)] + [26]
def OUTR_(tt, qt): return OUTQ[qt*5 + tt]
OUTR = list(OUTQ)
e(f"s_lshl_b32 s{S_T0}, s{S_IDX}, 2")
e(f"s_add_u32 s{S_T0}, s{S_T0}, s{S_W}")
e(f"s_lshl_b32 s{S_F2}, s{S_T0}, 10")
e(f"s_add_u32 s{S_F2}, s{S_F2}, {WS_F2}")
e(f"s_lshl_b32 s{S_PB}, s{S_T0}, 16")
e(f"s_add_u32 s{S_PB}, s{S_PB}, {WS_P}")
e(f"s_lshl_b32 s{S_T1}, s{S_J}, 10")
e(f"s_add_u32 s{S_T1}, s{S_T1}, s{S_PB}")
OWN = 2
def pstore(p):
    a0 = OUTR[2*p]; a1 = OUTR[min(2*p+1, 14)]
    ops = [[f"s_cmp_eq_u32 s{S_J}, {p}", f"s_cbranch_scc1 L_own{p}",
            f"v_cvt_pk_bf16_f32 v{a0}, v{a0}, v{a0+1}", f"v_cvt_pk_bf16_f32 v{a0+1}, v{a0+2}, v{a0+3}"]]
    if p < 7:
        ops[0] += [f"v_cvt_pk_bf16_f32 v{a0+2}, v{a1}, v{a1+1}", f"v_cvt_pk_bf16_f32 v{a0+3}, v{a1+2}, v{a1+3}"]
    ops[0] += [f"s_add_u32 s{S_SO}, s{S_T1}, {p*8192}",
               f"buffer_store_dwordx4 {vr(a0,4)}, v{V_L16}, {R(R_WS)}, s{S_SO} offen {args.psf}", f"L_ownr{p}:"]
    return ops
nq = 6
pend = list(range(8))
for qt in range(3):
    for ks in range(6):
        idx = qt*6 + ks
        pq = PQ_[idx % 9]
        fm = [f"v_mfma_f32_16x16x32_bf16 {vr(OUTR_(tt,qt),4)}, {vr(afr(tt,ks),4)}, {vr(pq,4)}, {'0' if ks == 0 else vr(OUTR_(tt,qt),4)}" for tt in range(5)]
        if ks % 3 == 0: e("s_waitcnt lgkmcnt(0)")
        rq = []
        if ks % 3 == 0:
            for _ in range(3):
                if nq < 18:
                    rq += pfrag(PQ_[nq % 9], nq % 6, nq // 6); nq += 1
        interleave(fm, rq, first2=5, valu=carry, vper=3)
        if args.early and ks >= 1 and pend and 2*pend[0]+1 < 5*qt:
            e.emit(pstore(pend.pop(0)))
assert not carry
stamp()
for p in pend: e.emit(pstore(p))
e(f"s_lshl_b32 s{S_T1}, s{S_J}, 2")
e(f"s_add_u32 s{S_T1}, s{S_T1}, s{S_F2}")
e(f"v_lshlrev_b32 v22, 5, v{V_FL8}")
e(f"s_lshl_b32 s{S_T2}, s{S_J}, 7")
e(f"s_add_u32 s{S_F2}, s{S_F2}, s{S_T2}")
e(f"s_lshl_b32 s{S_T0}, s{S_J}, 13")
e(f"s_add_u32 s{S_T0}, s{S_T0}, s{S_PB}")
for k in range(1, 8):
    e(f"s_add_u32 s{S_T2}, s{S_J}, {k}")
    e(f"s_and_b32 s{S_T2}, s{S_T2}, 7")
    e(f"s_lshl_b32 s{S_T2}, s{S_T2}, 10")
    e(f"s_add_u32 s{3+k}, s{S_T2}, s{S_T0}")
e("s_mov_b64 exec, 0xff")
e("s_waitcnt vmcnt(0)")
e(f"buffer_store_dword v{V_NON}, v22, {R(R_WS)}, s{S_T1} offen sc1")
D = args.f2atom
e(f"s_mov_b32 s{S_CNT}, 0")
for k in range(D-1):
    e(f"v_mov_b32 v{140+k}, 0")
    e(f"buffer_atomic_or v{140+k}, v{V_FL8}, {R(R_WS)}, s{S_F2} offen sc0 sc1")
    e(f"s_sleep {args.f2sleep}")
e.lab("L_poll2")
for k in range(D):
    nw = (k + D - 1) % D
    e(f"v_mov_b32 v{140+nw}, 0")
    e(f"buffer_atomic_or v{140+nw}, v{V_FL8}, {R(R_WS)}, s{S_F2} offen sc0 sc1")
    e(f"s_waitcnt vmcnt({D-1})")
    e(f"v_cmp_ne_u32 vcc, s{S_NONCE}, v{140+k}")
    e("s_cbranch_vccz L_poll2_done")
    e(f"s_sleep {args.f2sleep}")
e(f"s_add_u32 s{S_CNT}, s{S_CNT}, 1")
e(f"s_cmp_lt_u32 s{S_CNT}, 50000")
e("s_cbranch_scc1 L_poll2")
e.lab("L_poll2_done")
e("s_mov_b64 exec, -1")
stamp()
for k in range(1, 8):
    e(f"buffer_load_dwordx4 {vr(192+4*k,4)}, v{V_L16}, {R(R_WS)}, s{3+k} offen {args.plf}")
e(f"s_mov_b32 s{S_T4}, 0xffff0000")
for k in range(1, 8):
    e(f"s_waitcnt vmcnt({7-k})")
    for d in range(4):
        e(f"v_lshlrev_b32 v{148+2*d}, 16, v{192+4*k+d}")
        e(f"v_and_b32 v{148+2*d+1}, s{S_T4}, v{192+4*k+d}")
    for d in range(4):
        e(f"v_pk_add_f32 {vr(OWN+2*d,2)}, {vr(OWN+2*d,2)}, {vr(148+2*d,2)}")
res = [OWN, OWN+4]
for z in range(2):
    b = res[z]
    e(f"v_cvt_pk_bf16_f32 v{32+2*z}, v{b}, v{b+1}")
    e(f"v_cvt_pk_bf16_f32 v{33+2*z}, v{b+2}, v{b+3}")
    e(f"s_lshl_b32 s{S_T0}, s{S_J}, 1")
    e(f"s_add_u32 s{S_T0}, s{S_T0}, {z}")
    if z == 1:
        e(f"s_cmp_eq_u32 s{S_T0}, 15")
        e("s_cbranch_scc1 L_fin")
    e(f"s_mul_i32 s{S_T2}, s{S_T0}, 13")
    e(f"s_lshr_b32 s{S_T2}, s{S_T2}, 6")
    e(f"s_mul_i32 s{S_T1}, s{S_T2}, 5")
    e(f"s_sub_u32 s{S_T1}, s{S_T0}, s{S_T1}")
    e(f"s_lshl_b32 s{S_T1}, s{S_T1}, 5")
    e(f"s_mul_i32 s{S_T2}, s{S_T2}, {16*1280}")
    e(f"s_add_u32 s{S_SO}, s{S_OUTB}, s{S_T1}")
    e(f"s_add_u32 s{S_SO}, s{S_SO}, s{S_T2}")
    e(f"buffer_store_dwordx2 {vr(32+2*z,2)}, v{V_OUT}, {R(R_OUT)}, s{S_SO} offen {args.outf}")
e.lab("L_fin")
e(f"s_or_b32 s{S_T0}, s{S_J}, s{S_I}")
e(f"s_or_b32 s{S_T0}, s{S_T0}, s{S_JH}")
e(f"s_cmp_lg_u32 s{S_T0}, 0")
e("s_cbranch_scc1 L_noep")
e("s_barrier")
e(f"s_cmp_lg_u32 s{S_W}, 0")
e("s_cbranch_scc1 L_noep")
e(f"s_lshl_b32 s{S_T2}, s{S_BP}, 7")
e(f"s_add_u32 s{S_T2}, s{S_T2}, {WS_E}")
e("s_mov_b64 exec, 1")
e(f"buffer_store_dword v{V_NON}, v{V_FO}, {R(R_WS)}, s{S_T2} offen sc1")
e("s_mov_b64 exec, -1")
e.lab("L_noep")
if STAMPS:
    e("s_waitcnt vmcnt(0)")
    stamp()
stamp_store()
e.lab("L_end")
e("s_endpgm")
e.lab("L_sl1")
e("s_nop 7")
slast(1)
e("s_branch L_sld")
e.lab("L_pp1")
e(f"buffer_store_dwordx2 {vr(sreg(1,1,0),2)}, v{V_L12}, {R(R_WS)}, s{S_PXO} offen offset:3072 sc1")
e("s_branch L_ppd")
for p in range(8):
    e.lab(f"L_own{p}")
    e("s_nop 7")
    for z in range(2):
        a = OUTR[min(2*p+z, 14)]
        for r in range(4): e(f"v_mov_b32 v{OWN+4*z+r}, v{a+r}")
    e(f"s_branch L_ownr{p}")
for n in slow:
    e.lab(f"L_slow{n}")
    e(fread(n))
    budget(f"L_cont{n}")
    e("s_waitcnt lgkmcnt(0)")
    fcmp()
    e(f"s_cbranch_vccnz L_slow{n}")
    e(f"s_branch L_cont{n}")
e.raw(".p2align 8")
e.raw(".fill 4096, 4, 0xBF810000")
hdr = [
 "; Fused MHA block (cached K/V), hand-written generator output (dev/gen17.py).",
 "; kernarg: x, k_cache, v_cache, wq, wo, out, debug, ws (8 pointers).",
 "; 256 workgroups (one per CU), 8 waves: waves 0-3 compute (MFMA), waves 4-7 stream operands into LDS (LDS-DMA).",
 "; workgroup (j = id&7, i, bp): head 4j+i, batches 2bp,2bp+1:  Q = x Wq_h ; S = Q K^T ; P = softmax(S*scale) (true row max);",
 ";   then, for the 4 heads of group j and 160 output columns: partial = sum_h P_h (V_h Wo_h);",
 ";   P is exchanged inside the group, the 8 partials of a tile are reduced across groups (write-through stores + flags in ws).",
 "; hand-off flags carry a per-launch nonce derived from an epoch word in ws; correctness does not depend on placement.",
 "; @launch grid=(256,1,1) block=(512,1,1) lds=163840",
 '.amdgcn_target "amdgcn-amd-amdhsa--gfx950"', ".text"]
desc = f""".amdhsa_kernel {NAME}
  .amdhsa_next_free_vgpr 256
  .amdhsa_next_free_sgpr 102
  .amdhsa_accum_offset 256
  .amdhsa_group_segment_fixed_size 0
  .amdhsa_kernarg_size 64
  .amdhsa_user_sgpr_count 2
  .amdhsa_user_sgpr_kernarg_segment_ptr 1
  .amdhsa_system_sgpr_workgroup_id_x 1
.end_amdhsa_kernel"""
body = hazard_pad(e.L, verbose=True)
sys.stdout.write("\n".join(hdr + body) + '\n.section .rodata,"a"\n.p2align 6\n' + desc + "\n")
```
